```python
import torch

def _softmax(x, axis=-1):
    return torch.softmax(x, dim=axis)
def _gelu(x):
    return torch.nn.functional.gelu(x, approximate="tanh")
def _silu(x):
    return torch.nn.functional.silu(x)
def _sigmoid(x):
    return torch.sigmoid(x)
def _layernorm(x, axis=-1, eps=1e-5):
    m = x.mean(dim=axis, keepdim=True)
    v = x.var(dim=axis, keepdim=True, unbiased=False)
    return (x - m) / torch.sqrt(v + eps)
def _scatter_add(tgt, idx, src, axis=0):
    return tgt.clone().index_add_(axis, idx, src)
def _segment_sum(src, seg, n):
    out = torch.zeros((n,) + src.shape[1:], dtype=src.dtype)
    return out.index_add_(0, seg, src)
def _pad(x, pw):
    flat = tuple(v for pair in reversed(pw) for v in pair)
    return torch.nn.functional.pad(x, flat)

kernel_name = 'recurrent_scan__sliding_block_cached__glu_gated_bilinear__prompt'

def setup_inputs():

    _w = (lambda a: (lambda t: t.to(torch.bfloat16) if t.is_floating_point() else t)(torch.as_tensor(a)))
    def _A_setup():
        B, Sq, D = 1, 2048, 1024
        Hq, Hkv, Sk, Dh = 32, 4, 2048, 128
        assert Hq % Hkv == 0, (Hq, Hkv)
        return {
            "x": _w((lambda *s: torch.randn(*s, dtype=torch.bfloat16) * 0.05)(B, Sq, D)),
            "k_cache": _w((lambda *s: torch.randn(*s, dtype=torch.bfloat16) * 1.6)(B, Hkv, Sk, Dh)),
            "v_cache": _w((lambda *s: torch.randn(*s, dtype=torch.bfloat16) * 1.6)(B, Hkv, Sk, Dh)),
            "wq": _w((lambda *s: torch.randn(*s, dtype=torch.bfloat16) * 1.6)(D, Hq * Dh) * (D ** -0.5)),
            "wo": _w((lambda *s: torch.randn(*s, dtype=torch.bfloat16) * 1.6)(Hq * Dh, D) * ((Hq * Dh) ** -0.5)),
        }
    _A_in = _A_setup()

    def _B_setup():
        B, S, D, F = 1, 2048, 1024, 3584
        return {
            "x": _w((lambda *s: torch.randn(*s, dtype=torch.bfloat16) * 0.05)(B, S, D)),
            "w_gate": _w((lambda *s: torch.randn(*s, dtype=torch.bfloat16) * 0.2)(D, F) * (D ** -0.5)),
            "w_up": _w((lambda *s: torch.randn(*s, dtype=torch.bfloat16) * 0.2)(D, F) * (D ** -0.5)),
            "w_down": _w((lambda *s: torch.randn(*s, dtype=torch.bfloat16) * 0.2)(F, D) * (F ** -0.5)),
        }
    _B_in = _B_setup()

    return {
        "A_x": _A_in["x"],
        "A_k_cache": _A_in["k_cache"],
        "A_v_cache": _A_in["v_cache"],
        "A_wq": _A_in["wq"],
        "A_wo": _A_in["wo"],
        "B_x": _B_in["x"],
        "B_w_gate": _B_in["w_gate"],
        "B_w_up": _B_in["w_up"],
        "B_w_down": _B_in["w_down"],
    }

def reference(A_x, A_k_cache, A_v_cache, A_wq, A_wo, B_x, B_w_gate, B_w_up, B_w_down):
    def _A_ref(x, k_cache, v_cache, wq, wo):
        B, Sq, D = x.shape
        Hq, Dh = 32, 128
        Hkv, Sk = k_cache.shape[1], k_cache.shape[2]
        W = min(4096, max(256, Sk // 4))
        rep = Hq // Hkv
        q = (lambda x, *d: x.permute(*d))((x @ wq).reshape(B, Sq, Hq, Dh), 0, 2, 1, 3)
        k = (lambda x, n, axis: torch.repeat_interleave(x, n, dim=axis))(k_cache[:, :, Sk - W:, :], rep, axis=1)
        v = (lambda x, n, axis: torch.repeat_interleave(x, n, dim=axis))(v_cache[:, :, Sk - W:, :], rep, axis=1)
        scores = torch.einsum("bhqd,bhkd->bhqk", q, k) * (Dh ** -0.5)
        p = _softmax(scores, axis=-1)
        o = torch.einsum("bhqk,bhkd->bhqd", p, v)
        return (lambda x, *d: x.permute(*d))(o, 0, 2, 1, 3).reshape(B, Sq, Hq * Dh) @ wo

    def _B_ref(x, w_gate, w_up, w_down):
        g = torch.einsum("bsd,df->bsf", x, w_gate)
        u = torch.einsum("bsd,df->bsf", x, w_up)
        h = g * u
        return torch.einsum("bsf,fd->bsd", h, w_down)

    x = A_x
    xn = _layernorm(x, axis=-1)
    s = _A_ref(xn, A_k_cache, A_v_cache, A_wq, A_wo)
    g = _silu(_B_ref(xn, B_w_gate, B_w_up, B_w_down))
    return x + s * g
```

```python
NAME = "recurrent_scan__sliding_block_cached__glu_gated_bilinear__prompt"
HEADER_COMMENT = open("cdna_kernels/%s.s.ref" % NAME).read().split("; Override launch")[0]

class Asm:
    def __init__(self):
        self.lines = []
    def __call__(self, s):
        for l in s.split("\n"):
            self.lines.append("  " + l.strip() if l.strip() and not l.strip().endswith(":") else l.strip())
    def text(self):
        return "\n".join(self.lines) + "\n"

def kd(name, vgpr, accum, sgpr=102):
    return f""".p2align 6
.amdhsa_kernel {name}
  .amdhsa_next_free_vgpr {vgpr}
  .amdhsa_next_free_sgpr {sgpr}
  .amdhsa_accum_offset {accum}
  .amdhsa_group_segment_fixed_size 0
  .amdhsa_kernarg_size 96
  .amdhsa_user_sgpr_count 2
  .amdhsa_user_sgpr_kernarg_segment_ptr 1
  .amdhsa_system_sgpr_workgroup_id_x 1
  .amdhsa_float_denorm_mode_32 3
.end_amdhsa_kernel
"""

def build_file(kernels):
    out = HEADER_COMMENT
    for k in kernels:
        if len(kernels) == 1 and k['name'] == NAME + "_kernel":
            out += f"; @launch grid=({k['grid']},1,1) block=({k['block']},1,1) lds={k['lds']}\n"; continue
        out += f"; @launch kernel={k['name']} grid=({k['grid']},1,1) block=({k['block']},1,1) lds={k['lds']}\n"
    out += '.amdgcn_target "amdgcn-amd-amdhsa--gfx950"\n.text\n'
    seen = set()
    for k in kernels:
        if k['name'] in seen: continue
        seen.add(k['name'])
        out += f".globl {k['name']}\n.p2align 8\n.type {k['name']},@function\n{k['name']}:\n" + k['body'] + "\n"
    out += '.section .rodata,"a"\n'
    seen = set()
    for k in kernels:
        if k['name'] in seen: continue
        seen.add(k['name'])
        out += kd(k['name'], k['vgpr'], k['accum'], k.get('sgpr', 102))
    return out
```

```python
import sys
from gen_core import *
from asmlib import build_file, NAME
XN_OFF = 0; O_OFF = 4 << 20; H_OFF = 20 << 20; G_OFF = 36 << 20; FLAG_OFF = 44 << 20
MF = "v_mfma_f32_16x16x32_bf16"
TS_OFF = 48 << 20
STAMP = False
def stamp(k):
    if not STAMP: return []
    return L(f"s_memtime s[64:65]\ns_memrealtime s[66:67]\ns_waitcnt lgkmcnt(0)\ns_mov_b32 s{70+2*k}, s64\ns_mov_b32 s{71+2*k}, s66")
def stamp_store(n, wslo, kern):
    if not STAMP: return []
    t = srd(64, wslo, wslo + 1, 1 << 20, TS_OFF + kern * 0x40000)
    t += L("s_lshl_b32 s68, s2, 9\ns_lshl_b32 s69, s33, 7\ns_add_u32 s68, s68, s69\nv_mov_b32 v1, s68\ns_mov_b64 exec, 1")
    for i in range(2 * n):
        t += L(f"v_mov_b32 v2, s{70+i}\nbuffer_store_dword v2, v1, s[64:67], 0 offen offset:{4*i}\ns_nop 1")
    t += L("s_mov_b64 exec, -1")
    return t


def srd(d, lo, hi, size, add=0):
    t = []
    if add > 0:
        t += [f"s_add_u32 s{d}, s{lo}, {add:#x}", f"s_addc_u32 s{d+1}, s{hi}, 0"]
    elif add < 0:
        t += [f"s_sub_u32 s{d}, s{lo}, {-add:#x}", f"s_subb_u32 s{d+1}, s{hi}, 0"]
    else:
        t += [f"s_mov_b32 s{d}, s{lo}", f"s_mov_b32 s{d+1}, s{hi}"]
    t += [f"s_mov_b32 s{d+2}, {size:#x}", f"s_mov_b32 s{d+3}, 0x20000"]
    return L("\n".join(t))

def wave_sum(v, s0):
    t = []
    for r in (8, 4, 2, 1):
        t += ["s_nop 1", f"v_add_f32_dpp v{v}, v{v}, v{v} row_ror:{r} row_mask:0xf bank_mask:0xf"]
    t += ["s_nop 0"] + [f"v_readlane_b32 s{s0+i}, v{v}, {16*i}" for i in range(4)]
    t += ["s_nop 1", f"v_mov_b32 v{v}, s{s0}", f"v_add_f32 v{v}, s{s0+1}, v{v}", f"v_add_f32 v{v}, s{s0+2}, v{v}", f"v_add_f32 v{v}, s{s0+3}, v{v}"]
    return L("\n".join(t))

def gen_ln():
    p = []
    p += L("""
    s_cmp_ge_u32 s2, 256
    s_cbranch_scc1 L_ln_end
    s_load_dwordx2 s[4:5], s[0:1], 0
    s_load_dwordx2 s[6:7], s[0:1], 88
    v_lshrrev_b32 v1, 6, v0
    v_and_b32 v2, 63, v0
    s_lshl_b32 s3, s2, 3
    v_add_u32 v1, s3, v1
    v_lshlrev_b32 v3, 11, v1
    v_lshrrev_b32 v12, 1, v2
    v_lshl_add_u32 v3, v12, 6, v3
    v_and_b32 v13, 1, v2
    v_lshl_add_u32 v3, v13, 4, v3
    s_waitcnt lgkmcnt(0)
    """)
    p += srd(8, 4, 5, 4 << 20)
    p += srd(12, 6, 7, 4 << 20, XN_OFF)
    p += srd(16, 6, 7, 8192, FLAG_OFF)
    p += L("""
    buffer_load_dwordx4 v[4:7], v3, s[8:11], 0 offen
    buffer_load_dwordx4 v[8:11], v3, s[8:11], 0 offen offset:32
    v_lshrrev_b32 v14, 6, v1
    v_lshlrev_b32 v14, 17, v14
    v_lshl_add_u32 v14, v12, 12, v14
    v_bfe_u32 v15, v1, 4, 2
    v_lshl_add_u32 v14, v15, 10, v14
    v_lshl_add_u32 v14, v13, 9, v14
    v_and_b32 v15, 15, v1
    v_lshl_add_u32 v14, v15, 4, v14
    s_cmp_lg_u32 s2, 0
    s_cbranch_scc1 L_ln_noflag
    v_mov_b32 v16, 0
    v_mov_b32 v17, 0
    v_mov_b32 v18, 0
    v_mov_b32 v19, 0
    v_lshlrev_b32 v15, 4, v0
    buffer_store_dwordx4 v[16:19], v15, s[16:19], 0 offen
    L_ln_noflag:
    s_mov_b32 s20, 0xffff0000
    s_waitcnt vmcnt(0)
    """)
    for e in range(16):
        src = 4 + e // 2
        p += L(f"v_lshlrev_b32 v{16+e}, 16, v{src}" if e % 2 == 0 else f"v_and_b32 v{16+e}, s20, v{src}")
    p += L("v_add_f32 v32, v16, v17")
    for e in range(2, 16): p += L(f"v_add_f32 v32, v32, v{16+e}")
    p += wave_sum(32, 24)
    p += L("v_mul_f32 v32, 0x3a800000, v32")
    p += L("v_sub_f32 v34, v16, v32\nv_mul_f32 v33, v34, v34")
    for e in range(1, 16): p += L(f"v_sub_f32 v34, v{16+e}, v32\nv_fmac_f32 v33, v34, v34")
    p += wave_sum(33, 24)
    p += L("""
    v_mul_f32 v33, 0x3a800000, v33
    v_cvt_pk_bf16_f32 v34, v32, v33
    v_lshlrev_b32 v32, 16, v34
    v_and_b32 v33, s20, v34
    v_add_f32 v33, 0x3727c5ac, v33
    v_cvt_pk_bf16_f32 v33, v33, v33
    v_and_b32 v33, s20, v33
    v_sqrt_f32 v33, v33
    s_nop 0
    v_cvt_pk_bf16_f32 v33, v33, v33
    v_and_b32 v33, s20, v33
    v_rcp_f32 v33, v33
    """)
    for e in range(16): p += L(f"v_sub_f32 v{16+e}, v{16+e}, v32")
    for q in range(8): p += L(f"v_cvt_pk_bf16_f32 v{4+q}, v{16+2*q}, v{17+2*q}")
    for e in range(16):
        src = 4 + e // 2
        p += L(f"v_lshlrev_b32 v{16+e}, 16, v{src}" if e % 2 == 0 else f"v_and_b32 v{16+e}, s20, v{src}")
    for e in range(16): p += L(f"v_mul_f32 v{16+e}, v{16+e}, v33")
    dst = [36, 37, 40, 41, 38, 39, 42, 43]
    for q in range(8): p += L(f"v_cvt_pk_bf16_f32 v{dst[q]}, v{16+2*q}, v{17+2*q}")
    p += L("""
    buffer_store_dwordx4 v[36:39], v14, s[12:15], 0 offen
    buffer_store_dwordx4 v[40:43], v14, s[12:15], 0 offen offset:256
    L_ln_end:
    s_endpgm
    """)
    errs = check(p, "ln")
    assert not errs, "\n".join(errs[:20])
    return dict(name="ln_kernel", body=text(p), grid=256, block=512, lds=0, vgpr=48, accum=48, sgpr=32)

def lane_consts():
    return L("""
    v_and_b32 v1, 63, v0
    v_lshrrev_b32 v16, 6, v0
    s_nop 0
    v_readfirstlane_b32 s33, v16
    """)

def tr_addr(vd, e, pi, kgstride, t0=16):
    sh = kgstride.bit_length() - 1
    assert 1 << sh == kgstride
    a, b, c = t0, t0 + 1, t0 + 2
    t = f"""
    v_lshrrev_b32 v{a}, 5, v1
    v_lshlrev_b32 v{vd}, {sh}, v{a}
    v_bfe_u32 v{a}, v1, 2, 3
    v_lshl_add_u32 v{vd}, v{a}, 6, v{vd}
    v_bfe_u32 v{a}, v1, 4, 1
    v_and_b32 v{b}, 3, v1
    """
    if not pi:
        t += f"""
        v_xor_b32 v{a}, {e}, v{a}
        v_lshl_add_u32 v{vd}, v{a}, 5, v{vd}
        v_lshl_add_u32 v{vd}, v{b}, 3, v{vd}
        """
    else:
        t += f"""
        v_lshlrev_b32 v{a}, 1, v{a}
        v_xor_b32 v{a}, v{a}, v{b}
        v_lshl_add_u32 v{vd}, v{a}, 4, v{vd}
        v_lshrrev_b32 v{b}, 1, v{b}
        v_xor_b32 v{b}, {e}, v{b}
        v_lshl_add_u32 v{vd}, v{b}, 3, v{vd}
        """
    return L(t)

def wdma_addr(vd, RS, scol, t0=16, st=40):
    a, b = t0, t0 + 1
    t = f"""
    v_bfe_u32 v{a}, v1, 2, 3
    s_and_b32 s{st}, s33, 1
    s_lshl_b32 s{st}, s{st}, 5
    v_add_u32 v{a}, s{st}, v{a}
    s_mov_b32 s{st}, {RS}
    v_mul_lo_u32 v{vd}, v{a}, s{st}
    v_lshrrev_b32 v{a}, 5, v1
    v_lshl_add_u32 v{vd}, v{a}, 6, v{vd}
    v_bfe_u32 v{a}, v1, 4, 1
    v_lshlrev_b32 v{a}, 1, v{a}
    v_and_b32 v{b}, 3, v1
    v_xor_b32 v{a}, v{a}, v{b}
    v_lshl_add_u32 v{vd}, v{a}, 4, v{vd}
    s_lshr_b32 s{st}, s33, 1
    s_lshl_b32 s{st}, s{st}, 7
    s_add_u32 s{st}, s{st}, {scol}
    v_add_u32 v{vd}, s{st}, v{vd}
    """
    for z in range(1, 4):
        t += f"v_add_u32 v{vd+z}, {z*(8*RS-1024):#x}, v{vd}\n"
    return L(t)

def gen_k2(LA=5, cap=2, abl=''):
    S = 8
    pro = []
    pro += L("""
    s_cmp_ge_u32 s2, 256
    s_cbranch_scc1 L_k2_end
    s_load_dwordx2 s[4:5], s[0:1], 32
    s_load_dwordx2 s[6:7], s[0:1], 64
    s_load_dwordx2 s[28:29], s[0:1], 88
    s_load_dwordx2 s[30:31], s[0:1], 0
    s_load_dwordx2 s[46:47], s[0:1], 72
    """)
    pro += stamp(0)
    pro += lane_consts()
    pro += L("""
    s_bfe_u32 s34, s2, 0x10002
    s_lshr_b32 s35, s2, 3
    s_and_b32 s36, s35, 7
    s_and_b32 s37, s2, 1
    s_lshl_b32 s37, s37, 3
    s_add_u32 s36, s36, s37           ; rt 0..15
    s_lshr_b32 s37, s35, 3
    s_bfe_u32 s38, s2, 0x10001
    s_lshl_b32 s38, s38, 2
    s_add_u32 s37, s37, s38           ; ct 0..7
    s_lshl_b32 s39, s37, 8
    """)
    if 'X' in abl: pro += L("s_mov_b32 s39, 0\ns_and_b32 s36, s36, 1")
    if 'Y' in abl: pro += L("s_mov_b32 s39, 0")
    if 'Z' in abl: pro += L("s_and_b32 s36, s36, 1")
    pro += tr_addr(2, 0, True, 1024) + tr_addr(3, 1, True, 1024)
    pro += L("v_add_u32 v4, 0x10000, v2\nv_add_u32 v5, 0x10000, v3")
    pro += wdma_addr(6, 2048, "s39")
    pro += L(f"""
    s_waitcnt lgkmcnt(0)
    s_cmp_eq_u32 s34, 0
    s_cselect_b32 s8, s4, s6
    s_cselect_b32 s9, s5, s7
    s_mov_b32 s40, {4096*2048:#x}
    s_mov_b32 s41, {3584*2048:#x}
    s_cselect_b32 s10, s40, s41
    s_mov_b32 s11, 0x20000
    s_mov_b32 s40, {O_OFF:#x}
    s_mov_b32 s41, {H_OFF:#x}
    s_cselect_b32 s40, s40, s41
    s_mov_b32 s42, {128*2048:#x}
    s_mov_b32 s43, {112*2048:#x}
    s_cselect_b32 s42, s42, s43
    s_cselect_b32 s44, 6, 5
    s_add_u32 s12, s28, s40
    s_addc_u32 s13, s29, 0
    s_mov_b32 s14, {16<<20:#x}
    s_mov_b32 s15, 0x20000
    s_lshl_b32 s40, s36, 2
    s_add_u32 s40, s40, s33           ; mb32
    s_mul_i32 s41, s40, s42
    v_lshlrev_b32 v10, 4, v1
    v_add_u32 v10, s41, v10
    s_lshl_b32 s45, s33, 12           ; wave lds base
    s_mov_b32 s48, 0                  ; W soffset
    s_mov_b32 s49, 0
    """)
    def loads(t):
        st = t % S
        r = [Ins(f"s_add_u32 m0, s45, {st*16384:#x}")]
        for z in range(4):
            r.append(Ins(f"buffer_load_dwordx4 v{6+z}, s[8:11], s48 offen offset:{z*1024} lds", tag=("T", t), wr=(st*16384, st*16384+16384, t)))
        for j in range(4):
            b = 64 + st * 16 + j * 4
            r.append(Ins(f"buffer_load_dwordx4 a[{b}:{b+3}], v10, s[12:15], s49 offen offset:{j*1024}", tag=("T", t)))
        r.append(Ins("s_add_u32 s48, s48, 0x20000")); r.append(Ins("s_add_u32 s49, s49, 0x1000"))
        return r
    for t in range(S - 2):
        x = loads(t); pro += [x[0], Ins("s_nop 0")] + x[1:]
    pro += srd(16, 30, 31, 4 << 20) + srd(20, 46, 47, 4 << 20) + srd(24, 28, 29, (8 << 20) + 8192, G_OFF)
    pro += L(f"""
    v_and_b32 v11, 15, v1
    s_lshl_b32 s40, s40, 5
    v_add_u32 v11, s40, v11
    v_lshlrev_b32 v11, 11, v11
    v_lshrrev_b32 v16, 4, v1
    v_lshl_add_u32 v11, v16, 4, v11
    v_add_u32 v11, s39, v11
    s_lshl_b32 s50, s36, 3
    s_add_u32 s50, s50, s37           ; pair
    s_lshl_b32 s51, s50, 15
    s_lshl_b32 s52, s33, 13
    s_add_u32 s51, s51, s52
    v_lshlrev_b32 v12, 4, v1
    v_add_u32 v12, s51, v12
    s_lshl_b32 s50, s50, 6
    s_add_u32 s50, s50, {FLAG_OFF-G_OFF:#x}
    s_mov_b32 s53, 0x8000
    """)
    for i in range(64): pro += L(f"v_accvgpr_write_b32 a{i}, 0")
    T = 24
    sc = Sched(cap)
    for t in range(T):
        for nb in range(8):
            G = t * 8 + nb
            fb = 64 + (G % 8) * 8
            for mb in range(2):
                for s in range(2):
                    ac = (nb * 2 + mb) * 4
                    b = 64 + (t % S) * 16 + (s * 2 + mb) * 4
                    sc.mfma(f"{MF} a[{ac}:{ac+3}], v[{fb+s*4}:{fb+s*4+3}], a[{b}:{b+3}], a[{ac}:{ac+3}]")
    def rd(G):
        t, nb = divmod(G, 8)
        st = t % S
        fb = 64 + (G % 8) * 8
        b32, e = nb >> 1, nb & 1
        r = []
        for s in range(2):
            for rr in range(2):
                off = (st % 4) * 16384 + (b32 >> 1) * 8192 + (b32 & 1) * 512 + s * 4096 + rr * 2048
                va = 2 + e + (2 if st >= 4 else 0)
                r.append(Ins(f"ds_read_b64_tr_b16 v[{fb+s*4+rr*2}:{fb+s*4+rr*2+1}], v{va} offset:{off}", tag=("P", G), rd=(st*16384, st*16384+16384, t)))
        return r
    for t in range(-1, T):
        if t + 1 < T:
            sc.fixed_front(t * 32 + 32 - 4 * LA, [W(vm=("T", t + 1)), Ins("s_barrier")])
        for nb in range(0, 8, 2):
          if t >= 0:
              sc.fixed_back(t * 32 + nb * 4, W(lg=("P", t * 8 + nb + 1)))
    sc.fixed_front(0, Ins("L_k2_loop:")); sc.used[0] += 2
    for c in range(2):
        sc.fixed_front((c + 1) * 256, L("s_sub_u32 s44, s44, 1\ns_cbranch_scc0 L_k2_loop"))
    for G in range(0, T * 8):
        for i, x in enumerate(rd(G)):
            sc.flow("lds", 4 * (G - LA) + i, x, deadline=4 * (G - 2))
    for t in range(-1, T):
        if t + S - 1 < T:
            x = loads(t + S - 1)
            g0 = t * 32 + 32 - 4 * LA + 1
            order = [x[0], x[1], x[5], x[2], x[6], x[3], x[7], x[4], x[8], x[9], x[10]]
            pos = [0, 1, 4, 8, 12, 16, 20, 24, 27, 28, 29]
            for ins, pp in zip(order, pos):
                sc.flow("vm", g0 + pp, ins, mingap=(1 if ins is x[1] else 0))
    print("k2", sc.stats())
    body = sc.emit()
    full = resolve_waits(pro + body, drop=False)
    errs = check(full, "k2")
    assert not errs, "\n".join(errs[:20])
    npro = [i for i, x in enumerate(full) if x.text == "L_k2_loop:"][0] + 1
    body = [x for x in full[npro:] if x.kind != "comment"]
    cuts = [i for i, x in enumerate(body) if x.text.startswith("s_cbranch_scc0 L_k2_loop")]
    c0, c1, c2 = body[:cuts[0] + 1], body[cuts[0] + 1:cuts[1] + 1], body[cuts[1] + 1:]
    if [x.text for x in c0] != [x.text for x in c1]:
        import difflib
        print("\n".join(list(difflib.unified_diff([x.text for x in c0], [x.text for x in c1], lineterm="", n=2))[:60]))
        raise SystemExit("loop body mismatch")
    epi = []
    epi += stamp(2)
    epi += L("""
    s_cmp_lg_u32 s34, 0
    s_cbranch_scc1 L_k2_b
    """)
    for mb in range(2):
        for be in range(4):
            r = 128 + (mb * 4 + be) * 4
            epi += L(f"buffer_load_dwordx4 v[{r}:{r+3}], v11, s[16:19], {'0' if mb == 0 else 's53'} offen offset:{be*64}")
    epi += L("""
    v_mov_b32 v13, s50
    L_k2_poll:
    buffer_load_dword v14, v13, s[24:27], 0 offen sc1
    s_waitcnt vmcnt(0)
    v_readfirstlane_b32 s54, v14
    s_cmp_eq_u32 s54, 0
    s_cbranch_scc0 L_k2_go
    s_sleep 2
    s_branch L_k2_poll
    L_k2_go:
    """)
    epi += stamp(3)
    for j in range(8):
        epi += L(f"buffer_load_dwordx4 v[{160+j*4}:{163+j*4}], v12, s[24:27], 0 offen offset:{(j%4)*1024} sc1" if j < 4 else
                 f"buffer_load_dwordx4 v[{160+j*4}:{163+j*4}], v15, s[24:27], 0 offen offset:{(j%4)*1024} sc1")
        if j == 0: epi += L("v_add_u32 v15, 0x1000, v12")
    epi += L("s_mov_b32 s56, 0\ns_mov_b32 s57, -1\ns_mov_b32 s55, 0xffff0000\ns_mov_b64 exec, s[56:57]")
    for j in range(8):
        r = 128 + j * 4
        epi += L(f"v_swap_b32 v{r}, v{r+2}\nv_swap_b32 v{r+1}, v{r+3}")
    epi += L("s_mov_b64 exec, -1")
    for j in range(8):
        mb, be = divmod(j, 4)
        epi += L(f"s_waitcnt vmcnt({7-j})")
        tb = 16 + (j % 2) * 24
        for e in range(2):
            ac = ((be * 2 + e) * 2 + mb) * 4
            for i in range(4):
                epi += L(f"v_accvgpr_read_b32 v{tb+e*4+i}, a{ac+i}")
        for q in range(8):
            gs = 160 + j * 4 + q // 2; xs = 128 + j * 4 + q // 2
            epi += L(f"v_lshlrev_b32 v{tb+8+q}, 16, v{gs}\nv_lshlrev_b32 v{tb+16+q}, 16, v{xs}" if q % 2 == 0 else
                     f"v_and_b32 v{tb+8+q}, s55, v{gs}\nv_and_b32 v{tb+16+q}, s55, v{xs}")
        for q in range(8): epi += L(f"v_fmac_f32 v{tb+16+q}, v{tb+q}, v{tb+8+q}")
        r = 128 + j * 4
        for q in range(4): epi += L(f"v_cvt_pk_bf16_f32 v{r+q}, v{tb+16+2*q}, v{tb+17+2*q}")
        epi += L(f"s_mov_b64 exec, s[56:57]\nv_swap_b32 v{r}, v{r+2}\nv_swap_b32 v{r+1}, v{r+3}\ns_mov_b64 exec, -1")
        epi += L(f"buffer_store_dwordx4 v[{r}:{r+3}], v11, s[20:23], {'0' if mb == 0 else 's53'} offen offset:{be*64}")
    epi += L("s_waitcnt vmcnt(0)") * STAMP + stamp(4) + stamp_store(5, 28, 1)
    epi += L("s_endpgm\nL_k2_b:\ns_mov_b32 s55, 0xbfb8aa3b\nv_add_u32 v15, 0x1000, v12")
    for j in range(8):
        mb, be = divmod(j, 4)
        tb = 16 + (j % 2) * 24
        for e in range(2):
            ac = ((be * 2 + e) * 2 + mb) * 4
            for i in range(4):
                epi += L(f"v_accvgpr_read_b32 v{tb+e*4+i}, a{ac+i}")
        for q in range(8): epi += L(f"v_mul_f32 v{tb+8+q}, s55, v{tb+q}")
        for q in range(8): epi += L(f"v_exp_f32 v{tb+8+q}, v{tb+8+q}")
        for q in range(8): epi += L(f"v_add_f32 v{tb+8+q}, 1.0, v{tb+8+q}")
        for q in range(8): epi += L(f"v_rcp_f32 v{tb+8+q}, v{tb+8+q}")
        for q in range(8): epi += L(f"v_mul_f32 v{tb+q}, v{tb+q}, v{tb+8+q}")
        r = 160 + j * 4
        for q in range(4): epi += L(f"v_cvt_pk_bf16_f32 v{r+q}, v{tb+2*q}, v{tb+1+2*q}")
        epi += L(f"buffer_store_dwordx4 v[{r}:{r+3}], v{12 if j < 4 else 15}, s[24:27], 0 offen offset:{(j%4)*1024} sc1")
    epi += stamp(3) + L("s_waitcnt vmcnt(0)") + stamp(4) + stamp_store(5, 28, 1)
    epi += L("""
    s_waitcnt vmcnt(0)
    s_barrier
    s_cmp_lg_u32 s33, 0
    s_cbranch_scc1 L_k2_end
    v_mov_b32 v13, s50
    v_mov_b32 v14, 1
    s_mov_b64 exec, 1
    buffer_store_dword v14, v13, s[24:27], 0 offen sc1
    L_k2_end:
    s_endpgm
    """)
    ib = [i for i, x in enumerate(epi) if x.text == "L_k2_b:"][0]
    for nm, e in (("s", epi[:ib]), ("b", epi[ib:])):
        errs = check(full + [Ins("s_nop 7")] + e, "k2epi" + nm)
        assert not errs, "\n".join(errs[:20])
    def keep(x):
        if 'D' in abl and x.kind == 'vmem' and ' lds' in x.text: return False
        if 'B' in abl and x.kind == 'vmem' and ' lds' not in x.text: return False
        if 'R' in abl and x.kind == 'lds': return False
        if 'M' in abl and x.kind == 'mfma': return False
        if 'S' in abl and x.kind == 'barrier': return False
        return True
    c1 = [x for x in c1 if keep(x)]; c2 = [x for x in c2 if keep(x)]
    for fl, key in ((" nt", "n"), (" sc1", "c"), (" sc0", "o")):
        if key in abl:
            for x in c1 + c2:
                if x.kind == "vmem":
                    x.text = x.text.replace(" lds", fl + " lds") if " lds" in x.text else x.text + fl
    prog = full[:npro-1] + stamp(1) + full[npro-1:npro] + c1 + c2 + [Ins("s_nop 7")] + epi
    return dict(name="k2_kernel", body=text(prog), grid=256, block=256, lds=131072, vgpr=512, accum=256, sgpr=102)

if __name__ == "__main__":
    STAMP = "stamp" in sys.argv
    ks = []
    ks.append(gen_ln())
    ks.append(gen_k2())
    open("t_k2.s", "w").write(build_file(ks))
    for abl in ("n","c","o","nc","oc"):
        open(f"t_k2_{abl}.s", "w").write(build_file([gen_ln(), gen_k2(abl=abl)]))
```

```python
import re
from collections import defaultdict

TRANS = ("v_exp_", "v_rcp_", "v_rsq_", "v_sqrt_", "v_log_", "v_sin_", "v_cos_")

class Ins:
    __slots__ = ("text", "kind", "cost", "tag", "lg", "vm", "rd", "wr", "label")
    def __init__(self, text, tag=None, rd=None, wr=None, lg=None, vm=None):
        self.text = text.strip()
        self.tag = tag; self.rd = rd; self.wr = wr; self.lg = lg; self.vm = vm
        t = self.text
        self.label = t.endswith(":")
        if self.label: k = "label"
        elif t.startswith("v_mfma"): k = "mfma"
        elif t.startswith(TRANS): k = "trans"
        elif t.startswith("v_"): k = "valu"
        elif t.startswith("ds_"): k = "lds"
        elif t.startswith(("buffer_", "global_")): k = "vmem"
        elif t.startswith("WAIT") or t.startswith("s_waitcnt"): k = "wait"
        elif t.startswith("s_barrier"): k = "barrier"
        elif t.startswith("s_nop"): k = "nop"
        elif t.startswith(("s_load", "s_memtime", "s_memrealtime", "s_atomic")): k = "smem"
        elif t.startswith(";"): k = "comment"
        else: k = "salu"
        self.kind = k
        self.cost = 2 if k == "trans" else (0 if k in ("label", "comment") else 1)
    def copy(self):
        n = Ins(self.text, self.tag, self.rd, self.wr, self.lg, self.vm); return n

def W(lg=None, vm=None):
    return Ins("WAIT", lg=lg, vm=vm)

def L(text, **kw):
    return [Ins(l, **kw) for l in text.strip().split("\n") if l.strip()]

class Sched:
    def __init__(self, cap=2):
        self.cap = cap
        self.mf = []
        self.front = defaultdict(list); self.mid = defaultdict(list); self.back = defaultdict(list)
        self.used = defaultdict(int)
        self.qpos = {}
    def mfma(self, text):
        self.mf.append(Ins(text)); return len(self.mf) - 1
    def fixed_front(self, idx, ins):
        for x in (ins if isinstance(ins, list) else [ins]):
            self.front[idx].append(x); self.used[idx] += x.cost
    def fixed_back(self, idx, ins):
        for x in (ins if isinstance(ins, list) else [ins]):
            self.back[idx].append(x); self.used[idx] += x.cost
    def flow(self, q, idx, ins, deadline=None, mingap=0):
        g = max(idx, self.qpos.get(q, -10**9) + mingap)
        while self.used[g] + ins.cost > self.cap:
            if deadline is not None and g >= deadline: break
            if g >= len(self.mf): break
            g += 1
        if deadline is not None and g > deadline:
            raise RuntimeError(f"deadline miss q={q} idx={idx} g={g} dl={deadline} {ins.text}")
        self.mid[g].append(ins); self.used[g] += ins.cost; self.qpos[q] = g
        return g
    def emit(self):
        out = []
        n = len(self.mf)
        mx = max([n] + list(self.front) + list(self.mid) + list(self.back))
        mn = min([0] + list(self.front) + list(self.mid) + list(self.back))
        for i in range(mn, mx + 1):
            out += self.front[i] + self.mid[i] + self.back[i]
            if i == 0: out.append(Ins('; @MFMA0'))
            if 0 <= i < n: out.append(self.mf[i])
        return out
    def stats(self):
        n = len(self.mf)
        over = sum(max(0, self.used[i] - self.cap) for i in range(n + 1))
        tot = sum(self.used[i] for i in range(n + 1))
        where = [(i, self.used[i]) for i in range(n + 1) if self.used[i] > self.cap]
        return f"mfma={n} fill={tot} over={over} where={where[:60]}"

def fix_m0(trace):
    out = []
    for x in trace:
        if x.kind == "vmem" and " lds" in x.text:
            prev = [y for y in out[-3:] if y.kind not in ("comment", "label")]
            if prev and prev[-1].kind == "salu" and "m0" in prev[-1].text.split(",")[0]: out.append(Ins("s_nop 0"))
        out.append(x)
    return out

def resolve_waits(trace, drop=True):
    out = []
    lg = []; vm = []
    lgdone = 0; vmdone = 0
    for x in trace:
        if x.kind == "lds": lg.append(x.tag)
        elif x.kind == "vmem": vm.append(x.tag)
        elif x.kind == "smem": lg.append("__smem")
        if x.kind == "wait":
            if x.text == "WAIT":
                parts = []
                for (tag, lst, done, nm, mx) in ((x.vm, vm, vmdone, "vmcnt", 63), (x.lg, lg, lgdone, "lgkmcnt", 15)):
                    if tag is None: continue
                    if tag == "all": idx = len(lst) - 1
                    else:
                        idxs = [i for i, t in enumerate(lst) if t == tag]
                        if not idxs: raise RuntimeError(f"wait on unissued tag {tag}")
                        idx = idxs[-1]
                    n = len(lst) - 1 - idx
                    if nm == "lgkmcnt" and "__smem" in lst[done:]: n = 0
                    n = min(n, mx)
                    if drop and idx < done: continue
                    parts.append(f"{nm}({n})")
                    if nm == "vmcnt": vmdone = max(vmdone, len(lst) - n)
                    else: lgdone = max(lgdone, len(lst) - n)
                y = Ins("s_waitcnt " + " ".join(parts)) if parts else Ins("; (wait dropped)")
                out.append(y); continue
            else:
                m = re.search(r"vmcnt\((\d+)\)", x.text)
                if m: vmdone = max(vmdone, len(vm) - int(m.group(1)))
                m = re.search(r"lgkmcnt\((\d+)\)", x.text)
                if m: lgdone = max(lgdone, len(lg) - int(m.group(1)))
        out.append(x)
    return out

_reg = re.compile(r"\b([vas])(\d+)\b|\b([vas])\[(\d+):(\d+)\]|\b(vcc|exec|m0|scc)\b")
def regs(op):
    r = []
    for m in _reg.finditer(op):
        if m.group(1): r.append(m.group(1) + m.group(2))
        elif m.group(3): r += [m.group(3) + str(i) for i in range(int(m.group(4)), int(m.group(5)) + 1)]
        else: r.append(m.group(6))
    return r

def rw(x):
    t = x.text.split(";")[0]
    mn, _, rest = t.partition(" ")
    ops = [o.strip() for o in re.split(r",(?![^\[]*\])", rest)] if rest.strip() else []
    R = []; Wr = []
    k = x.kind
    if k == "mfma":
        Wr = regs(ops[0]); R = regs(ops[1]) + regs(ops[2]) + regs(ops[3])
    elif k == "lds":
        if mn.startswith(("ds_read", "ds_bpermute", "ds_swizzle", "ds_permute")): Wr = regs(ops[0]); R = sum((regs(o) for o in ops[1:]), [])
        else: R = sum((regs(o) for o in ops), [])
    elif k == "vmem":
        if mn in ("buffer_inv", "buffer_wbl2"): pass
        elif " lds" in t: R = sum((regs(o) for o in ops), []) + ["m0"]
        elif "load" in mn: Wr = regs(ops[0]); R = sum((regs(o) for o in ops[1:]), [])
        elif "atomic" in mn and " sc0" in t: R = sum((regs(o) for o in ops), []); Wr = regs(ops[0])
        else: R = sum((regs(o) for o in ops), [])
    elif k in ("valu", "trans"):
        if mn.startswith(("v_swap", "v_permlane")): R = regs(ops[0]) + regs(ops[1]); Wr = list(R)
        elif mn.startswith("v_nop"): pass
        else:
            Wr = regs(ops[0]); R = sum((regs(o) for o in ops[1:]), [])
            if mn.startswith(("v_fmac", "v_dot2c", "v_writelane")) or "_dpp" in mn: R += Wr
            if mn.startswith(("v_add_co", "v_addc_co", "v_sub_co")): Wr += regs(ops[1])
            if mn.startswith("v_cndmask") and len(ops) == 3: R.append("vcc")
    elif k in ("salu", "smem"):
        if mn.startswith(("s_cmp", "s_cbranch", "s_branch", "s_endpgm", "s_setprio", "s_sleep", "s_bitcmp")): R = sum((regs(o) for o in ops), [])
        elif ops: Wr = regs(ops[0]); R = sum((regs(o) for o in ops[1:]), [])
    return R, Wr

def check(trace, name="", passes=4):
    errs = []
    DL = {4: (8, 6, 3), 8: (12, 10, 7)}
    pend = {}
    cnt = {"lg": 0, "vm": 0}; done = {"lg": 0, "vm": 0}
    pos = 0
    last_valu_w = {}; last_trans_w = {}; last_mfma_w = {}; last_mfma_c = {}; last_store = {}; last_salu_w = {}; last_valu_sw = {}
    reads = []
    dmas = defaultdict(list)
    bar_lg = 0; bar_vm = 0
    smem_out = False
    for n, x in enumerate(trace):
        if x.kind in ("label", "comment"): continue
        def err(m): errs.append(f"[{name}] #{n} '{x.text}': {m}")
        if x.kind == "wait":
            m = re.search(r"vmcnt\((\d+)\)", x.text)
            if m: done["vm"] = max(done["vm"], cnt["vm"] - int(m.group(1)))
            m = re.search(r"lgkmcnt\((\d+)\)", x.text)
            if m:
                v = int(m.group(1))
                if v == 0: smem_out = False
                if not smem_out: done["lg"] = max(done["lg"], cnt["lg"] - v)
            pos += 1; continue
        if x.kind == "barrier":
            bar_lg = done["lg"]; bar_vm = done["vm"]; pos += 1; continue
        if x.kind == "nop":
            pos += int(x.text.split()[1]) + 1; continue
        R, Wr = rw(x)
        mn = x.text.split()[0]
        for r in R + Wr:
            if r in pend:
                c, i = pend[r]
                if i >= done[c]: err(f"reg {r} has pending {c} load #{i} (done {done[c]})")
                else: del pend[r]
        def dist(d, r): return pos - d[r] - 1 if r in d else 99
        if x.kind == "mfma":
            ops = [o.strip() for o in re.split(r",(?![^\[]*\])", x.text.partition(" ")[2])]
            D = regs(ops[0]); A = regs(ops[1]) + regs(ops[2]); C = regs(ops[3])
            for r in A + C:
                if dist(last_valu_w, r) < 2: err(f"VALU->MFMA {r} dist {dist(last_valu_w, r)}")
            for r in A:
                if r in last_mfma_w and pos - last_mfma_w[r][0] - 1 < DL[last_mfma_w[r][2]][0]: err(f"MFMA D->A/B {r}")
            for r in C:
                if r in last_mfma_w and last_mfma_w[r][1] != tuple(C) and pos - last_mfma_w[r][0] - 1 < DL[last_mfma_w[r][2]][1]: err(f"MFMA D->C overlap {r}")
            p = 8 if "32x32" in mn else 4
            for r in D:
                last_mfma_w[r] = (pos, tuple(D), p)
            for r in C: last_mfma_c[r] = (pos, p)
        else:
            if x.kind in ("valu", "trans", "vmem", "lds"):
                for r in R + Wr:
                    if r in last_mfma_w and pos - last_mfma_w[r][0] - 1 < DL[last_mfma_w[r][2]][0]: err(f"MFMA D->use {r} dist {pos - last_mfma_w[r][0] - 1}")
            if x.kind in ("valu", "trans"):
                for r in Wr:
                    if r in last_mfma_c and pos - last_mfma_c[r][0] - 1 < DL[last_mfma_c[r][1]][2]: err(f"MFMA C WAR {r}")
                    if dist(last_store, r) < 2: err(f"store data WAR {r}")
                if x.kind == "valu":
                    for r in R:
                        if dist(last_trans_w, r) < 1: err(f"trans->valu {r}")
                for r in R:
                    if r[0] in "s" and r[1:].isdigit() or r == "vcc":
                        if dist(last_valu_sw, r) < 2: err(f"VALU sgpr->VALU const {r}")
                if mn.startswith(("v_readlane", "v_readfirstlane")):
                    for r in R:
                        if dist(last_valu_w, r) < 1: err(f"VALU->readlane {r}")
                if mn.startswith("v_permlane") or "_dpp" in mn:
                    for r in R:
                        if dist(last_valu_w, r) < 2: err(f"VALU->permlane/dpp {r}")
            if x.kind == "vmem":
                for r in R:
                    if dist(last_valu_sw, r) < 5: err(f"VALU sgpr->VMEM {r}")
                if " lds" in x.text and dist(last_salu_w, "m0") < 1: err("m0->lds dma")
            if x.kind in ("vmem", "lds"):
                for r in Wr:
                    if dist(last_store, r) < 1: err(f"store data WAR(load) {r}")
        if x.kind == "lds":
            if x.rd:
                lo, hi, gen = x.rd
                if gen is not None:
                    if gen not in dmas: err(f"read of gen {gen} w/o dma")
                    elif max(dmas[gen]) >= bar_vm: err(f"read of gen {gen} not covered by vmcnt+barrier (dma {max(dmas[gen])} bar_vm {bar_vm})")
                reads.append((lo, hi, gen, cnt["lg"]))
            for r in Wr: pend[r] = ("lg", cnt["lg"])
            cnt["lg"] += 1
        elif x.kind == "smem":
            for r in Wr: pend[r] = ("lg", cnt["lg"])
            cnt["lg"] += 1; smem_out = True
        elif x.kind == "vmem":
            if x.wr:
                lo, hi, gen = x.wr
                for (l2, h2, g2, li) in reads:
                    if g2 != gen and l2 < hi and lo < h2 and li >= bar_lg: err(f"DMA gen {gen} overwrites region read (gen {g2}) not retired before barrier"); break
                for g2, rng in getattr(check, "_rng", {}).items(): pass
                dmas[gen].append(cnt["vm"])
            for r in Wr: pend[r] = ("vm", cnt["vm"])
            if "store" in mn and ("x4" in mn or "x3" in mn):
                for r in regs(x.text.partition(" ")[2].split(",")[0] if mn.startswith("buffer") else x.text.split(",")[1]): last_store[r] = pos
            cnt["vm"] += 1
        if x.kind in ("valu", "trans"):
            for r in Wr:
                if r[0] in "va" and r[1:].isdigit(): last_valu_w[r] = pos
                else: last_valu_sw[r] = pos
                if x.kind == "trans": last_trans_w[r] = pos
                elif r in last_trans_w: del last_trans_w[r]
        if x.kind == "salu":
            for r in Wr: last_salu_w[r] = pos
        pos += 1
    return errs

def text(trace):
    return "\n".join((x.text if x.label else "  " + x.text) for x in trace if not (x.kind == "comment" and "dropped" in x.text)) + "\n"
```

```python
from gen import *
import gen
STG = 45056
SLOTS = [135168, 45056, 61440, 90112, 106496, 0, 16384]
QSCALE = 0x3e0293ee
import struct, math
QSCALE = struct.unpack("<I", struct.pack("<f", math.log2(math.e) / math.sqrt(128.0)))[0]

def gen_k1(LA=2, dbg=""):
    pro = []
    pro += L("""
    s_cmp_ge_u32 s2, 256
    s_cbranch_scc1 L_k1_end
    s_load_dwordx4 s[48:51], s[0:1], 8      ; K, V
    s_load_dwordx2 s[52:53], s[0:1], 24     ; Wq
    s_load_dwordx4 s[56:59], s[0:1], 48
    s_load_dwordx2 s[60:61], s[0:1], 88     ; ws
    """)
    pro += stamp(0)
    pro += lane_consts()
    pro += L("""
    s_lshr_b32 s34, s2, 3
    s_and_b32 s35, s2, 1
    s_lshl_b32 s35, s35, 2
    s_and_b32 s32, s34, 3
    s_add_u32 s32, s32, s35           ; rb
    s_bfe_u32 s35, s2, 0x20001
    s_lshr_b32 s34, s34, 2
    s_lshl_b32 s62, s35, 3
    s_add_u32 s34, s34, s62           ; j
    s_lshl_b32 s62, s34, 8
    """)
    pro += wdma_addr(7, 8192, "s62", t0=32, st=63)
    pro += L(f"""
    s_lshr_b32 s62, s34, 1
    s_mul_i32 s62, s62, 448
    s_and_b32 s63, s34, 1
    s_lshl_b32 s3, s63, 8
    s_add_u32 s3, s3, s62             ; colP
    s_lshl_b32 s4, s63, 5
    s_add_u32 s4, s4, s62
    s_add_u32 s4, s4, 192             ; colX
    ; main: k = 16w + 8(l>>5) + ((l>>2)&7) ; c16 = (l&3) ^ (2*((l>>4)&1))
    v_lshrrev_b32 v32, 5, v1
    v_lshlrev_b32 v32, 3, v32
    v_bfe_u32 v33, v1, 2, 3
    v_add_u32 v32, v32, v33
    s_lshl_b32 s62, s33, 4
    v_add_u32 v32, s62, v32
    s_movk_i32 s62, 7168
    v_mul_lo_u32 v11, v32, s62
    v_bfe_u32 v32, v1, 4, 1
    v_lshlrev_b32 v32, 1, v32
    v_and_b32 v33, 3, v1
    v_xor_b32 v32, v32, v33
    v_lshl_add_u32 v11, v32, 4, v11
    s_add_u32 s3, s3, 4096
    v_add_u32 v11, s3, v11
    v_subrev_u32 v12, 960, v11
    v_subrev_u32 v13, 1920, v11
    v_lshrrev_b32 v32, 1, v1
    s_and_b32 s63, s33, 1
    s_lshl_b32 s63, s63, 5
    v_add_u32 v32, s63, v32
    v_mul_lo_u32 v14, v32, s62
    v_and_b32 v33, 1, v1
    v_lshl_add_u32 v14, v33, 4, v14
    s_add_u32 s4, s4, 4096
    v_add_u32 v14, s4, v14
    s_lshl_b32 s62, s32, 2
    s_add_u32 s62, s62, s33
    s_lshl_b32 s63, s62, 17
    v_lshlrev_b32 v15, 4, v1
    v_add_u32 v15, s63, v15
    v_add_u32 v16, 0x1000, v15
    s_lshl_b32 s5, s33, 12            ; w*4096
    s_mul_i32 s6, s33, 3072
    s_lshl_b32 s7, s33, 10
    s_waitcnt lgkmcnt(0)
    """)
    pro += srd(8, 52, 53, 8 << 20) + srd(12, 56, 57, (7 << 20) + 4096, -4096) + srd(16, 58, 59, (7 << 20) + 4096, -4096)
    pro += L("""
    s_cmp_lt_u32 s33, 2
    s_cselect_b32 s20, s12, s16
    s_cselect_b32 s21, s13, s17
    """) + L(f"s_mov_b32 s22, {(7<<20)+4096:#x}\ns_mov_b32 s23, 0x20000")
    pro += srd(24, 60, 61, 4 << 20, XN_OFF)
    pro += L("s_mov_b32 s52, 0\ns_mov_b32 s53, 0\ns_mov_b32 s54, 0")
    def wloads(t):
        sb = (t % 3) * STG
        reg = (sb, sb + STG, ("G", t)); tag = ("W", t)
        r = [Ins(f"s_add_u32 m0, s5, {sb:#x}")]
        r += [Ins(f"buffer_load_dwordx4 v{7+z}, s[8:11], s52 offen offset:{z*1024} lds", tag=tag, wr=reg) for z in range(4)]
        r += [Ins(f"s_add_u32 m0, s6, {sb+16384:#x}")]
        r += [Ins(f"buffer_load_dwordx4 v{11+z}, s[12:15], s53 offen offset:{z*1024} lds", tag=tag, wr=reg) for z in range(3)]
        r += [Ins(f"s_add_u32 m0, s6, {sb+28672:#x}")]
        r += [Ins(f"buffer_load_dwordx4 v{11+z}, s[16:19], s53 offen offset:{z*1024} lds", tag=tag, wr=reg) for z in range(3)]
        r += [Ins(f"s_add_u32 m0, s7, {sb+40960:#x}")]
        r += [Ins(f"buffer_load_dwordx4 v14, s[20:23], s53 offen lds", tag=tag, wr=reg)]
        r += [Ins("s_add_u32 s52, s52, 0x80000"), Ins("s_add_u32 s53, s53, 0x70000")]
        return r
    def breg(t, s, mb):
        k = (s * 4 + mb) * 4
        return f"v[{64+k}:{67+k}]" if t % 2 == 0 else f"a[{224+k}:{227+k}]"
    def xloads(t):
        r = [Ins(f"buffer_load_dwordx4 {breg(t, s, mb)}, v{15+s}, s[24:27], s54 offen offset:{mb*1024}", tag=("X", t)) for s in range(2) for mb in range(4)]
        r += [Ins("s_add_u32 s54, s54, 0x2000")]
        return r
    def pad_m0(lst):
        out = []
        for x in lst:
            out.append(x)
            if "m0" in x.text.split(",")[0]: out.append(Ins("s_nop 0"))
        return out
    pro += pad_m0(wloads(0)) + xloads(0) + pad_m0(wloads(1))
    pro += tr_addr(2, 0, True, 1024, 32) + tr_addr(3, 1, True, 1024, 32) + tr_addr(4, 0, False, 512, 32) + tr_addr(5, 1, False, 512, 32)
    pro += L("v_lshlrev_b32 v6, 3, v1")
    pro += L(f"""
    s_lshl_b32 s62, s35, 19
    s_add_u32 s62, s62, {1536*256:#x}
    s_add_u32 s28, s48, s62
    s_addc_u32 s29, s49, 0
    s_mov_b32 s30, 0x20000
    s_mov_b32 s31, 0x20000
    s_add_u32 s36, s50, s62
    s_addc_u32 s37, s51, 0
    s_mov_b32 s38, 0x20000
    s_mov_b32 s39, 0x20000
    """)
    pro += srd(40, 60, 61, 16 << 20, O_OFF) + srd(44, 60, 61, 14 << 20, H_OFF)
    pro += L("""
    v_lshrrev_b32 v32, 4, v1
    v_and_b32 v33, 15, v1
    v_lshl_add_u32 v34, v32, 8, s5
    """)
    for z in range(4):
        pro += L(f"v_add_u32 v35, {4*z}, v32\nv_xor_b32 v35, v35, v33\nv_lshl_add_u32 v{17+z}, v35, 4, v34")
    pro += wdma_addr(21, 256, "0", t0=36, st=63)
    for b in range(4):
        pro += L(f"v_add_u32 v35, {4*b}, v32\nv_xor_b32 v35, v35, v33\nv_lshlrev_b32 v35, 4, v35\nv_lshl_add_u32 v{25+b}, v33, 8, v35")
    pro += tr_addr(29, 0, False, 1024, 32) + tr_addr(30, 1, False, 1024, 32)
    pro += L("s_mov_b32 s55, 0")
    def kvloads(i):
        sb = SLOTS[i % 7]; reg = (sb, sb + 16384, ("KV", i)); tag = ("KV", i)
        r = [Ins(f"s_add_u32 m0, s5, {sb:#x}")]
        for z in range(4):
            r.append(Ins(f"buffer_load_dwordx4 v{(21 if i % 2 else 17)+z}, s[{36 if i % 2 else 28}:{39 if i % 2 else 31}], s55 offen offset:{z*1024} lds", tag=tag, wr=reg))
        if i % 2: r.append(Ins("s_add_u32 s55, s55, 0x4000"))
        return r
    blocks = []
    for p in range(3):
        for e in range(2):
            for m in range(2):
                bi = (p * 2 + e) * 2 + m
                blocks.append((4 + e, (lambda s, r, p=p, m=m: 16384 + m * 12288 + (2 * s + r) * 3072 + p * 1024), "a", bi * 16))
    for m in range(2):
        blocks.append((6, (lambda s, r, m=m: 40960 + m * 2048 + s * 1024 + r * 512), "a", (12 + m) * 16))
    for nb in range(8):
        b32, e = nb >> 1, nb & 1
        blocks.append((2 + e, (lambda s, r, b32=b32: (b32 >> 1) * 8192 + (b32 & 1) * 512 + s * 4096 + r * 2048), "v", 128 + nb * 16))
    NB = len(blocks); T = 16; TM = NB * 8
    sc = Sched(2)
    for t in range(T):
        for nb, (va, imm, ak, ab) in enumerate(blocks):
            G = t * NB + nb; fb = 32 + (G % 4) * 8
            for mb in range(4):
                for s in range(2):
                    ac = f"{ak}[{ab+mb*4}:{ab+mb*4+3}]"
                    sc.mfma(f"{MF} {ac}, v[{fb+s*4}:{fb+s*4+3}], {breg(t, s, mb)}, {'0' if (t == 0 and s == 0) else ac}")
    def rd(G):
        t, nb = divmod(G, NB); va, imm, _, _ = blocks[nb]; fb = 32 + (G % 4) * 8; sb = (t % 3) * STG
        return [Ins(f"ds_read_b64_tr_b16 v[{fb+s*4+r*2}:{fb+s*4+r*2+1}], v{va} offset:{imm(s, r)}", tag=("P", G), rd=(sb, sb + STG, ("G", t))) for s in range(2) for r in range(2)]
    for t in range(-1, T):
        bg = (t + 1) * TM - 8 * LA
        if t + 1 < T:
            fx = [W(vm=("W", t + 1)), Ins("s_barrier")]
            sc.fixed_front(bg, fx)
        else:
            sc.fixed_front(bg, [Ins("s_barrier")])
        if t >= 0:
            sc.fixed_back(t * TM, W(vm=("X", t)))
            for nb in range(NB): sc.fixed_back(t * TM + nb * 8, W(lg=("P", t * NB + nb)))
    for G in range(T * NB):
        t, nb = divmod(G, NB)
        if nb == 0 and t > 0:
            d = STG if t % 3 else -2 * STG
            for va in range(2, 7):
                sc.flow("lds", 8 * (G - LA) - 3, Ins(f"v_add_u32 v{va}, {d:#x}, v{va}" if d > 0 else f"v_subrev_u32 v{va}, {-d:#x}, v{va}"))
        for i, x in enumerate(rd(G)):
            sc.flow("lds", 8 * (G - LA) + i, x, deadline=8 * (G - 1) + 2)
    for t in range(-1, T):
        bg = (t + 1) * TM - 8 * LA
        items = []
        if t >= 0 and t + 2 < T: items += wloads(t + 2)
        if t == 12: items += kvloads(0)
        if t == 14: items += kvloads(1) + kvloads(2)
        g = bg + 1
        for x in items:
            g = sc.flow("vm", g, x, mingap=1) + (2 if x.kind == "vmem" else 0)
        if t + 2 < T + 0 and t + 2 >= 1:
            g = max(g, (t + 1) * TM + 1)
            for x in xloads(t + 2): g = sc.flow("vm", g, x, mingap=1) + (2 if x.kind == "vmem" else 0)
    print("k1 G", sc.stats())
    G_ = sc.emit()
    mid = stamp(1) + L("s_nop 7")
    mid += L(f"""
    s_lshl_b32 s62, s32, 3
    s_lshl_b32 s63, s33, 1
    s_add_u32 s62, s62, s63
    s_mul_i32 s63, s62, {112*2048}
    s_lshr_b32 s3, s34, 1
    s_mul_i32 s3, s3, 7               ; 7q
    s_and_b32 s4, s34, 1
    s_lshl_b32 s52, s4, 2
    s_add_u32 s52, s52, s3            ; ksP
    s_lshl_b32 s52, s52, 11
    s_add_u32 s52, s52, s63
    s_add_u32 s3, s3, 3
    s_lshl_b32 s3, s3, 11
    s_add_u32 s3, s3, s63
    s_lshl_b32 s4, s4, 3
    s_add_u32 s3, s3, s4
    v_lshlrev_b32 v32, 4, v1
    v_add_u32 v33, s3, v32
    v_add_u32 v32, s52, v32
    s_mov_b32 s52, 0
    s_mov_b32 s53, 2048
    s_mov_b32 s54, {112*2048}
    s_mov_b32 s3, {112*2048+2048}
    s_lshl_b32 s62, s62, 18
    s_lshl_b32 s63, s34, 13
    s_add_u32 s62, s62, s63
    v_lshlrev_b32 v31, 4, v1
    v_add_u32 v31, s62, v31
    """)
    k = 0
    for mb in range(4):
        for p in range(4):
            tb = 96 + (k % 2) * 16; ob = 40 + (k % 4) * 4; k += 1
            ne = 2 if p < 3 else 1
            for e in range(ne):
                bi = (p * 2 + e) * 2 if p < 3 else 12
                for i in range(4):
                    mid += L(f"v_accvgpr_read_b32 v{tb+e*4+i}, a{bi*16+mb*4+i}\nv_accvgpr_read_b32 v{tb+8+e*4+i}, a{(bi+1)*16+mb*4+i}")
            for q in range(4 * ne): mid += L(f"v_mul_f32 v{tb+q}, v{tb+q}, v{tb+8+q}")
            for q in range(2 * ne): mid += L(f"v_cvt_pk_bf16_f32 v{ob+q}, v{tb+2*q}, v{tb+2*q+1}")
            if p < 3:
                so = ["s52", "s53", "s54", "s3"][(mb >> 1) * 2 + (p >> 1)]
                mid += L(f"buffer_store_dwordx4 v[{ob}:{ob+3}], v32, s[44:47], {so} offen offset:{(p&1)*2048+(mb&1)*1024}")
            else:
                mid += L(f"buffer_store_dwordx2 v[{ob}:{ob+1}], v33, s[44:47], {'s54' if mb >> 1 else 's52'} offen offset:{(mb&1)*1024}")
    mid = [Ins(x.text.replace("s_mov_b32 s53, 2048", "s_mov_b32 s53, 4096").replace(f"s_mov_b32 s3, {112*2048+2048}", f"s_mov_b32 s3, {112*2048+4096}")) if x.kind == "salu" else x for x in mid]
    mid += L(f"s_mov_b32 s62, {QSCALE:#x}\ns_mov_b32 s63, s62\ns_mov_b32 s56, 0\ns_mov_b32 s57, -1")
    for qb in range(4):
        for be in range(4):
            for e in range(2):
                src = 128 + (be * 2 + e) * 16 + qb * 4
                mid += L(f"v_pk_mul_f32 v[{src}:{src+1}], v[{src}:{src+1}], s[62:63]\nv_pk_mul_f32 v[{src+2}:{src+3}], v[{src+2}:{src+3}], s[62:63]")
            for e in range(2):
                src = 128 + (be * 2 + e) * 16 + qb * 4; d = 64 + (qb * 4 + be) * 4 + e * 2
                mid += L(f"v_cvt_pk_bf16_f32 v{d}, v{src}, v{src+1}\nv_cvt_pk_bf16_f32 v{d+1}, v{src+2}, v{src+3}")
    mid += L("s_mov_b64 exec, s[56:57]")
    for f in range(16): mid += L(f"v_swap_b32 v{64+f*4}, v{66+f*4}\nv_swap_b32 v{65+f*4}, v{67+f*4}")
    mid += L("s_mov_b64 exec, -1")
    mid += L("""
    v_and_b32 v244, 3, v1
    v_cmp_eq_u32 vcc, 0, v244
    v_mov_b32 v245, 0x3f803f80
    s_nop 0
    v_cndmask_b32 v208, 0, v245, vcc
    v_cndmask_b32 v209, 0, v245, vcc
    v_cndmask_b32 v210, 0, v245, vcc
    v_cndmask_b32 v211, 0, v245, vcc
    """)
    mid += stamp(2)
    at = Sched(2)
    qk0 = {}; pv0 = {}
    def kfb(u, kb, be):
        f = (144 if u % 2 else 212) + (kb * 4 + be) * 4
        return f"{'a' if u % 2 else 'v'}[{f}:{f+3}]"
    def QK(u):
        qk0[u] = len(at.mf)
        sbuf = 128 + (u % 2) * 32
        for qb in range(4):
            for kb in range(2):
                d = sbuf + (qb * 2 + kb) * 4
                for be in range(4):
                    c = f"v[{d}:{d+3}]" if be else ("0" if u == 0 else f"v[{192+qb*4}:{195+qb*4}]")
                    f = kfb(u, kb, be); q = 64 + (qb * 4 + be) * 4
                    at.mfma(f"{MF} v[{d}:{d+3}], {f}, v[{q}:{q+3}], {c}")
    def PV(u):
        pv0[u] = len(at.mf)
        sbuf = 128 + (u % 2) * 32
        for db in range(9):
            for qb in range(4):
                ac = (db * 4 + qb) * 4; pf = sbuf + qb * 8
                a = f"v[{32+((u*8+db)%8)*4}:{35+((u*8+db)%8)*4}]" if db < 8 else "v[208:211]"
                at.mfma(f"{MF} a[{ac}:{ac+3}], {a}, v[{pf}:{pf+3}], {'0' if u == 0 else f'a[{ac}:{ac+3}]'}")
    QK(0); QK(1)
    for u in range(14): PV(u); QK(u + 2)
    PV(14); PV(15)
    NU = 16
    VLA = 12
    at.fixed_front(-10, [W(vm=("KV", 0)), Ins("s_barrier")])
    bpos = {}
    for tau in range(8):
        bpos[tau] = pv0[2 * tau] - VLA - 1
        at.fixed_front(bpos[tau], [W(vm=("KV", min(2 * tau + 2, 15))), Ins("s_barrier")])
    for u in range(NU):
        at.fixed_back(qk0[u], W(lg=("K", u, 0)))
        at.fixed_back(qk0[u] + 4, W(lg=("K", u, 1)))
        for db in range(0, 8, 2): at.fixed_back(pv0[u] + db * 4, W(lg=("V", u, db + 1)))
    ev = []
    kcur = [0]; vcur = [0]
    def addr_upd(regs_, cur, new):
        d = new - cur[0]; cur[0] = new
        return [Ins(f"v_add_u32 v{r}, {d:#x}, v{r}" if d > 0 else f"v_subrev_u32 v{r}, {-d:#x}, v{r}") for r in regs_] if d else []
    def kreads(u):
        tau = u // 2; sb = SLOTS[(2 * tau) % 7]
        r = addr_upd(range(25, 29), kcur, sb)
        for kb in range(2):
            for be in range(4):
                f = kfb(u, kb, be)
                r.append(Ins(f"ds_read_b128 {f}, v{25+be} offset:{((u%2)*2+kb)*4096}", tag=("K", u, kb), rd=(sb, sb + 16384, ("KV", 2 * tau))))
        return r
    def vreads(u, db):
        tau = u // 2; sb = SLOTS[(2 * tau + 1) % 7]
        r = addr_upd((29, 30), vcur, sb)
        b32, e = db >> 1, db & 1; f = 32 + db * 4
        for rr in range(2):
            r.append(Ins(f"ds_read_b64_tr_b16 v[{f+rr*2}:{f+rr*2+1}], v{29+e} offset:{(b32>>1)*8192+(b32&1)*512+(u%2)*4096+rr*2048}", tag=("V", u, db), rd=(sb, sb + 16384, ("KV", 2 * tau + 1))))
        return r
    for i, x in enumerate(kreads(0)): ev.append((-9 + i // 2, 0, x))
    for i, x in enumerate(kreads(1)): ev.append((4 + 2 * i, qk0[1] - 4, x))
    for u in range(NU):
        for db in range(8):
            lo = pv0[u] + db * 4 - VLA
            if u >= 1: lo = max(lo, pv0[u - 1] + db * 4 + 4)
            for x in vreads(u, db): ev.append((lo, pv0[u] + (db & ~1) * 4 - 4, x))
        if u + 2 < NU:
            for i, x in enumerate(kreads(u + 2)): ev.append((pv0[u] + 2 + 2 * i, qk0[u + 2] - 4, x))
    ev.sort(key=lambda e: e[0])
    sm = []
    for u in range(NU):
        sbuf = 128 + (u % 2) * 32
        w0 = qk0[u] + 32 if u >= 1 else 14
        w1 = pv0[u] - 3
        if u == 15: w0 = qk0[15] + 32
        if u >= 1 and u <= 14: w0 = pv0[u - 1]
        n = 32
        for i in range(n):
            qb, rem = divmod(i, 8)
            ready = qk0[u] + qb * 8 + (rem // 4) * 4 + 3 + 6
            g = max(ready, w0 + (i * (w1 - w0 - 4)) // n)
            sm.append((g, u, i))
    for qb in range(4):
        b = 128 + qb * 8; t0 = 244 + (qb % 2) * 4; g = qb * 8 + 7 + 6
        seq = [f"v_max3_f32 v{t0}, v{b}, v{b+1}, v{b+2}", f"v_max3_f32 v{t0+1}, v{b+3}, v{b+4}, v{b+5}", f"v_max3_f32 v{t0}, v{t0}, v{b+6}, v{b+7}",
               f"v_max_f32 v{t0}, v{t0}, v{t0+1}", f"v_mov_b32 v{t0+1}, v{t0}", "s_nop 1", f"v_permlane16_swap_b32 v{t0}, v{t0+1}", f"v_max_f32 v{t0}, v{t0}, v{t0+1}",
               f"v_mov_b32 v{t0+1}, v{t0}", "s_nop 1", f"v_permlane32_swap_b32 v{t0}, v{t0+1}", f"v_max_f32 v{t0}, v{t0}, v{t0+1}"]
        seq += [f"v_sub_f32 v{192+qb*4+i}, 0, v{t0}" for i in range(4)]
        seq += [f"v_sub_f32 v{b+i}, v{b+i}, v{t0}" for i in range(8)]
        for i, s_ in enumerate(seq):
            dl = qk0[1] + qb * 8 - 2 if i < 16 else None
            at.flow("mx", g, Ins(s_), deadline=dl)
        mxdone = at.qpos["mx"]
        for i in range(8):
            idx = [k for k, e in enumerate(sm) if e[1] == 0 and e[2] == qb * 8 + i][0]
            sm[idx] = (max(sm[idx][0], mxdone + 1), 0, qb * 8 + i)
    expg = {}
    for g, u, i in sm:
        r = 128 + (u % 2) * 32 + i
        expg[(u, i)] = at.flow("exp", g, Ins(f"v_exp_f32 v{r}, v{r}"), deadline=pv0[u] - 2)
    for g, dl, x in ev: at.flow("lds", g, x, deadline=dl)
    for u in range(NU):
        for i in range(16):
            qb, h = divmod(i, 4); b = 128 + (u % 2) * 32 + qb * 8
            at.flow("cvt", expg[(u, qb * 8 + 2 * h + 1)] + 1, Ins(f"v_cvt_pk_bf16_f32 v{b+h}, v{b+2*h}, v{b+2*h+1}"), deadline=pv0[u] - 1)
    for i in range(3, 16):
        if i <= 6: g = -9 + (i - 3) * 14
        else:
            prev = i - 7; tau = prev // 2
            g = bpos[tau + 1] + 1 if prev % 2 else (bpos[tau] + 1 if bpos[tau] > qk0[2 * tau + 1] + 4 else bpos[tau + 1] + 1)
        for x in kvloads(i): g = at.flow("vm", g, x, mingap=1) + (3 if x.kind == "vmem" else 0)
    print("k1 attn", at.stats())
    A_ = at.emit()
    epi = stamp(3) + L("s_nop 7\ns_mov_b32 s52, 0\ns_mov_b32 s53, 4096\ns_mov_b32 s54, 0x40000\ns_mov_b32 s3, 0x41000")
    for qb in range(4): epi += L(f"v_accvgpr_read_b32 v{244+qb}, a{128+qb*4}")
    for qb in range(4): epi += L(f"v_rcp_f32 v{248+qb}, v{244+qb}")
    k = 0
    for qb in range(4):
        for b32 in range(4):
            tb = 128 + (k % 4) * 8; ob = 192 + (k % 4) * 4; k += 1
            for e in range(2):
                for i in range(4): epi += L(f"v_accvgpr_read_b32 v{tb+e*4+i}, a{((b32*2+e)*4+qb)*4+i}")
            for q in range(8): epi += L(f"v_mul_f32 v{tb+q}, v{tb+q}, v{248+qb}")
            for q in range(4): epi += L(f"v_cvt_pk_bf16_f32 v{ob+q}, v{tb+2*q}, v{tb+2*q+1}")
            so = ["s52", "s53", "s54", "s3"][(qb >> 1) * 2 + (b32 >> 1)]
            epi += L(f"buffer_store_dwordx4 v[{ob}:{ob+3}], v31, s[40:43], {so} offen offset:{(b32&1)*2048+(qb&1)*1024}")
    epi += L("s_waitcnt vmcnt(0)") * gen.STAMP + stamp(4) + stamp_store(5, 60, 0)
    epi += L("L_k1_end:\ns_endpgm")
    full = resolve_waits(fix_m0(pro + G_ + mid + A_ + epi))
    errs = check(full, "k1")
    assert not errs, "\n".join(errs[:30])
    return dict(name="k1_kernel", body=text(full), grid=256, block=256, lds=163840, vgpr=512, accum=256, sgpr=102)

if __name__ == "__main__":
    gen.STAMP = "stamp" in sys.argv
    open("t_all.s", "w").write(build_file([gen_ln(), gen_k1(), gen_k2()]))
```

```python
import sys
from gen_core import *
from asmlib import build_file, NAME
XN_OFF = 0; O_OFF = 4 << 20; H_OFF = 20 << 20; G_OFF = 36 << 20; FLAG_OFF = 44 << 20
MF = "v_mfma_f32_16x16x32_bf16"
TS_OFF = 48 << 20
STAMP = False
def stamp(k):
    if not STAMP: return []
    return L(f"s_memtime s[64:65]\ns_memrealtime s[66:67]\ns_waitcnt lgkmcnt(0)\ns_mov_b32 s{70+2*k}, s64\ns_mov_b32 s{71+2*k}, s66")
def stamp_store(n, wslo, kern):
    if not STAMP: return []
    t = srd(64, wslo, wslo + 1, 1 << 20, TS_OFF + kern * 0x40000)
    t += L("s_lshl_b32 s68, s2, 9\ns_lshl_b32 s69, s33, 7\ns_add_u32 s68, s68, s69\nv_mov_b32 v1, s68\ns_mov_b64 exec, 1")
    for i in range(2 * n):
        t += L(f"v_mov_b32 v2, s{70+i}\nbuffer_store_dword v2, v1, s[64:67], 0 offen offset:{4*i}\ns_nop 1")
    t += L("s_mov_b64 exec, -1")
    return t


def srd(d, lo, hi, size, add=0):
    t = []
    if add > 0:
        t += [f"s_add_u32 s{d}, s{lo}, {add:#x}", f"s_addc_u32 s{d+1}, s{hi}, 0"]
    elif add < 0:
        t += [f"s_sub_u32 s{d}, s{lo}, {-add:#x}", f"s_subb_u32 s{d+1}, s{hi}, 0"]
    else:
        t += [f"s_mov_b32 s{d}, s{lo}", f"s_mov_b32 s{d+1}, s{hi}"]
    t += [f"s_mov_b32 s{d+2}, {size:#x}", f"s_mov_b32 s{d+3}, 0x20000"]
    return L("\n".join(t))

def wave_sum(v, s0):
    t = []
    for r in (8, 4, 2, 1):
        t += ["s_nop 1", f"v_add_f32_dpp v{v}, v{v}, v{v} row_ror:{r} row_mask:0xf bank_mask:0xf"]
    t += ["s_nop 0"] + [f"v_readlane_b32 s{s0+i}, v{v}, {16*i}" for i in range(4)]
    t += ["s_nop 1", f"v_mov_b32 v{v}, s{s0}", f"v_add_f32 v{v}, s{s0+1}, v{v}", f"v_add_f32 v{v}, s{s0+2}, v{v}", f"v_add_f32 v{v}, s{s0+3}, v{v}"]
    return L("\n".join(t))

def gen_ln():
    p = []
    p += L("""
    s_cmp_ge_u32 s2, 256
    s_cbranch_scc1 L_ln_end
    s_load_dwordx2 s[4:5], s[0:1], 0
    s_load_dwordx2 s[6:7], s[0:1], 88
    """)
    p += stamp(0)
    p += L("""
    v_lshrrev_b32 v1, 6, v0
    v_and_b32 v2, 63, v0
    s_lshl_b32 s3, s2, 3
    v_add_u32 v1, s3, v1
    v_lshlrev_b32 v3, 11, v1
    v_lshrrev_b32 v12, 1, v2
    v_lshl_add_u32 v3, v12, 6, v3
    v_and_b32 v13, 1, v2
    v_lshl_add_u32 v3, v13, 4, v3
    s_waitcnt lgkmcnt(0)
    """)
    p += srd(8, 4, 5, 4 << 20)
    p += srd(12, 6, 7, 4 << 20, XN_OFF)
    p += srd(16, 6, 7, 8192, FLAG_OFF)
    p += L("""
    buffer_load_dwordx4 v[4:7], v3, s[8:11], 0 offen
    buffer_load_dwordx4 v[8:11], v3, s[8:11], 0 offen offset:32
    v_lshrrev_b32 v14, 6, v1
    v_lshlrev_b32 v14, 17, v14
    v_lshl_add_u32 v14, v12, 12, v14
    v_bfe_u32 v15, v1, 4, 2
    v_lshl_add_u32 v14, v15, 10, v14
    v_lshl_add_u32 v14, v13, 9, v14
    v_and_b32 v15, 15, v1
    v_lshl_add_u32 v14, v15, 4, v14
    s_cmp_lg_u32 s2, 0
    s_cbranch_scc1 L_ln_noflag
    v_mov_b32 v16, 0
    v_mov_b32 v17, 0
    v_mov_b32 v18, 0
    v_mov_b32 v19, 0
    v_lshlrev_b32 v15, 4, v0
    buffer_store_dwordx4 v[16:19], v15, s[16:19], 0 offen
    L_ln_noflag:
    s_mov_b32 s20, 0xffff0000
    s_waitcnt vmcnt(0)
    """)
    for e in range(16):
        src = 4 + e // 2
        p += L(f"v_lshlrev_b32 v{16+e}, 16, v{src}" if e % 2 == 0 else f"v_and_b32 v{16+e}, s20, v{src}")
    p += L("v_add_f32 v32, v16, v17")
    for e in range(2, 16): p += L(f"v_add_f32 v32, v32, v{16+e}")
    p += wave_sum(32, 24)
    p += L("v_mul_f32 v32, 0x3a800000, v32")
    p += L("v_sub_f32 v34, v16, v32\nv_mul_f32 v33, v34, v34")
    for e in range(1, 16): p += L(f"v_sub_f32 v34, v{16+e}, v32\nv_fmac_f32 v33, v34, v34")
    p += wave_sum(33, 24)
    p += L("""
    v_mul_f32 v33, 0x3a800000, v33
    v_cvt_pk_bf16_f32 v34, v32, v33
    v_lshlrev_b32 v32, 16, v34
    v_and_b32 v33, s20, v34
    v_add_f32 v33, 0x3727c5ac, v33
    v_cvt_pk_bf16_f32 v33, v33, v33
    v_and_b32 v33, s20, v33
    v_sqrt_f32 v33, v33
    s_nop 0
    v_cvt_pk_bf16_f32 v33, v33, v33
    v_and_b32 v33, s20, v33
    v_rcp_f32 v33, v33
    """)
    for e in range(16): p += L(f"v_sub_f32 v{16+e}, v{16+e}, v32")
    for q in range(8): p += L(f"v_cvt_pk_bf16_f32 v{4+q}, v{16+2*q}, v{17+2*q}")
    for e in range(16):
        src = 4 + e // 2
        p += L(f"v_lshlrev_b32 v{16+e}, 16, v{src}" if e % 2 == 0 else f"v_and_b32 v{16+e}, s20, v{src}")
    for e in range(16): p += L(f"v_mul_f32 v{16+e}, v{16+e}, v33")
    dst = [36, 37, 40, 41, 38, 39, 42, 43]
    for q in range(8): p += L(f"v_cvt_pk_bf16_f32 v{dst[q]}, v{16+2*q}, v{17+2*q}")
    p += L("""
    buffer_store_dwordx4 v[36:39], v14, s[12:15], 0 offen
    buffer_store_dwordx4 v[40:43], v14, s[12:15], 0 offen offset:256
    """)
    if STAMP: p += L("s_waitcnt vmcnt(0)\nv_lshrrev_b32 v1, 7, v0\ns_nop 0\nv_readfirstlane_b32 s33, v1") + stamp(1) + stamp_store(2, 6, 2)
    p += L("""
    L_ln_end:
    s_endpgm
    """)
    errs = check(p, "ln")
    assert not errs, "\n".join(errs[:20])
    return dict(name="ln_kernel", body=text(p), grid=256, block=512, lds=0, vgpr=48, accum=48, sgpr=102)

def lane_consts():
    return L("""
    v_and_b32 v1, 63, v0
    v_lshrrev_b32 v16, 6, v0
    s_nop 0
    v_readfirstlane_b32 s33, v16
    """)

def tr_addr(vd, e, pi, kgstride, t0=16):
    sh = kgstride.bit_length() - 1
    assert 1 << sh == kgstride
    a, b, c = t0, t0 + 1, t0 + 2
    t = f"""
    v_lshrrev_b32 v{a}, 5, v1
    v_lshlrev_b32 v{vd}, {sh}, v{a}
    v_bfe_u32 v{a}, v1, 2, 3
    v_lshl_add_u32 v{vd}, v{a}, 6, v{vd}
    v_bfe_u32 v{a}, v1, 4, 1
    v_and_b32 v{b}, 3, v1
    """
    if not pi:
        t += f"""
        v_xor_b32 v{a}, {e}, v{a}
        v_lshl_add_u32 v{vd}, v{a}, 5, v{vd}
        v_lshl_add_u32 v{vd}, v{b}, 3, v{vd}
        """
    else:
        t += f"""
        v_lshlrev_b32 v{a}, 1, v{a}
        v_xor_b32 v{a}, v{a}, v{b}
        v_lshl_add_u32 v{vd}, v{a}, 4, v{vd}
        v_lshrrev_b32 v{b}, 1, v{b}
        v_xor_b32 v{b}, {e}, v{b}
        v_lshl_add_u32 v{vd}, v{b}, 3, v{vd}
        """
    return L(t)

def wdma_addr(vd, RS, scol, t0=16, st=40):
    a, b = t0, t0 + 1
    t = f"""
    v_bfe_u32 v{a}, v1, 2, 3
    s_and_b32 s{st}, s33, 1
    s_lshl_b32 s{st}, s{st}, 5
    v_add_u32 v{a}, s{st}, v{a}
    s_mov_b32 s{st}, {RS}
    v_mul_lo_u32 v{vd}, v{a}, s{st}
    v_lshrrev_b32 v{a}, 5, v1
    v_lshl_add_u32 v{vd}, v{a}, 6, v{vd}
    v_bfe_u32 v{a}, v1, 4, 1
    v_lshlrev_b32 v{a}, 1, v{a}
    v_and_b32 v{b}, 3, v1
    v_xor_b32 v{a}, v{a}, v{b}
    v_lshl_add_u32 v{vd}, v{a}, 4, v{vd}
    s_lshr_b32 s{st}, s33, 1
    s_lshl_b32 s{st}, s{st}, 7
    s_add_u32 s{st}, s{st}, {scol}
    v_add_u32 v{vd}, s{st}, v{vd}
    """
    for z in range(1, 4):
        t += f"v_add_u32 v{vd+z}, {z*(8*RS-1024):#x}, v{vd}\n"
    return L(t)

def gen_k2(LA=5, cap=2, abl=''):
    S = 8
    pro = []
    pro += L("""
    s_cmp_ge_u32 s2, 256
    s_cbranch_scc1 L_k2_end
    s_load_dwordx2 s[4:5], s[0:1], 32
    s_load_dwordx2 s[6:7], s[0:1], 64
    s_load_dwordx2 s[28:29], s[0:1], 88
    s_load_dwordx2 s[30:31], s[0:1], 0
    s_load_dwordx2 s[46:47], s[0:1], 72
    """)
    pro += stamp(0)
    pro += lane_consts()
    pro += L("""
    s_bfe_u32 s34, s2, 0x10002
    s_lshr_b32 s35, s2, 3
    s_and_b32 s36, s35, 7
    s_and_b32 s37, s2, 1
    s_lshl_b32 s37, s37, 3
    s_add_u32 s36, s36, s37           ; rt 0..15
    s_lshr_b32 s37, s35, 3
    s_bfe_u32 s38, s2, 0x10001
    s_lshl_b32 s38, s38, 2
    s_add_u32 s37, s37, s38           ; ct 0..7
    s_lshl_b32 s39, s37, 8
    """)
    if 'X' in abl: pro += L("s_mov_b32 s39, 0\ns_and_b32 s36, s36, 1")
    if 'Y' in abl: pro += L("s_mov_b32 s39, 0")
    if 'Z' in abl: pro += L("s_and_b32 s36, s36, 1")
    pro += tr_addr(2, 0, True, 1024) + tr_addr(3, 1, True, 1024)
    pro += L("v_add_u32 v4, 0x10000, v2\nv_add_u32 v5, 0x10000, v3")
    pro += wdma_addr(6, 2048, "s39")
    pro += L(f"""
    s_waitcnt lgkmcnt(0)
    s_cmp_eq_u32 s34, 0
    s_cselect_b32 s8, s4, s6
    s_cselect_b32 s9, s5, s7
    s_mov_b32 s40, {4096*2048:#x}
    s_mov_b32 s41, {3584*2048:#x}
    s_cselect_b32 s10, s40, s41
    s_mov_b32 s11, 0x20000
    s_mov_b32 s40, {O_OFF:#x}
    s_mov_b32 s41, {H_OFF:#x}
    s_cselect_b32 s40, s40, s41
    s_mov_b32 s42, {128*2048:#x}
    s_mov_b32 s43, {112*2048:#x}
    s_cselect_b32 s42, s42, s43
    s_cselect_b32 s44, 6, 5
    s_add_u32 s12, s28, s40
    s_addc_u32 s13, s29, 0
    s_mov_b32 s14, {16<<20:#x}
    s_mov_b32 s15, 0x20000
    s_lshl_b32 s40, s36, 2
    s_add_u32 s40, s40, s33           ; mb32
    s_mul_i32 s41, s40, s42
    v_lshlrev_b32 v10, 4, v1
    v_add_u32 v10, s41, v10
    s_lshl_b32 s45, s33, 12           ; wave lds base
    s_mov_b32 s48, 0                  ; W soffset
    s_mov_b32 s49, 0
    """)
    def loads(t):
        st = t % S
        r = [Ins(f"s_add_u32 m0, s45, {st*16384:#x}")]
        for z in range(4):
            r.append(Ins(f"buffer_load_dwordx4 v{6+z}, s[8:11], s48 offen offset:{z*1024} lds", tag=("T", t), wr=(st*16384, st*16384+16384, t)))
        for j in range(4):
            b = 64 + st * 16 + j * 4
            r.append(Ins(f"buffer_load_dwordx4 a[{b}:{b+3}], v10, s[12:15], s49 offen offset:{j*1024}", tag=("T", t)))
        r.append(Ins("s_add_u32 s48, s48, 0x20000")); r.append(Ins("s_add_u32 s49, s49, 0x1000"))
        return r
    for t in range(S - 2):
        x = loads(t); pro += [x[0], Ins("s_nop 0")] + x[1:]
    pro += srd(16, 30, 31, 4 << 20) + srd(20, 46, 47, 4 << 20) + srd(24, 28, 29, (8 << 20) + 8192, G_OFF)
    pro += L(f"""
    v_and_b32 v11, 15, v1
    s_lshl_b32 s40, s40, 5
    v_add_u32 v11, s40, v11
    v_lshlrev_b32 v11, 11, v11
    v_lshrrev_b32 v16, 4, v1
    v_lshl_add_u32 v11, v16, 4, v11
    v_add_u32 v11, s39, v11
    s_lshl_b32 s50, s36, 3
    s_add_u32 s50, s50, s37           ; pair
    s_lshl_b32 s51, s50, 15
    s_lshl_b32 s52, s33, 13
    s_add_u32 s51, s51, s52
    v_lshlrev_b32 v12, 4, v1
    v_add_u32 v12, s51, v12
    s_lshl_b32 s50, s50, 6
    s_add_u32 s50, s50, {FLAG_OFF-G_OFF:#x}
    s_mov_b32 s53, 0x8000
    """)
    for i in range(64): pro += L(f"v_accvgpr_write_b32 a{i}, 0")
    T = 24
    sc = Sched(cap)
    for t in range(T):
        for nb in range(8):
            G = t * 8 + nb
            fb = 64 + (G % 8) * 8
            for mb in range(2):
                for s in range(2):
                    ac = (nb * 2 + mb) * 4
                    b = 64 + (t % S) * 16 + (s * 2 + mb) * 4
                    sc.mfma(f"{MF} a[{ac}:{ac+3}], v[{fb+s*4}:{fb+s*4+3}], a[{b}:{b+3}], a[{ac}:{ac+3}]")
    def rd(G):
        t, nb = divmod(G, 8)
        st = t % S
        fb = 64 + (G % 8) * 8
        b32, e = nb >> 1, nb & 1
        r = []
        for s in range(2):
            for rr in range(2):
                off = (st % 4) * 16384 + (b32 >> 1) * 8192 + (b32 & 1) * 512 + s * 4096 + rr * 2048
                va = 2 + e + (2 if st >= 4 else 0)
                r.append(Ins(f"ds_read_b64_tr_b16 v[{fb+s*4+rr*2}:{fb+s*4+rr*2+1}], v{va} offset:{off}", tag=("P", G), rd=(st*16384, st*16384+16384, t)))
        return r
    for t in range(-1, T):
        if t + 1 < T:
            sc.fixed_front(t * 32 + 32 - 4 * LA, [W(vm=("T", t + 1)), Ins("s_barrier")])
        for nb in range(0, 8, 2):
          if t >= 0:
              sc.fixed_back(t * 32 + nb * 4, W(lg=("P", t * 8 + nb + 1)))
    sc.fixed_front(0, Ins("L_k2_loop:")); sc.used[0] += 2
    for c in range(2):
        sc.fixed_front((c + 1) * 256, L("s_sub_u32 s44, s44, 1\ns_cbranch_scc0 L_k2_loop"))
    for G in range(0, T * 8):
        for i, x in enumerate(rd(G)):
            sc.flow("lds", 4 * (G - LA) + i, x, deadline=4 * (G - 2))
    for t in range(-1, T):
        if t + S - 1 < T:
            x = loads(t + S - 1)
            g0 = t * 32 + 32 - 4 * LA + 1
            order = [x[0], x[1], x[5], x[2], x[6], x[3], x[7], x[4], x[8], x[9], x[10]]
            pos = [0, 1, 4, 8, 12, 16, 20, 24, 27, 28, 29]
            for ins, pp in zip(order, pos):
                sc.flow("vm", g0 + pp, ins, mingap=(1 if ins is x[1] else 0))
    print("k2", sc.stats())
    body = sc.emit()
    full = resolve_waits(pro + body, drop=False)
    errs = check(full, "k2")
    assert not errs, "\n".join(errs[:20])
    npro = [i for i, x in enumerate(full) if x.text == "L_k2_loop:"][0] + 1
    body = [x for x in full[npro:] if x.kind != "comment"]
    cuts = [i for i, x in enumerate(body) if x.text.startswith("s_cbranch_scc0 L_k2_loop")]
    c0, c1, c2 = body[:cuts[0] + 1], body[cuts[0] + 1:cuts[1] + 1], body[cuts[1] + 1:]
    if [x.text for x in c0] != [x.text for x in c1]:
        import difflib
        print("\n".join(list(difflib.unified_diff([x.text for x in c0], [x.text for x in c1], lineterm="", n=2))[:60]))
        raise SystemExit("loop body mismatch")
    epi = []
    epi += stamp(2)
    epi += L("""
    s_cmp_lg_u32 s34, 0
    s_cbranch_scc1 L_k2_b
    """)
    for mb in range(2):
        for be in range(4):
            r = 128 + (mb * 4 + be) * 4
            epi += L(f"buffer_load_dwordx4 v[{r}:{r+3}], v11, s[16:19], {'0' if mb == 0 else 's53'} offen offset:{be*64}")
    epi += L("""
    v_mov_b32 v13, s50
    L_k2_poll:
    buffer_load_dword v14, v13, s[24:27], 0 offen sc1
    s_waitcnt vmcnt(0)
    v_readfirstlane_b32 s54, v14
    s_cmp_eq_u32 s54, 0
    s_cbranch_scc0 L_k2_go
    s_sleep 2
    s_branch L_k2_poll
    L_k2_go:
    """)
    epi += stamp(3)
    for j in range(8):
        epi += L(f"buffer_load_dwordx4 v[{160+j*4}:{163+j*4}], v12, s[24:27], 0 offen offset:{(j%4)*1024} sc1" if j < 4 else
                 f"buffer_load_dwordx4 v[{160+j*4}:{163+j*4}], v15, s[24:27], 0 offen offset:{(j%4)*1024} sc1")
        if j == 0: epi += L("v_add_u32 v15, 0x1000, v12")
    epi += L("s_mov_b32 s56, 0\ns_mov_b32 s57, -1\ns_mov_b32 s55, 0xffff0000\ns_mov_b64 exec, s[56:57]")
    for j in range(8):
        r = 128 + j * 4
        epi += L(f"v_swap_b32 v{r}, v{r+2}\nv_swap_b32 v{r+1}, v{r+3}")
    epi += L("s_mov_b64 exec, -1")
    for j in range(8):
        mb, be = divmod(j, 4)
        epi += L(f"s_waitcnt vmcnt({7-j})")
        tb = 16 + (j % 2) * 24
        for e in range(2):
            ac = ((be * 2 + e) * 2 + mb) * 4
            for i in range(4):
                epi += L(f"v_accvgpr_read_b32 v{tb+e*4+i}, a{ac+i}")
        for q in range(8):
            gs = 160 + j * 4 + q // 2; xs = 128 + j * 4 + q // 2
            epi += L(f"v_lshlrev_b32 v{tb+8+q}, 16, v{gs}\nv_lshlrev_b32 v{tb+16+q}, 16, v{xs}" if q % 2 == 0 else
                     f"v_and_b32 v{tb+8+q}, s55, v{gs}\nv_and_b32 v{tb+16+q}, s55, v{xs}")
        for q in range(8): epi += L(f"v_fmac_f32 v{tb+16+q}, v{tb+q}, v{tb+8+q}")
        r = 128 + j * 4
        for q in range(4): epi += L(f"v_cvt_pk_bf16_f32 v{r+q}, v{tb+16+2*q}, v{tb+17+2*q}")
        epi += L(f"s_mov_b64 exec, s[56:57]\nv_swap_b32 v{r}, v{r+2}\nv_swap_b32 v{r+1}, v{r+3}\ns_mov_b64 exec, -1")
        epi += L(f"buffer_store_dwordx4 v[{r}:{r+3}], v11, s[20:23], {'0' if mb == 0 else 's53'} offen offset:{be*64}")
    epi += L("s_waitcnt vmcnt(0)") * STAMP + stamp(4) + stamp_store(5, 28, 1)
    epi += L("s_endpgm\nL_k2_b:\ns_mov_b32 s55, 0xbfb8aa3b\nv_add_u32 v15, 0x1000, v12")
    for j in range(8):
        mb, be = divmod(j, 4)
        tb = 16 + (j % 2) * 24
        for e in range(2):
            ac = ((be * 2 + e) * 2 + mb) * 4
            for i in range(4):
                epi += L(f"v_accvgpr_read_b32 v{tb+e*4+i}, a{ac+i}")
        for q in range(8): epi += L(f"v_mul_f32 v{tb+8+q}, s55, v{tb+q}")
        for q in range(8): epi += L(f"v_exp_f32 v{tb+8+q}, v{tb+8+q}")
        for q in range(8): epi += L(f"v_add_f32 v{tb+8+q}, 1.0, v{tb+8+q}")
        for q in range(8): epi += L(f"v_rcp_f32 v{tb+8+q}, v{tb+8+q}")
        for q in range(8): epi += L(f"v_mul_f32 v{tb+q}, v{tb+q}, v{tb+8+q}")
        r = 160 + j * 4
        for q in range(4): epi += L(f"v_cvt_pk_bf16_f32 v{r+q}, v{tb+2*q}, v{tb+1+2*q}")
        epi += L(f"buffer_store_dwordx4 v[{r}:{r+3}], v{12 if j < 4 else 15}, s[24:27], 0 offen offset:{(j%4)*1024} sc1")
    epi += stamp(3) + L("s_waitcnt vmcnt(0)") + stamp(4) + stamp_store(5, 28, 1)
    epi += L("""
    s_waitcnt vmcnt(0)
    s_barrier
    s_cmp_lg_u32 s33, 0
    s_cbranch_scc1 L_k2_end
    v_mov_b32 v13, s50
    v_mov_b32 v14, 1
    s_mov_b64 exec, 1
    buffer_store_dword v14, v13, s[24:27], 0 offen sc1
    L_k2_end:
    s_endpgm
    """)
    ib = [i for i, x in enumerate(epi) if x.text == "L_k2_b:"][0]
    for nm, e in (("s", epi[:ib]), ("b", epi[ib:])):
        errs = check(full + [Ins("s_nop 7")] + e, "k2epi" + nm)
        assert not errs, "\n".join(errs[:20])
    def keep(x):
        if 'D' in abl and x.kind == 'vmem' and ' lds' in x.text: return False
        if 'B' in abl and x.kind == 'vmem' and ' lds' not in x.text: return False
        if 'R' in abl and x.kind == 'lds': return False
        if 'M' in abl and x.kind == 'mfma': return False
        if 'S' in abl and x.kind == 'barrier': return False
        return True
    c1 = [x for x in c1 if keep(x)]; c2 = [x for x in c2 if keep(x)]
    for fl, key in ((" nt", "n"), (" sc1", "c"), (" sc0", "o")):
        if key in abl:
            for x in c1 + c2:
                if x.kind == "vmem":
                    x.text = x.text.replace(" lds", fl + " lds") if " lds" in x.text else x.text + fl
    prog = full[:npro-1] + stamp(1) + full[npro-1:npro] + c1 + c2 + [Ins("s_nop 7")] + epi
    return dict(name="k2_kernel", body=text(prog), grid=256, block=256, lds=131072, vgpr=512, accum=256, sgpr=102)

if __name__ == "__main__":
    STAMP = "stamp" in sys.argv
    ks = []
    ks.append(gen_ln())
    ks.append(gen_k2())
    open("t_k2.s", "w").write(build_file(ks))
    for abl in ("n","c","o","nc","oc"):
        open(f"t_k2_{abl}.s", "w").write(build_file([gen_ln(), gen_k2(abl=abl)]))
```

```python
import re
from collections import defaultdict

TRANS = ("v_exp_", "v_rcp_", "v_rsq_", "v_sqrt_", "v_log_", "v_sin_", "v_cos_")

class Ins:
    __slots__ = ("text", "kind", "cost", "tag", "lg", "vm", "rd", "wr", "label", "once")
    def __init__(self, text, tag=None, rd=None, wr=None, lg=None, vm=None):
        self.text = text.strip()
        self.once = False; self.tag = tag; self.rd = rd; self.wr = wr; self.lg = lg; self.vm = vm
        t = self.text
        self.label = t.endswith(":")
        if self.label: k = "label"
        elif t.startswith("v_mfma"): k = "mfma"
        elif t.startswith(TRANS): k = "trans"
        elif t.startswith("v_"): k = "valu"
        elif t.startswith("ds_"): k = "lds"
        elif t.startswith(("buffer_", "global_")): k = "vmem"
        elif t.startswith("WAIT") or t.startswith("s_waitcnt"): k = "wait"
        elif t.startswith("s_barrier"): k = "barrier"
        elif t.startswith("s_nop"): k = "nop"
        elif t.startswith(("s_load", "s_memtime", "s_memrealtime", "s_atomic")): k = "smem"
        elif t.startswith(";"): k = "comment"
        else: k = "salu"
        self.kind = k
        self.cost = 2 if k == "trans" else (0 if k in ("label", "comment") else 1)
    def copy(self):
        n = Ins(self.text, self.tag, self.rd, self.wr, self.lg, self.vm); return n

def W(lg=None, vm=None):
    return Ins("WAIT", lg=lg, vm=vm)

def L(text, **kw):
    return [Ins(l, **kw) for l in text.strip().split("\n") if l.strip()]

class Sched:
    def __init__(self, cap=2):
        self.cap = cap
        self.mf = []
        self.front = defaultdict(list); self.mid = defaultdict(list); self.back = defaultdict(list)
        self.used = defaultdict(int)
        self.qpos = {}
        self.capo = {}
    def capat(self, g): return self.capo.get(g, self.cap)
    def mfma(self, text):
        self.mf.append(Ins(text)); return len(self.mf) - 1
    def fixed_front(self, idx, ins):
        for x in (ins if isinstance(ins, list) else [ins]):
            self.front[idx].append(x); self.used[idx] += x.cost
    def fixed_back(self, idx, ins):
        for x in (ins if isinstance(ins, list) else [ins]):
            self.back[idx].append(x); self.used[idx] += x.cost
    def flow(self, q, idx, ins, deadline=None, mingap=0):
        g = max(idx, self.qpos.get(q, -10**9) + mingap)
        while self.used[g] + ins.cost > self.capat(g):
            if deadline is not None and g >= deadline: break
            if g >= len(self.mf): break
            g += 1
        if deadline is not None and g > deadline:
            raise RuntimeError(f"deadline miss q={q} idx={idx} g={g} dl={deadline} {ins.text}")
        self.mid[g].append(ins); self.used[g] += ins.cost; self.qpos[q] = g
        return g
    def flowg(self, q, idx, group, deadline=None, strict=False):
        cost = sum(x.cost for x in group)
        g = max(idx, self.qpos.get(q, -10**9))
        while self.used[g] + (min(cost, self.capat(g)) if strict else 1) > self.capat(g):
            if deadline is not None and g >= deadline: break
            if g >= len(self.mf): break
            g += 1
        self.mid[g] += group; self.used[g] += cost; self.qpos[q] = g
        return g
    def emit(self):
        out = []
        n = len(self.mf)
        mx = max([n] + list(self.front) + list(self.mid) + list(self.back))
        mn = min([0] + list(self.front) + list(self.mid) + list(self.back))
        for i in range(mn, mx + 1):
            out += self.front[i] + self.mid[i] + self.back[i]
            if i == 0: out.append(Ins('; @MFMA0'))
            if 0 <= i < n: out.append(self.mf[i])
        return out
    def stats(self):
        n = len(self.mf)
        over = sum(max(0, self.used[i] - self.cap) for i in range(n + 1))
        tot = sum(self.used[i] for i in range(n + 1))
        where = [(i, self.used[i]) for i in range(n + 1) if self.used[i] > self.cap]
        return f"mfma={n} fill={tot} over={over} where={where[:60]}"

def fix_m0(trace):
    out = []
    for x in trace:
        if x.kind == "vmem" and " lds" in x.text:
            prev = [y for y in out[-3:] if y.kind not in ("comment", "label")]
            if prev and prev[-1].kind == "salu" and "m0" in prev[-1].text.split(",")[0]:
                y = Ins("s_nop 0"); y.once = x.once; out.append(y)
        out.append(x)
    return out

def resolve_waits(trace, drop=True):
    out = []
    lg = []; vm = []
    lgdone = 0; vmdone = 0
    drop0 = drop
    for x in trace:
        if x.text.startswith("; @IT "): drop = False
        if x.text.startswith("; @ENDIT "): drop = drop0
        if x.kind == "lds": lg.append(x.tag)
        elif x.kind == "vmem": vm.append(x.tag)
        elif x.kind == "smem": lg.append("__smem")
        if x.kind == "wait":
            if x.text == "WAIT":
                parts = []
                for (tag, lst, done, nm, mx) in ((x.vm, vm, vmdone, "vmcnt", 63), (x.lg, lg, lgdone, "lgkmcnt", 15)):
                    if tag is None: continue
                    if tag == "all": idx = len(lst) - 1
                    else:
                        idxs = [i for i, t in enumerate(lst) if t == tag]
                        if not idxs: raise RuntimeError(f"wait on unissued tag {tag}")
                        idx = idxs[-1]
                    n = len(lst) - 1 - idx
                    if nm == "lgkmcnt" and "__smem" in lst[done:]: n = 0
                    n = min(n, mx)
                    if drop and idx < done: continue
                    parts.append(f"{nm}({n})")
                    if nm == "vmcnt": vmdone = max(vmdone, len(lst) - n)
                    else: lgdone = max(lgdone, len(lst) - n)
                y = Ins("s_waitcnt " + " ".join(parts)) if parts else Ins("; (wait dropped)")
                y.once = x.once
                out.append(y); continue
            else:
                m = re.search(r"vmcnt\((\d+)\)", x.text)
                if m: vmdone = max(vmdone, len(vm) - int(m.group(1)))
                m = re.search(r"lgkmcnt\((\d+)\)", x.text)
                if m: lgdone = max(lgdone, len(lg) - int(m.group(1)))
        out.append(x)
    return out

_reg = re.compile(r"\b([vas])(\d+)\b|\b([vas])\[(\d+):(\d+)\]|\b(vcc|exec|m0|scc)\b")
def regs(op):
    r = []
    for m in _reg.finditer(op):
        if m.group(1): r.append(m.group(1) + m.group(2))
        elif m.group(3): r += [m.group(3) + str(i) for i in range(int(m.group(4)), int(m.group(5)) + 1)]
        else: r.append(m.group(6))
    return r

def rw(x):
    t = x.text.split(";")[0]
    mn, _, rest = t.partition(" ")
    ops = [o.strip() for o in re.split(r",(?![^\[]*\])", rest)] if rest.strip() else []
    R = []; Wr = []
    k = x.kind
    if k == "mfma":
        Wr = regs(ops[0]); R = regs(ops[1]) + regs(ops[2]) + regs(ops[3])
    elif k == "lds":
        if mn.startswith(("ds_read", "ds_bpermute", "ds_swizzle", "ds_permute")): Wr = regs(ops[0]); R = sum((regs(o) for o in ops[1:]), [])
        else: R = sum((regs(o) for o in ops), [])
    elif k == "vmem":
        if mn in ("buffer_inv", "buffer_wbl2"): pass
        elif " lds" in t: R = sum((regs(o) for o in ops), []) + ["m0"]
        elif "load" in mn: Wr = regs(ops[0]); R = sum((regs(o) for o in ops[1:]), [])
        elif "atomic" in mn and " sc0" in t: R = sum((regs(o) for o in ops), []); Wr = regs(ops[0])
        else: R = sum((regs(o) for o in ops), [])
    elif k in ("valu", "trans"):
        if mn.startswith(("v_swap", "v_permlane")): R = regs(ops[0]) + regs(ops[1]); Wr = list(R)
        elif mn.startswith("v_nop"): pass
        else:
            Wr = regs(ops[0]); R = sum((regs(o) for o in ops[1:]), [])
            if mn.startswith(("v_fmac", "v_dot2c", "v_writelane")) or "_dpp" in mn: R += Wr
            if mn.startswith(("v_add_co", "v_addc_co", "v_sub_co")): Wr += regs(ops[1])
            if mn.startswith("v_cndmask") and len(ops) == 3: R.append("vcc")
    elif k in ("salu", "smem"):
        if mn.startswith(("s_cmp", "s_cbranch", "s_branch", "s_endpgm", "s_setprio", "s_sleep", "s_bitcmp")): R = sum((regs(o) for o in ops), [])
        elif ops: Wr = regs(ops[0]); R = sum((regs(o) for o in ops[1:]), [])
    return R, Wr

def check(trace, name="", passes=4):
    errs = []
    DL = {4: (8, 6, 3), 8: (12, 10, 7)}
    pend = {}
    cnt = {"lg": 0, "vm": 0}; done = {"lg": 0, "vm": 0}
    pos = 0
    last_valu_w = {}; last_trans_w = {}; last_mfma_w = {}; last_mfma_c = {}; last_store = {}; last_salu_w = {}; last_valu_sw = {}
    reads = []
    dmas = defaultdict(list)
    bar_lg = 0; bar_vm = 0
    smem_out = False
    vmtags = []
    for n, x in enumerate(trace):
        if x.kind == "comment" and x.text.startswith("; @ASSERT"):
            idx = [i for i, t in enumerate(vmtags) if t == x.vm]
            if not idx or idx[-1] >= bar_vm: errs.append(f"[{name}] #{n} ASSERT {x.vm} not complete at last barrier")
        if x.kind in ("label", "comment"): continue
        def err(m): errs.append(f"[{name}] #{n} '{x.text}': {m}")
        if x.kind == "wait":
            m = re.search(r"vmcnt\((\d+)\)", x.text)
            if m: done["vm"] = max(done["vm"], cnt["vm"] - int(m.group(1)))
            m = re.search(r"lgkmcnt\((\d+)\)", x.text)
            if m:
                v = int(m.group(1))
                if v == 0: smem_out = False
                if not smem_out: done["lg"] = max(done["lg"], cnt["lg"] - v)
            pos += 1; continue
        if x.kind == "barrier":
            bar_lg = done["lg"]; bar_vm = done["vm"]; pos += 1; continue
        if x.kind == "nop":
            pos += int(x.text.split()[1]) + 1; continue
        R, Wr = rw(x)
        mn = x.text.split()[0]
        for r in (R if x.tag == "touch" else R + Wr):
            if r in pend:
                c, i = pend[r]
                if x.kind == "vmem" and c == "vm" and r in Wr and r not in R and len(Wr) == 1: continue
                if i >= done[c]: err(f"reg {r} has pending {c} load #{i} (done {done[c]})")
                else: del pend[r]
        def dist(d, r): return pos - d[r] - 1 if r in d else 99
        if x.kind == "mfma":
            ops = [o.strip() for o in re.split(r",(?![^\[]*\])", x.text.partition(" ")[2])]
            D = regs(ops[0]); A = regs(ops[1]) + regs(ops[2]); C = regs(ops[3])
            for r in A + C:
                if dist(last_valu_w, r) < 2: err(f"VALU->MFMA {r} dist {dist(last_valu_w, r)}")
            for r in A:
                if r in last_mfma_w and pos - last_mfma_w[r][0] - 1 < DL[last_mfma_w[r][2]][0]: err(f"MFMA D->A/B {r}")
            for r in C:
                if r in last_mfma_w and last_mfma_w[r][1] != tuple(C) and pos - last_mfma_w[r][0] - 1 < DL[last_mfma_w[r][2]][1]: err(f"MFMA D->C overlap {r}")
            p = 8 if "32x32" in mn else 4
            for r in D:
                last_mfma_w[r] = (pos, tuple(D), p)
            for r in C: last_mfma_c[r] = (pos, p)
        else:
            if x.kind in ("valu", "trans", "vmem", "lds"):
                for r in R + Wr:
                    if r in last_mfma_w and pos - last_mfma_w[r][0] - 1 < DL[last_mfma_w[r][2]][0]: err(f"MFMA D->use {r} dist {pos - last_mfma_w[r][0] - 1}")
            if x.kind in ("valu", "trans"):
                for r in Wr:
                    if r in last_mfma_c and pos - last_mfma_c[r][0] - 1 < DL[last_mfma_c[r][1]][2]: err(f"MFMA C WAR {r}")
                    if dist(last_store, r) < 2: err(f"store data WAR {r}")
                if x.kind == "valu":
                    for r in R:
                        if dist(last_trans_w, r) < 1: err(f"trans->valu {r}")
                for r in R:
                    if r[0] in "s" and r[1:].isdigit() or r == "vcc":
                        if dist(last_valu_sw, r) < 2: err(f"VALU sgpr->VALU const {r}")
                if mn.startswith(("v_readlane", "v_readfirstlane")):
                    for r in R:
                        if dist(last_valu_w, r) < 1: err(f"VALU->readlane {r}")
                if mn.startswith("v_permlane") or "_dpp" in mn:
                    for r in R:
                        if dist(last_valu_w, r) < 2: err(f"VALU->permlane/dpp {r}")
            if x.kind == "vmem":
                for r in R:
                    if dist(last_valu_sw, r) < 5: err(f"VALU sgpr->VMEM {r}")
                if " lds" in x.text and dist(last_salu_w, "m0") < 1: err("m0->lds dma")
            if x.kind in ("vmem", "lds"):
                for r in Wr:
                    if dist(last_store, r) < 1: err(f"store data WAR(load) {r}")
        if x.kind == "lds":
            if x.rd:
                lo, hi, gen = x.rd
                if gen is not None:
                    if gen not in dmas: err(f"read of gen {gen} w/o dma")
                    elif max(dmas[gen]) >= bar_vm: err(f"read of gen {gen} not covered by vmcnt+barrier (dma {max(dmas[gen])} bar_vm {bar_vm})")
                reads.append((lo, hi, gen, cnt["lg"]))
            for r in Wr: pend[r] = ("lg", cnt["lg"])
            cnt["lg"] += 1
        elif x.kind == "smem":
            for r in Wr: pend[r] = ("lg", cnt["lg"])
            cnt["lg"] += 1; smem_out = True
        elif x.kind == "vmem":
            if x.wr:
                lo, hi, gen = x.wr
                for (l2, h2, g2, li) in reads:
                    if g2 != gen and l2 < hi and lo < h2 and li >= bar_lg: err(f"DMA gen {gen} overwrites region read (gen {g2}) not retired before barrier"); break
                for g2, rng in getattr(check, "_rng", {}).items(): pass
                dmas[gen].append(cnt["vm"])
            for r in Wr: pend[r] = ("vm", cnt["vm"])
            if "store" in mn and ("x4" in mn or "x3" in mn):
                for r in regs(x.text.partition(" ")[2].split(",")[0] if mn.startswith("buffer") else x.text.split(",")[1]): last_store[r] = pos
            cnt["vm"] += 1; vmtags.append(x.tag)
        if x.kind in ("valu", "trans"):
            for r in Wr:
                if r[0] in "va" and r[1:].isdigit(): last_valu_w[r] = pos
                else: last_valu_sw[r] = pos
                if x.kind == "trans": last_trans_w[r] = pos
                elif r in last_trans_w: del last_trans_w[r]
        if x.kind == "salu":
            for r in Wr: last_salu_w[r] = pos
        pos += 1
    return errs

def text(trace):
    return "\n".join((x.text if x.label else "  " + x.text) for x in trace if not (x.kind == "comment" and "dropped" in x.text)) + "\n"

def _merge_wait(a, b):
    d = {}
    for t in (a, b):
        for nm, v in re.findall(r"(vmcnt|lgkmcnt)\((\d+)\)", t): d[nm] = min(d.get(nm, 99), int(v))
    return "s_waitcnt " + " ".join(f"{k}({d[k]})" for k in ("vmcnt", "lgkmcnt") if k in d)

def collapse(trace):
    names = []
    for x in trace:
        if x.text.startswith("; @IT "):
            n = x.text.split()[2]
            if n not in names: names.append(n)
    prog = list(trace)
    for nm in names:
        st = [i for i, x in enumerate(trace) if x.text == f"; @IT {nm}"]
        en = [i for i, x in enumerate(trace) if x.text == f"; @ENDIT {nm}"][0]
        its = [[x for x in trace[a + 1:b] if x.kind != "comment" and not getattr(x, "once", False)] for a, b in zip(st, st[1:] + [en])]
        n0 = len(its[0])
        for k, it in enumerate(its):
            bad = len(it) != n0 or any((x.text != y.text) and not (x.kind == "wait" and y.kind == "wait") for x, y in zip(it, its[0]))
            if bad:
                import difflib
                print("\n".join(list(difflib.unified_diff([x.text for x in its[0]], [x.text for x in it], lineterm="", n=2))[:50]))
                raise SystemExit(f"loop {nm}: iteration {k} differs")
        for i in range(n0):
            if its[0][i].kind == "wait":
                t = its[0][i].text
                for it in its[1:]: t = _merge_wait(t, it[i].text)
                for it in its: it[i].text = t
        a = [i for i, x in enumerate(prog) if x.text == f"; @IT {nm}"][0]
        b = [i for i, x in enumerate(prog) if x.text == f"; @ENDIT {nm}"][0]
        prog = prog[:a] + [Ins(f"L_{nm}:")] + its[0] + prog[b + 1:]
        print(f"loop {nm}: {len(its)} iterations x {n0} instrs")
    return trace, prog
```

```python
import sys, struct, math
from gen_core import *
from asmlib import build_file, NAME
from gen import srd, tr_addr, wdma_addr, lane_consts, MF
XN_OFF = 0; O_OFF = 4 << 20; H_OFF = 20 << 20; EX_OFF = 36 << 20; MB_REL = 16 << 20; TS_OFF = 56 << 20
STG = 45056
GST = [0, 90112, 45056]
PAIR = [131072, 98304, 65536, 32768, 0]
K2SLOT = [0, 16384, 32768, 49152, 131072, 147456, 98304, 114688, 65536, 81920]
FBSLOT0 = 98304
BREG = ['a176', 'a192', 'a208', 'a224', 'a240', 'a144', 'a160', 'a128', 'v32', 'v48']
def b2reg(n, s, mb):
    k, b = BREG[n % 10][0], int(BREG[n % 10][1:]) + (s * 2 + mb) * 4
    return f'{k}[{b}:{b+3}]'
f2u = lambda f: struct.unpack("<I", struct.pack("<f", f))[0]
QSCALE = f2u(math.log2(math.e) / math.sqrt(128.0))
LNLDS = 163840 - 512
STAMP = False
SC = " sc1"
NST = [0]
def stamp():
    if not STAMP: return []
    k = NST[0]; NST[0] += 1
    return L(f"s_memtime s[84:85]\ns_memrealtime s[86:87]\ns_waitcnt lgkmcnt(0)\nv_writelane_b32 v0, s84, {2*k}\nv_writelane_b32 v0, s86, {2*k+1}")
def stamp_store():
    if not STAMP: return []
    t = srd(8, 60, 61, 1 << 20, TS_OFF)
    t += L("s_lshl_b32 s62, s2, 10\ns_lshl_b32 s63, s33, 8\ns_add_u32 s62, s62, s63\nv_lshlrev_b32 v1, 2, v1\nv_add_u32 v1, s62, v1\nbuffer_store_dword v0, v1, s[8:11], 0 offen")
    return t
def once(lst):
    for x in lst: x.once = True
    return lst
def ASSERT(tag):
    x = Ins("; @ASSERT"); x.vm = tag; return x

def gen_fused(P=None):
    P = dict(dict(LA=2, LA2=5, thr=f2u(2.0 ** 24), touch0=1, touch=1, ocap=3, slp0=12, slp=6, xsp=5, wsp=7, lb=56, pd=8, flt=7), **(P or {}))
    NST[0] = 0
    LA = P["LA"]; LA2 = P["LA2"]
    ool = []
    pro = L("""
    s_cmp_ge_u32 s2, 256
    s_cbranch_scc1 L_end
    s_load_dwordx2 s[92:93], s[0:1], 0      ; x
    s_load_dwordx4 s[48:51], s[0:1], 8      ; K, V
    s_load_dwordx4 s[52:55], s[0:1], 24
    s_load_dwordx4 s[56:59], s[0:1], 48
    s_load_dwordx4 s[72:75], s[0:1], 64
    s_load_dwordx4 s[60:63], s[0:1], 80     ; dbg, ws
    """)
    pro += lane_consts()
    pro += L("""
    s_lshr_b32 s34, s2, 3
    s_and_b32 s35, s2, 1
    s_lshl_b32 s35, s35, 2
    s_and_b32 s32, s34, 3
    s_add_u32 s32, s32, s35           ; rb
    s_bfe_u32 s35, s2, 0x20001
    s_lshr_b32 s34, s34, 2
    s_lshl_b32 s3, s35, 3
    s_add_u32 s34, s34, s3            ; j
    s_lshl_b32 s3, s32, 5
    s_add_u32 s3, s3, s34
    s_lshl_b32 s4, s3, 3
    v_and_b32 v32, 7, v1
    v_add_u32 v33, s4, v32            ; row
    v_lshlrev_b32 v34, 11, v33
    v_lshrrev_b32 v35, 3, v1
    s_lshl_b32 s4, s33, 3
    v_add_u32 v35, s4, v35            ; kstep s
    v_lshl_add_u32 v34, v35, 6, v34
    s_mov_b32 s94, 0x400000
    s_mov_b32 s95, 0x20000
    s_waitcnt lgkmcnt(0)
    """)
    for i in range(4): pro += [Ins(f"buffer_load_dwordx4 v[{64+4*i}:{67+4*i}], v34, s[92:95], 0 offen offset:{16*i}", tag="x")]
    pro += stamp()
    pro += L("s_mov_b32 s44, s60\ns_mov_b32 s45, s61\ns_mov_b32 s46, 256\ns_mov_b32 s47, 0x20000\ns_mov_b32 s60, s62\ns_mov_b32 s61, s63")
    pro += L("s_lshl_b32 s62, s34, 8")
    pro += wdma_addr(7, 8192, "s62", t0=36, st=63)
    pro += L(f"""
    s_lshr_b32 s62, s34, 1
    s_mul_i32 s62, s62, 448
    s_and_b32 s63, s34, 1
    s_lshl_b32 s70, s63, 8
    s_add_u32 s70, s70, s62           ; colP
    s_lshl_b32 s71, s63, 5
    s_add_u32 s71, s71, s62
    s_add_u32 s71, s71, 192           ; colX
    v_lshrrev_b32 v36, 5, v1
    v_lshlrev_b32 v36, 3, v36
    v_bfe_u32 v37, v1, 2, 3
    v_add_u32 v36, v36, v37
    s_lshl_b32 s62, s33, 4
    v_add_u32 v36, s62, v36
    s_movk_i32 s62, 7168
    v_mul_lo_u32 v11, v36, s62
    v_bfe_u32 v36, v1, 4, 1
    v_lshlrev_b32 v36, 1, v36
    v_and_b32 v37, 3, v1
    v_xor_b32 v36, v36, v37
    v_lshl_add_u32 v11, v36, 4, v11
    s_add_u32 s70, s70, 4096
    v_add_u32 v11, s70, v11
    v_subrev_u32 v12, 960, v11
    v_subrev_u32 v13, 1920, v11
    v_lshrrev_b32 v36, 1, v1
    s_and_b32 s63, s33, 1
    s_lshl_b32 s63, s63, 5
    v_add_u32 v36, s63, v36
    v_mul_lo_u32 v14, v36, s62
    v_and_b32 v37, 1, v1
    v_lshl_add_u32 v14, v37, 4, v14
    s_add_u32 s71, s71, 4096
    v_add_u32 v14, s71, v14
    s_lshl_b32 s5, s33, 12
    s_mul_i32 s6, s33, 3072
    s_lshl_b32 s7, s33, 10
    """)
    pro += srd(8, 52, 53, 8 << 20) + srd(12, 56, 57, (7 << 20) + 4096, -4096) + srd(16, 58, 59, (7 << 20) + 4096, -4096)
    pro += L("s_cmp_lt_u32 s33, 2\ns_cselect_b32 s20, s12, s16\ns_cselect_b32 s21, s13, s17") + L(f"s_mov_b32 s22, {(7<<20)+4096:#x}\ns_mov_b32 s23, 0x20000")
    pro += srd(76, 54, 55, 8 << 20) + srd(80, 72, 73, 7 << 20) + srd(96, 74, 75, 4 << 20)
    pro += L("s_mov_b32 s52, 0\ns_mov_b32 s53, 0\ns_mov_b32 s54, 0")
    pro += L(f"s_mov_b32 s90, {GST[0]}\ns_mov_b32 s88, {GST[1]}\ns_mov_b32 s89, {GST[2]}")
    def wloads(t):
        sb = GST[t % 3]
        reg = (sb, sb + STG, ("G", t)); tag = ("W", t)
        r = [Ins("s_add_u32 m0, s5, s90")]
        r += [Ins(f"buffer_load_dwordx4 v{7+z}, s[8:11], s52 offen offset:{z*1024} lds", tag=tag, wr=reg) for z in range(4)]
        r += [Ins("s_add_u32 s100, s6, s90"), Ins("s_add_u32 m0, s100, 16384")]
        r += [Ins(f"buffer_load_dwordx4 v{11+z}, s[12:15], s53 offen offset:{z*1024} lds", tag=tag, wr=reg) for z in range(3)]
        r += [Ins("s_add_u32 m0, s100, 28672")]
        r += [Ins(f"buffer_load_dwordx4 v{11+z}, s[16:19], s53 offen offset:{z*1024} lds", tag=tag, wr=reg) for z in range(3)]
        r += [Ins("s_add_u32 s100, s7, s90"), Ins("s_add_u32 m0, s100, 40960")]
        r += [Ins(f"buffer_load_dwordx4 v14, s[20:23], s53 offen lds", tag=tag, wr=reg)]
        r += [Ins("s_add_u32 s52, s52, 0x80000"), Ins("s_add_u32 s53, s53, 0x70000")]
        r += L("s_mov_b32 s100, s90\ns_mov_b32 s90, s88\ns_mov_b32 s88, s89\ns_mov_b32 s89, s100")
        return r
    def breg(t, s, mb):
        k = (s * 4 + mb) * 4
        return f"v[{64+k}:{67+k}]" if t % 2 == 0 else f"a[{224+k}:{227+k}]"
    def xloads(t):
        r = [Ins(f"buffer_load_dwordx4 {breg(t, s, mb)}, v{15+s}, s[24:27], s54 offen offset:{mb*1024}{SC}", tag=("X", t)) for s in range(2) for mb in range(4)]
        r += [Ins("s_add_u32 s54, s54, 0x2000")]
        return r
    pro += wloads(0) + wloads(1)
    pro += L("""
    s_lshl_b32 s62, s2, 2
    s_add_u32 s62, s62, s33
    s_lshl_b32 s63, s62, 12
    v_lshlrev_b32 v31, 6, v1
    v_add_u32 v31, s63, v31
    s_lshl_b32 s63, s62, 10
    v_and_b32 v30, 15, v1
    v_lshlrev_b32 v30, 6, v30
    v_add_u32 v30, s63, v30
    """)
    def touch(v, sr, off):
        return [Ins(f"s_mov_b32 s62, {off:#x}"), Ins(f"buffer_load_dword v127, v{v}, s[{sr}:{sr+3}], s62 offen", tag="touch")]
    if P["touch0"]:
        pro += touch(30, 8, 128 * 8192) + touch(30, 12, 4096 + 128 * 7168) + touch(30, 16, 4096 + 128 * 7168)
    pro += srd(64, 60, 61, MB_REL + 32768, EX_OFF)
    pro += L(f"""
    s_lshl_b32 s62, s3, 7
    s_add_u32 s62, s62, {MB_REL:#x}
    v_and_b32 v36, 31, v1
    v_add_u32 v28, s62, v36
    s_lshl_b32 s62, s32, 12
    s_add_u32 s62, s62, s34
    s_add_u32 s62, s62, {MB_REL:#x}
    v_lshl_add_u32 v29, v36, 7, s62
    v_mov_b32 v37, 0x7fff0000
    v_lshrrev_b32 v38, 5, v1
    v_or_b32 v38, s33, v38
    v_cmp_eq_u32 vcc, 0, v38
    v_mov_b32 v126, 0
    s_nop 0
    v_cndmask_b32 v29, v37, v29, vcc
    v_cndmask_b32 v36, v37, v28, vcc
    buffer_store_byte v126, v36, s[64:67], 0 offen{SC}
    v_or_b32 v38, s33, v1
    v_cmp_eq_u32 vcc, 0, v38
    v_mov_b32 v36, s3
    s_lshl_b32 s62, s32, 5
    v_cndmask_b32 v27, v37, v36, vcc  ; dbg publish addr
    v_and_b32 v26, 31, v1
    v_add_u32 v26, s62, v26           ; dbg poll addr
    s_xor_b32 s62, s34, 16
    s_lshl_b64 s[68:69], 1, s62
    """)
    pro += L(f"s_mov_b32 s62, 0xffff0000") + [W(vm="x")]
    for e in range(32):
        pro += L(f"v_lshlrev_b32 v{80+e}, 16, v{64+e//2}" if e % 2 == 0 else f"v_and_b32 v{80+e}, s62, v{64+e//2}")
    def red8(v):
        return L(f"""
        s_nop 1
        v_add_f32_dpp v{v}, v{v}, v{v} row_ror:8 row_mask:0xf bank_mask:0xf
        v_mov_b32 v40, v{v}
        s_nop 1
        v_permlane16_swap_b32 v{v}, v40
        v_add_f32 v{v}, v{v}, v40
        v_mov_b32 v40, v{v}
        s_nop 1
        v_permlane32_swap_b32 v{v}, v40
        v_add_f32 v{v}, v{v}, v40
        """)
    pro += L("v_add_f32 v36, v80, v81\nv_add_f32 v37, v82, v83")
    for e in range(4, 32, 2): pro += L(f"v_add_f32 v36, v36, v{80+e}\nv_add_f32 v37, v37, v{81+e}")
    pro += L("v_add_f32 v36, v36, v37") + red8(36) + L("v_mul_f32 v36, 0x3b800000, v36")
    pro += L("v_sub_f32 v38, v80, v36\nv_sub_f32 v39, v81, v36\nv_mul_f32 v37, v38, v38\nv_mul_f32 v41, v39, v39")
    for e in range(2, 32, 2): pro += L(f"v_sub_f32 v38, v{80+e}, v36\nv_sub_f32 v39, v{81+e}, v36\nv_fmac_f32 v37, v38, v38\nv_fmac_f32 v41, v39, v39")
    pro += L("v_add_f32 v37, v37, v41") + red8(37)
    pro += L(f"""
    v_lshlrev_b32 v38, 5, v32
    v_add_u32 v38, {LNLDS:#x}, v38
    s_lshl_b32 s63, s33, 3
    v_add_u32 v39, s63, v38
    ds_write_b64 v39, v[36:37]
    s_waitcnt lgkmcnt(0)
    s_barrier
    ds_read_b128 v[44:47], v38
    ds_read_b128 v[48:51], v38 offset:16
    v_lshrrev_b32 v42, 6, v33
    v_lshlrev_b32 v42, 17, v42
    v_lshl_add_u32 v42, v35, 12, v42
    v_bfe_u32 v43, v33, 4, 2
    v_lshl_add_u32 v42, v43, 10, v42
    v_and_b32 v43, 15, v33
    v_lshl_add_u32 v42, v43, 4, v42
    """)
    pro += srd(24, 60, 61, 4 << 20, XN_OFF)
    pro += L("""
    s_waitcnt lgkmcnt(0)
    v_add_f32 v36, v44, v46
    v_add_f32 v37, v48, v50
    v_add_f32 v36, v36, v37
    v_mul_f32 v36, 0.25, v36
    v_add_f32 v37, v45, v47
    v_add_f32 v38, v49, v51
    v_add_f32 v37, v37, v38
    v_sub_f32 v44, v44, v36
    v_sub_f32 v46, v46, v36
    v_sub_f32 v48, v48, v36
    v_sub_f32 v50, v50, v36
    v_mul_f32 v38, v44, v44
    v_fmac_f32 v38, v46, v46
    v_fmac_f32 v38, v48, v48
    v_fmac_f32 v38, v50, v50
    v_fmac_f32 v37, 0x43800000, v38
    v_mul_f32 v37, 0x3a800000, v37
    v_cvt_pk_bf16_f32 v38, v36, v37
    v_lshlrev_b32 v36, 16, v38
    v_and_b32 v37, s62, v38
    v_add_f32 v37, 0x3727c5ac, v37
    v_cvt_pk_bf16_f32 v37, v37, v37
    v_and_b32 v37, s62, v37
    v_sqrt_f32 v37, v37
    s_nop 0
    v_cvt_pk_bf16_f32 v37, v37, v37
    v_and_b32 v37, s62, v37
    v_rcp_f32 v37, v37
    """)
    for e in range(32): pro += L(f"v_sub_f32 v{80+e}, v{80+e}, v36")
    for q in range(16): pro += L(f"v_cvt_pk_bf16_f32 v{64+q}, v{80+2*q}, v{81+2*q}")
    for e in range(32):
        pro += L(f"v_lshlrev_b32 v{80+e}, 16, v{64+e//2}" if e % 2 == 0 else f"v_and_b32 v{80+e}, s62, v{64+e//2}")
    for e in range(32): pro += L(f"v_mul_f32 v{80+e}, v{80+e}, v37")
    for g in range(4):
        for h, q in enumerate((2 * g, 2 * g + 1, 8 + 2 * g, 9 + 2 * g)):
            pro += L(f"v_cvt_pk_bf16_f32 v{64+g*4+h}, v{80+2*q}, v{81+2*q}")
        pro += [Ins(f"buffer_store_dwordx4 v[{64+g*4}:{67+g*4}], v42, s[24:27], 0 offen offset:{g*256}{SC}", tag="xn")]
    pro += L("v_mov_b32 v126, 1")
    pro += tr_addr(96, 0, True, 1024, 36) + tr_addr(97, 1, True, 1024, 36) + tr_addr(98, 0, False, 512, 36) + tr_addr(99, 1, False, 512, 36)
    pro += L("v_lshlrev_b32 v100, 3, v1")
    for i in range(5): pro += L(f"v_mov_b32 v{2+i}, v{96+i}")
    pro += [W(vm="all"), Ins("s_barrier"), Ins(f"buffer_store_byte v126, v27, s[44:47], 0 offen{SC}", tag="flag")]
    pro += stamp()
    pro += L(f"""
    s_lshl_b32 s62, s32, 2
    s_add_u32 s62, s62, s33
    s_lshl_b32 s63, s62, 17
    v_lshlrev_b32 v25, 4, v1
    v_add_u32 v15, s63, v25
    v_add_u32 v16, 0x1000, v15
    s_lshl_b32 s62, s35, 19
    s_add_u32 s62, s62, {1536*256:#x}
    s_add_u32 s28, s48, s62
    s_addc_u32 s29, s49, 0
    s_mov_b32 s30, 0x20000
    s_mov_b32 s31, 0x20000
    s_add_u32 s36, s50, s62
    s_addc_u32 s37, s51, 0
    s_mov_b32 s38, 0x20000
    s_mov_b32 s39, 0x20000
    v_lshrrev_b32 v36, 4, v1
    v_and_b32 v37, 15, v1
    v_lshl_add_u32 v38, v36, 8, s5
    """)
    pro += srd(40, 60, 61, 16 << 20, O_OFF)
    for z in range(4):
        pro += L(f"v_add_u32 v39, {4*z}, v36\nv_xor_b32 v39, v39, v37\nv_lshl_add_u32 v{17+z}, v39, 4, v38")
    pro += wdma_addr(21, 256, "0", t0=40, st=63)
    pro += L("s_mov_b32 s55, 0\ns_mov_b32 s56, 0\ns_mov_b32 s57, -1\ns_mov_b32 s91, 6")
    for i in range(224): pro += L(f"v_accvgpr_write_b32 a{i}, 0")
    for i in range(128, 256, 2): pro += L(f"v_mov_b64 v[{i}:{i+1}], 0")
    pro += L(f"""
    s_cmp_lg_u32 s33, 0
    s_cbranch_scc1 L_x_go
    s_mov_b32 s70, 0x40000
    s_sleep {P['slp0']}
    L_x_poll:
    buffer_load_ubyte v125, v26, s[44:47], 0 offen{SC}
    s_waitcnt vmcnt(0)
    v_cmp_gt_u32 vcc, 1, v125
    s_sub_u32 s70, s70, 1
    s_cbranch_scc1 L_x_go
    s_cbranch_vccz L_x_go
    s_sleep {P['slp']}
    s_branch L_x_poll
    L_x_go:
    s_barrier
    """)
    pro += stamp() + xloads(0) + xloads(1)
    pro += srd(44, 60, 61, 14 << 20, H_OFF)
    pro += stamp()
    def kvloads(tau, dyn):
        r = []
        for v in range(2):
            sb = PAIR[tau % 5] + v * 16384; i = 2 * tau + v; reg = (sb, sb + 16384, ("KV", i)); tag = ("KV", i)
            r.append(Ins(f"s_add_u32 m0, s89, {v*16384}" if dyn else f"s_add_u32 m0, s5, {sb:#x}"))
            for z in range(4):
                r.append(Ins(f"buffer_load_dwordx4 v{(21 if v else 17)+z}, s[{36 if v else 28}:{39 if v else 31}], s55 offen offset:{z*1024} lds", tag=tag, wr=reg))
        r.append(Ins("s_add_u32 s55, s55, 0x4000"))
        return r
    blocks = []
    for p in range(3):
        for e in range(2):
            for m in range(2):
                bi = (p * 2 + e) * 2 + m
                blocks.append((4 + e, (lambda s, r, p=p, m=m: 16384 + m * 12288 + (2 * s + r) * 3072 + p * 1024), "a", bi * 16))
    for m in range(2):
        blocks.append((6, (lambda s, r, m=m: 40960 + m * 2048 + s * 1024 + r * 512), "a", (12 + m) * 16))
    for nb in range(8):
        b32, e = nb >> 1, nb & 1
        blocks.append((2 + e, (lambda s, r, b32=b32: (b32 >> 1) * 8192 + (b32 & 1) * 512 + s * 4096 + r * 2048), "v", 128 + nb * 16))
    NB = len(blocks); T = 16; TM = NB * 8
    sc = Sched(2)
    for t in range(T):
        for nb, (va, imm, ak, ab) in enumerate(blocks):
            G = t * NB + nb; fb = 32 + (G % 4) * 8
            for mb in range(4):
                for s in range(2):
                    ac = f"{ak}[{ab+mb*4}:{ab+mb*4+3}]"
                    sc.mfma(f"{MF} {ac}, v[{fb+s*4}:{fb+s*4+3}], {breg(t, s, mb)}, {ac}")
    def rd(G):
        t, nb = divmod(G, NB); va, imm, _, _ = blocks[nb]; fb = 32 + (G % 4) * 8; sb = GST[t % 3]
        return [Ins(f"ds_read_b64_tr_b16 v[{fb+s*4+r*2}:{fb+s*4+r*2+1}], v{va} offset:{imm(s, r)}", tag=("P", G), rd=(sb, sb + STG, ("G", t))) for s in range(2) for r in range(2)]
    LB = P['lb']
    for it in range(8):
        g = 2 * it * TM + LB
        if it == 0: sc.used[g] += 2
        else: sc.fixed_front(g, L("s_sub_u32 s91, s91, 1\ns_cbranch_scc0 L_G"))
        sc.fixed_front(g, Ins("; @IT G" if it < 7 else "; @ENDIT G"))
    for t in range(0, T):
        bg = (t + 1) * TM - 8 * LA
        if t + 1 < T: sc.fixed_front(bg, [W(vm=("W", t + 1)), Ins("s_barrier")])
        sc.fixed_back(t * TM, W(vm=("X", t)))
        for nb in range(NB): sc.fixed_back(t * TM + nb * 8, W(lg=("P", t * NB + nb)))
    for G in range(T * NB):
        t, nb = divmod(G, NB)
        if nb == 0 and t > 0:
            sreg = "s88" if t <= 14 else "s89"
            for va in range(2, 7): sc.flow("lds", 8 * (G - LA) - 3, Ins(f"v_add_u32 v{va}, {sreg}, v{94+va}"), deadline=8 * (G - LA))
        for i, x in enumerate(rd(G)):
            sc.flow("lds", 8 * (G - LA) + i, x, deadline=8 * (G - 1) + 2)
    FB = 2
    for t in range(1, T): sc.fixed_front(t * TM + FB, Ins("s_barrier"))
    for t in range(0, T):
        g = t * TM + 1
        if t == 0:
            its = []
            if P["touch"]:
                its += touch(31, 8, 256 * 8192) + touch(31, 12, 4096 + 256 * 7168) + touch(31, 16, 4096 + 256 * 7168)
                its += touch(31, 8, 512 * 8192) + touch(31, 12, 4096 + (3 << 20)) + touch(31, 16, 4096 + (3 << 20)) + touch(30, 28, 0) + touch(30, 36, 0)
            for x in its: g = sc.flow("vm", g, x, mingap=(1 if x.kind == "vmem" else 0)) + (P["xsp"] - 1 if x.kind == "vmem" else 0)
        elif t + 1 < T:
            for x in xloads(t + 1): g = sc.flow("vm", g, x, mingap=(1 if x.kind == "vmem" else 0)) + (P["xsp"] if x.kind == "vmem" else 0)
        assert g < t * TM + LB, g - t * TM
        g = t * TM + LB + 1
        items = wloads(t + 2) if t + 2 < T else []
        if t == 14:
            if P["touch"]: items += touch(31, 80, 0) + touch(31, 80, 3 << 20) + touch(31, 76, 0) + touch(31, 76, 4 << 20)
            items += kvloads(0, False)
        if t == 15: items += kvloads(1, False)
        for x in items: g = sc.flow("vm", g, x, mingap=(1 if x.kind == "vmem" else 0)) + (P["wsp"] if x.kind == "vmem" else 0)
        assert g < (t + 1) * TM - 8 * LA - 4 + P["wsp"] or t >= 14, g - t * TM
    print("G", sc.stats()[:60])
    G_ = sc.emit()
    mid = stamp() + L("s_nop 7") + ([W(vm="touch")] if P["touch"] or P["touch0"] else [])
    mid += L(f"""
    s_lshl_b32 s62, s32, 3
    s_lshl_b32 s63, s33, 1
    s_add_u32 s62, s62, s63
    s_mul_i32 s63, s62, {112*2048}
    s_lshr_b32 s3, s34, 1
    s_mul_i32 s3, s3, 7
    s_and_b32 s4, s34, 1
    s_lshl_b32 s52, s4, 2
    s_add_u32 s52, s52, s3
    s_lshl_b32 s52, s52, 11
    s_add_u32 s52, s52, s63
    s_add_u32 s3, s3, 3
    s_lshl_b32 s3, s3, 11
    s_add_u32 s3, s3, s63
    s_lshl_b32 s4, s4, 3
    s_add_u32 s3, s3, s4
    v_add_u32 v33, s3, v25
    v_add_u32 v32, s52, v25
    s_mov_b32 s52, 0
    s_mov_b32 s53, 4096
    s_mov_b32 s54, {112*2048}
    s_mov_b32 s3, {112*2048+4096}
    s_lshl_b32 s62, s62, 18
    s_lshl_b32 s63, s34, 13
    s_add_u32 s62, s62, s63
    v_add_u32 v31, s62, v25
    v_mov_b32 v2, v96
    v_mov_b32 v3, v97
    """)
    k = 0
    for mb in range(4):
        for p in range(4):
            tb = 96 + (k % 2) * 16; ob = 40 + (k % 4) * 4; k += 1
            ne = 2 if p < 3 else 1
            for e in range(ne):
                bi = (p * 2 + e) * 2 if p < 3 else 12
                for i in range(4):
                    mid += L(f"v_accvgpr_read_b32 v{tb+e*4+i}, a{bi*16+mb*4+i}\nv_accvgpr_read_b32 v{tb+8+e*4+i}, a{(bi+1)*16+mb*4+i}")
            for q in range(0, 4 * ne, 2): mid += L(f"v_pk_mul_f32 v[{tb+q}:{tb+q+1}], v[{tb+q}:{tb+q+1}], v[{tb+8+q}:{tb+9+q}]")
            for q in range(2 * ne): mid += L(f"v_cvt_pk_bf16_f32 v{ob+q}, v{tb+2*q}, v{tb+2*q+1}")
            if p < 3:
                so = ["s52", "s53", "s54", "s3"][(mb >> 1) * 2 + (p >> 1)]
                mid += [Ins(f"buffer_store_dwordx4 v[{ob}:{ob+3}], v32, s[44:47], {so} offen offset:{(p&1)*2048+(mb&1)*1024}{SC}", tag="Hst")]
            else:
                mid += [Ins(f"buffer_store_dwordx2 v[{ob}:{ob+1}], v33, s[44:47], {'s54' if mb >> 1 else 's52'} offen offset:{(mb&1)*1024}{SC}", tag="Hst")]
    mid += L(f"s_mov_b32 s62, {QSCALE:#x}\ns_mov_b32 s63, s62")
    for qb in range(4):
        for be in range(4):
            for e in range(2):
                src = 128 + (be * 2 + e) * 16 + qb * 4
                mid += L(f"v_pk_mul_f32 v[{src}:{src+1}], v[{src}:{src+1}], s[62:63]\nv_pk_mul_f32 v[{src+2}:{src+3}], v[{src+2}:{src+3}], s[62:63]")
            for e in range(2):
                src = 128 + (be * 2 + e) * 16 + qb * 4; d = 64 + (qb * 4 + be) * 4 + e * 2
                mid += L(f"v_cvt_pk_bf16_f32 v{d}, v{src}, v{src+1}\nv_cvt_pk_bf16_f32 v{d+1}, v{src+2}, v{src+3}")
    mid += L("s_mov_b64 exec, s[56:57]")
    for f in range(16): mid += L(f"v_swap_b32 v{64+f*4}, v{66+f*4}\nv_swap_b32 v{65+f*4}, v{67+f*4}")
    mid += L("s_mov_b64 exec, -1")
    mid += L("""
    v_and_b32 v244, 3, v1
    v_cmp_eq_u32 vcc, 0, v244
    v_mov_b32 v245, 0x3f803f80
    s_nop 0
    v_cndmask_b32 v208, 0, v245, vcc
    v_cndmask_b32 v209, 0, v245, vcc
    v_cndmask_b32 v210, 0, v245, vcc
    v_cndmask_b32 v211, 0, v245, vcc
    v_lshrrev_b32 v244, 4, v1
    v_and_b32 v245, 15, v1
    """)
    for b in range(4):
        mid += L(f"v_add_u32 v246, {4*b}, v244\nv_xor_b32 v246, v246, v245\nv_lshlrev_b32 v246, 4, v246\nv_lshl_add_u32 v{11+b}, v245, 8, v246\nv_add_u32 v{11+b}, {PAIR[0]:#x}, v{11+b}")
    mid += tr_addr(15, 0, False, 1024, 246) + tr_addr(16, 1, False, 1024, 246)
    mid += L(f"""
    v_add_u32 v15, {PAIR[0]+16384+32768:#x}, v15
    v_add_u32 v16, {PAIR[0]+16384+32768:#x}, v16
    v_add_u32 v4, 0x10000, v2
    v_add_u32 v5, 0x10000, v3
    v_add_u32 v6, 0x20000, v2
    v_add_u32 v30, 0x20000, v3
    s_lshr_b32 s48, s34, 4            ; type
    s_bfe_u32 s49, s34, 0x30001       ; ct
    s_lshl_b32 s49, s49, 8
    s_and_b32 s50, s34, 1
    s_lshl_b32 s51, s32, 1
    s_add_u32 s50, s50, s51           ; rt
    s_lshl_b32 s50, s50, 2
    s_add_u32 s50, s50, s33           ; mb32
    s_mul_i32 s71, s48, {1792*2048}
    s_mul_i32 s72, s50, {112*2048}
    s_mul_i32 s73, s48, {56*2048}
    s_add_u32 s72, s72, s73
    s_lshl_b32 s74, s48, 22
    s_lshl_b32 s75, s50, 18
    s_lshl_b32 s73, s48, 17
    s_add_u32 s75, s75, s73
    s_lshl_b32 s73, s48, 10
    v_add_u32 v26, s73, v25
    s_xor_b32 s73, s73, 0x400
    v_add_u32 v27, s73, v25
    s_mov_b64 s[8:9], s[80:81]
    s_mov_b32 s10, s82
    s_mov_b64 s[12:13], s[44:45]
    s_mov_b32 s14, s46
    s_mov_b32 s88, 2
    s_mov_b32 s91, 5
    s_mov_b32 s100, 0xffff8000        ; -32K
    s_mov_b32 s101, 0x20000           ; +128K
    """)
    mid += wdma_addr(7, 2048, "s49", t0=246, st=63)
    for i in range(144): mid += L(f"v_accvgpr_write_b32 a{i}, 0")
    mid += stamp()
    at = Sched(2)
    qk0 = {}; pv0 = {}
    KR = 11; VR = 15
    def kfb(u, kb, be):
        f = (144 if u % 2 else 212) + (kb * 4 + be) * 4
        return f"{'a' if u % 2 else 'v'}[{f}:{f+3}]"
    def qk_list(u, first, kf):
        sbuf = 128 + (u % 2) * 32; r = []
        for qb in range(4):
            for kb in range(2):
                d = sbuf + (qb * 2 + kb) * 4
                for be in range(4):
                    c = f"v[{d}:{d+3}]" if be else ("0" if first else f"v[{192+qb*4}:{195+qb*4}]")
                    q = 64 + (qb * 4 + be) * 4
                    r.append(f"{MF} v[{d}:{d+3}], {kf(kb, be)}, v[{q}:{q+3}], {c}")
        return r
    def dborder(u): return [8, 0, 1, 2, 3, 4, 5, 6, 7] if u == 15 else list(range(9))
    def pv_list(u, vf, order=None):
        sbuf = 128 + (u % 2) * 32; r = []
        for db in (order or dborder(u)):
            for qb in range(4):
                ac = (db * 4 + qb) * 4; pf = sbuf + qb * 8
                a = vf(db) if db < 8 else "v[208:211]"
                r.append(f"{MF} a[{ac}:{ac+3}], {a}, v[{pf}:{pf+3}], a[{ac}:{ac+3}]")
        return r
    def QK(u):
        qk0[u] = len(at.mf)
        for m in qk_list(u, u == 0, lambda kb, be: kfb(u, kb, be)): at.mfma(m)
    def PV(u):
        pv0[u] = len(at.mf)
        for m in pv_list(u, lambda db: f"v[{32+db*4}:{35+db*4}]"): at.mfma(m)
    QK(0); QK(1)
    for u in range(14): PV(u); QK(u + 2)
    PV(14); PV(15)
    NU = 16
    def pvpos(u, db): return pv0[u] + dborder(u).index(db) * 4
    kb0 = len(at.mf)
    NT = 60; R2 = 10; PD = P['pd']
    for n in range(NT):
        for nb in range(8):
            G = n * 8 + nb; fb = 64 + (G % 8) * 8
            for mb in range(2):
                for s in range(2):
                    r = 128 + (nb * 2 + mb) * 4; ac = f"v[{r}:{r+3}]"
                    at.mfma(f"{MF} {ac}, v[{fb+s*4}:{fb+s*4+3}], {b2reg(n, s, mb)}, {'0' if (n == 0 and s == 0) else ac}")
    VLA = 12
    CHK = pv0[15] + 12
    ALB = 4
    for it in range(7):
        g = pv0[2 * it] + ALB
        if it == 0: at.used[g] += 2
        else: at.fixed_front(g, L("s_sub_u32 s91, s91, 1\ns_cbranch_scc0 L_A"))
        at.fixed_front(g, Ins("; @IT A" if it < 6 else "; @ENDIT A"))
    at.fixed_front(-10, [W(vm=("KV", 0)), Ins("s_barrier")])
    bpos = {}
    for tau in range(8):
        bpos[tau] = pv0[2 * tau] - VLA - 1
        at.fixed_front(bpos[tau], [W(vm=("KV", min(2 * tau + 2, 15))), Ins("s_barrier")])
    sw = once(L("L_K_sw:\ns_nop 7") +
              [Ins(f"buffer_store_dwordx4 v[{128+(nb*2+1)*4}:{131+(nb*2+1)*4}], v17, s[64:67], {'0' if nb < 4 else 's58'} offen offset:{(nb%4)*1024}{SC}", tag="Bst") for nb in range(8)] +
              sum([L(f"v_mov_b64 v[{192+nb*4+h*2}:{193+nb*4+h*2}], v[{128+nb*8+h*2}:{129+nb*8+h*2}]") for nb in range(8) for h in range(2)], []) +
              sum([L(f"v_mov_b64 v[{r}:{r+1}], 0") for r in range(128, 192, 2)], []) + L("s_nop 0\ns_branch L_K"))
    sw[-1] = once(L("s_branch L_K_sw_ret"))[0]
    sw[-2:-2] = once(L("s_mov_b32 s16, 2\ns_mov_b32 s19, 0\nv_mov_b32 v254, 4"))
    for k in range(1, 7):
        g = kb0 + R2 * k * 32
        if k == 1: at.used[g] += 2
        else: at.fixed_front(g, L("s_sub_u32 s91, s91, 1\ns_cbranch_scc0 L_K"))
        at.fixed_front(g, Ins("; @IT K" if k < 6 else "; @ENDIT K"))
        if k < 6:
            g = kb0 + (R2 * k + 8) * 32
            at.fixed_front(g, L("s_cmp_eq_u32 s91, 3\ns_cbranch_scc1 L_K_sw"))
            if k == 2: at.front[g] += sw
            at.fixed_front(g, Ins("L_K_sw_ret:"))
    b2 = {}
    for n in range(NT + 1):
        b2[n] = kb0 + n * 32 - 4 * LA2
        at.fixed_front(b2[n], [W(vm=("T", n)), Ins("s_barrier")])
        for nb in range(0, 8 if n < NT else 0, 2): at.fixed_back(kb0 + n * 32 + nb * 4, W(lg=("P2", n * 8 + nb + 1)))
    bpos[8] = b2[0]
    assert b2[0] > CHK
    for u in range(NU):
        at.fixed_back(qk0[u], W(lg=("K", u, 0)))
        at.fixed_back(qk0[u] + 4, W(lg=("K", u, 1)))
        for db in range(0, 8, 2): at.fixed_back(pvpos(u, db), W(lg=("V", u, db + 1)))
    chk = []
    for qb in range(4): chk += L(f"v_accvgpr_read_b32 v{244+qb}, a{128+qb*4}")
    chk += L(f"""
    v_max3_f32 v252, v244, v245, v246
    s_mov_b32 s62, {P['thr']:#x}
    v_max_f32 v252, v252, v247
    v_cmp_nge_f32 vcc, s62, v252
    s_cbranch_vccnz L_fallback
    L_fb_ret:
    """)
    for qb in range(4): chk += L(f"v_rcp_f32 v{248+qb}, v{244+qb}")
    at.fixed_front(CHK, chk)
    ev = []
    def kreads(u):
        tau = u // 2; sb = PAIR[tau % 5]; r = []
        if u % 2 == 0 and u > 0:
            r.append(L(f"s_cmp_eq_u32 s88, {KW}\ns_cselect_b32 s90, s101, s100") if u <= 12 else L("s_mov_b32 s90, s100"))
            r += [Ins(f"v_add_u32 v{x}, s90, v{x}") for x in range(KR, KR + 4)]
        for kb in range(2):
            for be in range(4):
                r.append(Ins(f"ds_read_b128 {kfb(u, kb, be)}, v{KR+be} offset:{((u%2)*2+kb)*4096}", tag=("K", u, kb), rd=(sb, sb + 16384, ("KV", 2 * tau))))
        return r
    def vreads(u, db):
        tau = u // 2; sb = PAIR[tau % 5] + 16384; r = []
        if u % 2 == 0 and db == 0:
            r.append(L(f"s_cmp_eq_u32 s88, {VW}\ns_cselect_b32 s73, s101, s100") if 2 <= u <= 12 else L("s_mov_b32 s73, s100"))
            r += [Ins(f"v_add_u32 v{x}, s73, v{x}") for x in (VR, VR + 1)]
        b32, e = db >> 1, db & 1; f = 32 + db * 4
        for rr in range(2):
            r.append(Ins(f"ds_read_b64_tr_b16 v[{f+rr*2}:{f+rr*2+1}], v{VR+e} offset:{(b32>>1)*8192+(b32&1)*512+(u%2)*4096+rr*2048}", tag=("V", u, db), rd=(sb, sb + 16384, ("KV", 2 * tau + 1))))
        return r
    KW = 2; VW = 2
    evk = []
    for i, x in enumerate(kreads(0)): evk.append((-9 + i // 2, 0, x))
    for i, x in enumerate(kreads(1)): evk.append((4 + 2 * (i // 2 * 2), qk0[1] - 4, x))
    for u in range(NU):
        for db in range(8):
            lo = pvpos(u, db) - VLA
            if u >= 1: lo = max(lo, pvpos(u - 1, db) + 4)
            for x in vreads(u, db): ev.append((lo, pvpos(u, db & ~1) - 4, x))
        if u + 2 < NU:
            kr = kreads(u + 2); off = 1 if len(kr) > 8 else 0
            for i, x in enumerate(kr): evk.append((pv0[u] + ALB + 3 + (4 if u % 2 else 3) * ((i + off) // 2), qk0[u + 2] - 4, x))
    def rd2(G):
        n, nb = divmod(G, 8); sb = K2SLOT[n % R2]; fb = 64 + (G % 8) * 8
        b32, e = nb >> 1, nb & 1
        va = [(2, 3), (4, 5), (6, 30)][sb >> 16][e]
        return [Ins(f"ds_read_b64_tr_b16 v[{fb+s*4+rr*2}:{fb+s*4+rr*2+1}], v{va} offset:{(sb & 0xffff)+(b32>>1)*8192+(b32&1)*512+s*4096+rr*2048}", tag=("P2", G), rd=(sb, sb + 16384, ("T", n))) for s in range(2) for rr in range(2)]
    for G in range(NT * 8 + LA2):
        for i, x in enumerate(rd2(G)): ev.append((kb0 + 4 * (G - LA2) + i, kb0 + 4 * (G - 2), x))
    ev.sort(key=lambda e: e[0])
    for it in range(6):
        at.fixed_front(pv0[2 * it] + ALB + 1, L("s_add_u32 s88, s88, 1\ns_cmp_eq_u32 s88, 5\ns_cselect_b32 s88, 0, s88"))
        at.fixed_front(pv0[2 * it] + ALB + 2, L("s_lshl_b32 s89, s88, 15\ns_sub_u32 s89, s4, s89"))
    def maxseq(b, t0):
        return [f"v_max3_f32 v{t0}, v{b}, v{b+1}, v{b+2}", f"v_max3_f32 v{t0+1}, v{b+3}, v{b+4}, v{b+5}", f"v_max3_f32 v{t0}, v{t0}, v{b+6}, v{b+7}", f"v_max_f32 v{t0}, v{t0}, v{t0+1}"]
    def xlane(t0, t1):
        return [f"v_mov_b32 v{t1}, v{t0}", "s_nop 1", f"v_permlane16_swap_b32 v{t0}, v{t1}", f"v_max_f32 v{t0}, v{t0}, v{t1}",
                f"v_mov_b32 v{t1}, v{t0}", "s_nop 1", f"v_permlane32_swap_b32 v{t0}, v{t1}", f"v_max_f32 v{t0}, v{t0}, v{t1}"]
    for q_, lst in (("lds", ev), ("ldsk", evk)):
        for g, dl, x in lst:
            if isinstance(x, list): at.flowg(q_, g, x, deadline=dl, strict=True)
            else: at.flow(q_, g, x, deadline=dl)
    nspin = [0]
    def flagload(tag, so="0"): return Ins(f"buffer_load_ubyte v253, v28, s[64:67], {so} offen{SC}", tag=tag)
    def flagcheck(tag, need, partner):
        k = nspin[0]; nspin[0] += 1
        m = 's[68:69]' if partner else 'exec'
        c = [W(vm=tag), Ins(f"v_cmp_gt_u32 vcc, {need}, v253")]
        c += L(f"s_and_b64 s[62:63], vcc, {m}\ns_cbranch_scc1 L_spin{k}\nL_spin{k}_ret:")
        ool.extend(L(f"""
        L_spin{k}:
        s_mov_b32 s70, 0x40000
        L_spin{k}_l:
        buffer_load_ubyte v253, v28, s[64:67], 0 offen{SC}
        s_waitcnt vmcnt(0)
        v_cmp_gt_u32 vcc, {need}, v253
        s_sub_u32 s70, s70, 1
        s_cbranch_scc1 L_spin{k}_ret
        s_and_b64 s[62:63], vcc, {m}
        s_cbranch_scc0 L_spin{k}_ret
        s_sleep 1
        s_branch L_spin{k}_l
        """))
        return c
    def pubstore(so="0"): return Ins(f"buffer_store_byte v254, v29, s[64:67], {so} offen{SC}", tag="flag")
    def loads2(n):
        sb = K2SLOT[n % R2]
        r = [Ins(f"s_add_u32 m0, s5, {sb:#x}")]
        d = [Ins(f"buffer_load_dwordx4 v{7+z}, s[8:11], s71 offen offset:{z*1024} lds", tag=("T", n), wr=(sb, sb + 16384, ("T", n))) for z in range(4)]
        b = [Ins(f"buffer_load_dwordx4 {b2reg(n, s, mb)}, v{26+mb}, s[12:15], s72 offen offset:{s*2048}{SC}", tag=("T", n)) for s in range(2) for mb in range(2)]
        for z in range(4): r += [d[z], b[z]]
        r += L("s_add_u32 s71, s71, 0x20000\ns_add_u32 s72, s72, 0x1000")
        return r
    vq = []
    vq.append((-9, L(f"s_add_u32 s4, s5, {PAIR[0]:#x}") + kvloads(2, False), 3, 50))
    for it in range(6): vq.append((pv0[2 * it] + ALB + 3, kvloads(it + 3, True), 13, pv0[2 * it] + ALB + 125))
    e0 = pv0[12] + ALB
    at.front[bpos[0]].insert(0, W(vm="Hst")); at.used[bpos[0]] += 1
    vq.append((bpos[0] + 1, [ASSERT("Hst"), Ins("v_mov_b32 v254, 2"), pubstore()], 0, bpos[0] + 6))
    vq.append((e0 + 1, [flagload("fH")], 0, e0 + 6))
    for g in range(CHK + 2, b2[R2]): at.capo[g] = P["ocap"]
    vq.append((e0 + 40, flagcheck("fH", 2, False), -1))
    for n in range(4): vq.append((e0 + 41 + n * 30, loads2(n), 2, e0 + 41 + n * 30 + 29))
    for n in range(4, PD): vq.append((CHK + 1 + (n - 4) * 8, loads2(n), 0, CHK + 8 + (n - 4) * 8))
    FLT = P["flt"]
    hn = 28; hk = (hn - PD) // R2
    hook = once(L("L_K_hook:") + flagcheck("flO", 3, False) + L("s_mov_b64 s[8:9], s[76:77]\ns_add_u32 s10, s74, 0x400000\ns_mov_b64 s[12:13], s[40:41]\ns_add_u32 s14, s75, 0x20000\ns_mov_b32 s71, s74\ns_mov_b32 s72, s75\ns_branch L_K_hook_ret"))
    for n in range(PD, NT + PD + 1):
        g = b2[n - PD + 1] + 1 if n - PD + 1 < NT else kb0 + (n - PD + 1) * 32 - 4 * LA2 + 1
        if g >= kb0 + NT * 32: continue
        its = loads2(n)
        if n % R2 == hn % R2 and g >= kb0 + R2 * 32:
            its = [L(f"s_cmp_eq_u32 s91, {5-hk}\ns_cbranch_scc1 L_K_hook") + (hook if n == hn else []) + L("L_K_hook_ret:")] + its
        vq.append((g, its, 2))
    for k in range(1, 6):
        n = R2 * k + FLT
        a = [ASSERT("Bst")] if k == 3 else []
        vq.append((b2[n] + 2, a + [L("s_cmp_eq_u32 s91, s16\ns_cselect_b32 s17, 0, s18"), pubstore("s17"), L("s_cmp_eq_u32 s91, s19\ns_cselect_b32 s17, 0, s18"), flagload({1: "flO", 5: "fB"}.get(k, "flx"), "s17")], 1))
    vq.sort(key=lambda e: e[0])
    for g, its, sp, *dl in vq:
        dl = dl[0] if dl else None
        for x in its:
            if dl is not None: g = min(g, dl)
            if not isinstance(x, list) and x.kind == "vmem" and g < CHK: x.cost = 2
            if isinstance(x, list):
                g = at.flowg("vm", g, x); at.used[g] -= sum(y.cost for y in x if y.once)
                if "dbg" in P: print("grp placed", (g - kb0) / 32, x[0].text)
            elif sp < 0 or x.kind in ("wait", "label", "comment") or x.text.startswith(("v_cmp", "s_and_b64", "s_cbranch")):
                g = max(g, at.qpos.get("vm", g)); at.mid[g].append(x); at.used[g] += x.cost; at.qpos["vm"] = g
            else:
                g = at.flow("vm", g, x, mingap=(1 if (" lds" in x.text and at.qpos.get("vm") != dl) else 0), deadline=dl) + (sp if x.kind == "vmem" else 0)
    rdy0 = {}
    for qb in range(4):
        b = 128 + qb * 8; t0 = 244 + (qb % 2) * 4; g = qb * 8 + 7 + 6
        seq = maxseq(b, t0) + xlane(t0, t0 + 1) + [f"v_sub_f32 v{192+qb*4+i}, 0, v{t0}" for i in range(4)] + [f"v_sub_f32 v{b+i}, v{b+i}, v{t0}" for i in range(8)]
        for i, s_ in enumerate(seq): at.flow("mx", g, Ins(s_), deadline=(qk0[1] + qb * 8 - 2 if i < 16 else pv0[0] - 6))
        rdy0[qb] = at.qpos["mx"] + 1
    exps = []
    for u in range(NU):
        w0 = pv0[u - 1] + ALB if 1 <= u <= 14 else 0
        for i in range(32):
            qb, rem = divmod(i, 8)
            ready = qk0[u] + qb * 8 + (rem // 4) * 4 + 3 + 6
            if u == 0: ready = max(ready, rdy0[qb])
            exps.append((max(ready, w0), u, i))
    ei = 0; pend = []
    def put(g, x): at.mid[g].append(x); at.used[g] += x.cost
    for g in range(0, kb0):
        def do_exp():
            nonlocal ei
            _, u, i = exps[ei]; ei += 1
            r = 128 + (u % 2) * 32 + i
            put(g, Ins(f"v_exp_f32 v{r}, v{r}"))
            if i % 2:
                qb, h = i // 8, (i % 8) // 2; b = 128 + (u % 2) * 32 + qb * 8
                pend.append((g + 1, u, Ins(f"v_cvt_pk_bf16_f32 v{b+h}, v{b+2*h}, v{b+2*h+1}")))
        while ei < len(exps) and pv0[exps[ei][1]] - 2 <= g: do_exp()
        while pend and pv0[pend[0][1]] - 1 <= g: put(g, pend.pop(0)[2])
        nr = sum(1 for p_ in pend if p_[0] <= g)
        if at.used[g] == 0 and ei < len(exps) and exps[ei][0] <= g and nr < 4: do_exp()
        while at.used[g] < 2 and pend and pend[0][0] <= g: put(g, pend.pop(0)[2])
    assert ei == len(exps) and not pend
    for g in range(b2[R2], kb0 + 32 * R2): at.capo[g] = P["ocap"]
    od = L("s_mov_b32 s52, 0\ns_mov_b32 s53, 4096\ns_mov_b32 s54, 0x40000\ns_mov_b32 s3, 0x41000")
    for x in od: at.flow("od", CHK + 1, x)
    k = 0
    for b32 in range(4):
        for qb in range(4):
            tb = 212 + (k % 2) * 8; ob = 228 + (k % 4) * 4; k += 1
            g = pvpos(15, 2 * b32 + 1) + 4 + 8
            for e in range(2):
                for i in range(4): at.flow("od", g, Ins(f"v_accvgpr_read_b32 v{tb+e*4+i}, a{((b32*2+e)*4+qb)*4+i}"))
            for q in range(8): at.flow("od", g, Ins(f"v_mul_f32 v{tb+q}, v{tb+q}, v{248+qb}"))
            for q in range(4): gq = at.flow("od", g, Ins(f"v_cvt_pk_bf16_f32 v{ob+q}, v{tb+2*q}, v{tb+2*q+1}"))
            so = ["s52", "s53", "s54", "s3"][(qb >> 1) * 2 + (b32 >> 1)]
            at.flow("od", gq, Ins(f"buffer_store_dwordx4 v[{ob}:{ob+3}], v31, s[40:43], {so} offen offset:{(b32&1)*2048+(qb&1)*1024}{SC}", tag="Ost"))
    print("O drain ends at K2 tile", (at.qpos["od"] - kb0) / 32)
    npub = [n for n in range(NT) if b2[n] > at.qpos["od"] + 40][0]; assert npub <= R2
    at.front[b2[npub]].insert(0, W(vm="Ost")); at.used[b2[npub]] += 1
    for x in [ASSERT("Ost"), Ins("v_mov_b32 v254, 3"), pubstore()]: at.flow("od", b2[npub] + 1, x)
    xa = L(f"""
    s_lshl_b32 s62, s32, 5
    s_add_u32 s62, s62, s34
    s_lshl_b32 s63, s62, 15
    s_lshl_b32 s4, s33, 13
    s_add_u32 s63, s63, s4
    v_add_u32 v17, s63, v25
    s_xor_b32 s63, s63, {16<<15:#x}
    v_add_u32 v18, s63, v25
    v_and_b32 v19, 15, v1
    s_lshl_b32 s62, s50, 5
    s_lshl_b32 s63, s48, 4
    s_add_u32 s62, s62, s63
    v_add_u32 v19, s62, v19
    v_lshlrev_b32 v19, 11, v19
    v_lshrrev_b32 v20, 4, v1
    v_lshl_add_u32 v19, v20, 4, v19
    v_add_u32 v19, s49, v19
    s_mov_b32 s58, 0x1000
    s_mov_b32 s59, 0x800000
    s_mov_b32 s4, 0x801000
    s_mov_b32 s91, 4
    s_mov_b32 s16, 99
    s_mov_b32 s19, 4
    s_mov_b32 s18, 0x40000000
    """)
    for x in xa: at.flow("xa", kb0, x, deadline=kb0 + R2 * 32 - 1)
    print("attn+k2", at.stats()[:400])
    A_ = at.emit()
    if STAMP:
        i = [k for k, x in enumerate(A_) if x is at.mf[kb0]][0]
        A_ = A_[:i] + stamp() + A_[i:]
    epi = stamp() + L("s_nop 7\ns_waitcnt lgkmcnt(0)")
    epi += [Ins(f"buffer_store_dwordx4 v[{128+(nb*2+1)*4}:{131+(nb*2+1)*4}], v17, s[64:67], {'s59' if nb < 4 else 's4'} offen offset:{(nb%4)*1024}{SC}", tag="Sst") for nb in range(8)]
    epi += flagcheck("fB", 4, True)
    epi += [Ins(f"buffer_load_dwordx4 v[{224+be*4}:{227+be*4}], v19, s[92:95], 0 offen offset:{be*64}", tag="xld") for be in range(4)]
    epi += [Ins(f"buffer_load_dwordx4 a[{nb*4}:{nb*4+3}], v18, s[64:67], {'0' if nb < 4 else 's58'} offen offset:{(nb%4)*1024}{SC}", tag="Bld") for nb in range(8)]
    epi += L("v_mov_b32 v254, 5")
    def silu(nb):
        r = 192 + nb * 4; tmp = 240 + (nb % 2) * 4; o = []
        for i in range(4): o += L(f"v_accvgpr_read_b32 v{tmp+i}, a{nb*4+i}")
        for i in range(4): o += L(f"v_add_f32 v{r+i}, v{r+i}, v{tmp+i}")
        for i in range(4): o += L(f"v_mul_f32 v{tmp+i}, s62, v{r+i}")
        for i in range(4): o += L(f"v_exp_f32 v{tmp+i}, v{tmp+i}")
        for i in range(4): o += L(f"v_add_f32 v{tmp+i}, 1.0, v{tmp+i}")
        for i in range(4): o += L(f"v_rcp_f32 v{tmp+i}, v{tmp+i}")
        for i in range(4): o += L(f"v_mul_f32 v{r+i}, v{r+i}, v{tmp+i}")
        return o
    epi += [W(vm="Sst"), Ins("s_barrier"), Ins("s_mov_b64 exec, s[68:69]"), pubstore(), Ins("s_mov_b64 exec, -1")] + stamp()
    epi += [W(vm="Bld")] + L("s_mov_b32 s62, 0xbfb8aa3b")
    for nb in range(8): epi += silu(nb)
    epi += L("s_mov_b64 exec, s[56:57]")
    for be in range(4): epi += L(f"v_swap_b32 v{224+be*4}, v{226+be*4}\nv_swap_b32 v{225+be*4}, v{227+be*4}")
    epi += L("s_mov_b64 exec, -1\ns_mov_b32 s63, 0xffff0000")
    for q in range(32): epi += L(f"v_lshlrev_b32 v{64+q}, 16, v{224+q//2}" if q % 2 == 0 else f"v_and_b32 v{64+q}, s63, v{224+q//2}")
    for q in range(32): epi += L(f"v_fmac_f32 v{64+q}, v{128+(q//4)*8+q%4}, v{192+q}")
    epi += L(f"""
    s_mov_b32 s70, 0x40000
    L_fin_poll:
    buffer_load_ubyte v253, v28, s[64:67], 0 offen{SC}
    s_waitcnt vmcnt(0)
    v_cmp_gt_u32 vcc, 5, v253
    s_sub_u32 s70, s70, 1
    s_cbranch_scc1 L_fin_go
    s_and_b64 s[62:63], vcc, s[68:69]
    s_cbranch_scc1 L_fin_poll
    L_fin_go:
    """)
    epi += [Ins(f"buffer_load_dwordx4 v[{96+nb*4}:{99+nb*4}], v18, s[64:67], {'s59' if nb < 4 else 's4'} offen offset:{(nb%4)*1024}{SC}", tag=("Sld", nb)) for nb in range(8)]
    epi += stamp()
    for be in range(4):
        epi += [W(vm=("Sld", 2 * be + 1))]
        for q in range(8): epi += L(f"v_fmac_f32 v{64+be*8+q}, v{96+be*8+q}, v{192+be*8+q}")
        r = 224 + be * 4
        for q in range(4): epi += L(f"v_cvt_pk_bf16_f32 v{r+q}, v{64+be*8+2*q}, v{65+be*8+2*q}")
        epi += L(f"s_mov_b64 exec, s[56:57]\nv_swap_b32 v{r}, v{r+2}\nv_swap_b32 v{r+1}, v{r+3}\ns_mov_b64 exec, -1")
        epi += L(f"buffer_store_dwordx4 v[{r}:{r+3}], v19, s[96:99], 0 offen offset:{be*64}")
    epi += L("s_waitcnt vmcnt(0)") * STAMP + stamp() + stamp_store()
    epi += L("L_end:\ns_endpgm")
    vcur = PAIR[7 % 5] + 16384; kcur = PAIR[7 % 5]
    fbk = L(f"""
    L_fallback:
    s_waitcnt vmcnt(0) lgkmcnt(0)
    s_nop 7
    s_lshl_b32 s62, s33, 14
    s_add_u32 s88, s62, {FBSLOT0:#x}
    s_and_b32 s62, s33, 1
    s_lshl_b32 s62, s62, 13
    s_lshr_b32 s63, s33, 1
    s_lshl_b32 s63, s63, 7
    s_add_u32 s62, s62, s63
    """)
    for z in range(4): fbk += L(f"v_subrev_u32 v{17+z}, s5, v{17+z}\nv_subrev_u32 v{21+z}, s62, v{21+z}")
    fbk += L(f"s_sub_u32 s62, s88, {kcur:#x}")
    for b in range(4): fbk += L(f"v_add_u32 v{KR+b}, s62, v{KR+b}")
    fbk += L(f"s_sub_u32 s62, s88, {vcur:#x}\nv_add_u32 v244, s62, v{VR}\nv_add_u32 v245, s62, v{VR+1}")
    for qb in range(4): fbk += L(f"v_mov_b32 v{248+qb}, 0xff800000")
    def fb_k(first):
        o = []
        for kb in range(2):
            o += L(f"s_add_u32 m0, s88, {4096+kb*8192}\ns_add_u32 s89, s55, {kb*4096}")
            for z in range(4): o += L(f"buffer_load_dwordx4 v{17+z}, s[28:31], s89 offen offset:{z*1024} lds")
        o += L("s_waitcnt vmcnt(0)")
        for kb in range(2):
            for be in range(4): o += L(f"ds_read_b128 {kfb(0, kb, be)}, v{KR+be} offset:{4096+kb*8192}")
        o += L("s_waitcnt lgkmcnt(0)")
        o += L("\n".join(qk_list(1, first, lambda kb, be: kfb(0, kb, be)))) + L("s_nop 7")
        return o
    fbk += L("s_mov_b32 s55, 0\nL_fb1:") + fb_k(True)
    for qb in range(4):
        b = 160 + qb * 8
        fbk += L("\n".join(maxseq(b, 246))) + L(f"v_max_f32 v{248+qb}, v{248+qb}, v246")
    fbk += L("s_add_u32 s55, s55, 0x2000\ns_cmp_lt_u32 s55, 0x20000\ns_cbranch_scc1 L_fb1")
    for qb in range(4):
        fbk += L("\n".join(xlane(248 + qb, 246)))
        for i in range(4): fbk += L(f"v_sub_f32 v{192+qb*4+i}, 0, v{248+qb}")
    for i in range(144): fbk += L(f"v_accvgpr_write_b32 a{i}, 0")
    fbk += L("s_mov_b32 s55, 0\nL_fb2:")
    for bp in range(2):
        fbk += L(f"s_add_u32 m0, s88, {bp*8192}\ns_add_u32 s89, s55, {bp*128}")
        for z in range(4): fbk += L(f"buffer_load_dwordx4 v{21+z}, s[36:39], s89 offen offset:{z*1024} lds")
    fbk += fb_k(False)
    for db in range(8):
        b32, e = db >> 1, db & 1
        for rr in range(2): fbk += L(f"ds_read_b64_tr_b16 a[{144+db*4+rr*2}:{145+db*4+rr*2}], v{244+e} offset:{(b32>>1)*8192+(b32&1)*512+rr*2048}")
    for i in range(32): fbk += L(f"v_exp_f32 v{160+i}, v{160+i}")
    for qb in range(4):
        for h in range(4): fbk += L(f"v_cvt_pk_bf16_f32 v{160+qb*8+h}, v{160+qb*8+2*h}, v{161+qb*8+2*h}")
    pl = pv_list(15, lambda db: f"a[{144+db*4}:{147+db*4}]")
    nfirst = CHK - pv0[15]
    fbk += L("s_waitcnt lgkmcnt(0)") + L("\n".join(pl[:nfirst]))
    fbk += L("s_add_u32 s55, s55, 0x2000\ns_cmp_lt_u32 s55, 0x20000\ns_cbranch_scc0 L_fb_done") + L("\n".join(pl[nfirst:])) + L("s_branch L_fb2\nL_fb_done:\ns_nop 7")
    for qb in range(4): fbk += L(f"v_accvgpr_read_b32 v{244+qb}, a{128+qb*4}")
    fbk += L("s_branch L_fb_ret")
    errs = check(fbk, "fb")
    assert not errs, "\n".join(errs[:30])
    full = resolve_waits(fix_m0(pro + G_ + mid + A_ + epi))
    full, prog = collapse(full)
    errs = check(full, "fused")
    assert not errs, "\n".join(errs[:30])
    onc = [x for x in full if x.once]
    def keep(x):
        t = x.tag
        if isinstance(t, tuple):
            if P.get("ablX") and t[0] == "X" and t[1] >= 2: return False
            if P.get("ablW") and t[0] == "W" and t[1] >= 2: return False
            if P.get("ablR") and t[0] == "P": return False
            if P.get("ablT") and t[0] == "T" and t[1] >= 10: return False
            if P.get("ablTD") and t[0] == "T" and t[1] >= 10 and " lds" in x.text: return False
            if P.get("ablTB") and t[0] == "T" and t[1] >= 10 and " lds" not in x.text: return False
        return True
    prog = [x for x in prog if keep(x)]
    return dict(name=NAME + "_kernel", body=text(prog + onc + ool + fbk), grid=256, block=256, lds=163840, vgpr=512, accum=256, sgpr=102)

if __name__ == "__main__":
    STAMP = "stamp" in sys.argv
    open("t_g.s", "w").write(build_file([gen_fused()]))
    for v in sys.argv[1:]:
        if v == "stamp": continue
        P = {}
        for kv in v.split(","):
            k, _, val = kv.partition("="); P[k] = int(val, 0) if val else 1
        open("t_g_" + v.replace(",", "_").replace("=", "") + ".s", "w").write(build_file([gen_fused(P)]))
```

```python
import re
from collections import defaultdict

TRANS = ("v_exp_", "v_rcp_", "v_rsq_", "v_sqrt_", "v_log_", "v_sin_", "v_cos_")

class Ins:
    __slots__ = ("text", "kind", "cost", "tag", "lg", "vm", "rd", "wr", "label", "once")
    def __init__(self, text, tag=None, rd=None, wr=None, lg=None, vm=None):
        self.text = text.strip()
        self.once = False; self.tag = tag; self.rd = rd; self.wr = wr; self.lg = lg; self.vm = vm
        t = self.text
        self.label = t.endswith(":")
        if self.label: k = "label"
        elif t.startswith("v_mfma"): k = "mfma"
        elif t.startswith(TRANS): k = "trans"
        elif t.startswith("v_"): k = "valu"
        elif t.startswith("ds_"): k = "lds"
        elif t.startswith(("buffer_", "global_")): k = "vmem"
        elif t.startswith("WAIT") or t.startswith("s_waitcnt"): k = "wait"
        elif t.startswith("s_barrier"): k = "barrier"
        elif t.startswith("s_nop"): k = "nop"
        elif t.startswith(("s_load", "s_memtime", "s_memrealtime", "s_atomic")): k = "smem"
        elif t.startswith(";"): k = "comment"
        else: k = "salu"
        self.kind = k
        self.cost = 2 if k == "trans" else (0 if k in ("label", "comment") else 1)
    def copy(self):
        n = Ins(self.text, self.tag, self.rd, self.wr, self.lg, self.vm); return n

def W(lg=None, vm=None):
    return Ins("WAIT", lg=lg, vm=vm)

def L(text, **kw):
    return [Ins(l, **kw) for l in text.strip().split("\n") if l.strip()]

class Sched:
    def __init__(self, cap=2):
        self.cap = cap
        self.mf = []
        self.front = defaultdict(list); self.mid = defaultdict(list); self.back = defaultdict(list)
        self.used = defaultdict(int)
        self.qpos = {}
        self.capo = {}
    def capat(self, g): return self.capo.get(g, self.cap)
    def mfma(self, text):
        self.mf.append(Ins(text)); return len(self.mf) - 1
    def fixed_front(self, idx, ins):
        for x in (ins if isinstance(ins, list) else [ins]):
            self.front[idx].append(x); self.used[idx] += x.cost
    def fixed_back(self, idx, ins):
        for x in (ins if isinstance(ins, list) else [ins]):
            self.back[idx].append(x); self.used[idx] += x.cost
    def flow(self, q, idx, ins, deadline=None, mingap=0):
        g = max(idx, self.qpos.get(q, -10**9) + mingap)
        while self.used[g] + ins.cost > self.capat(g):
            if deadline is not None and g >= deadline: break
            if g >= len(self.mf): break
            g += 1
        if deadline is not None and g > deadline:
            raise RuntimeError(f"deadline miss q={q} idx={idx} g={g} dl={deadline} {ins.text}")
        self.mid[g].append(ins); self.used[g] += ins.cost; self.qpos[q] = g
        return g
    def flowg(self, q, idx, group, deadline=None, strict=False):
        cost = sum(x.cost for x in group)
        g = max(idx, self.qpos.get(q, -10**9))
        while self.used[g] + (min(cost, self.capat(g)) if strict else 1) > self.capat(g):
            if deadline is not None and g >= deadline: break
            if g >= len(self.mf): break
            g += 1
        self.mid[g] += group; self.used[g] += cost; self.qpos[q] = g
        return g
    def emit(self):
        out = []
        n = len(self.mf)
        mx = max([n] + list(self.front) + list(self.mid) + list(self.back))
        mn = min([0] + list(self.front) + list(self.mid) + list(self.back))
        for i in range(mn, mx + 1):
            out += self.front[i] + self.mid[i] + self.back[i]
            if i == 0: out.append(Ins('; @MFMA0'))
            if 0 <= i < n: out.append(self.mf[i])
        return out
    def stats(self):
        n = len(self.mf)
        over = sum(max(0, self.used[i] - self.cap) for i in range(n + 1))
        tot = sum(self.used[i] for i in range(n + 1))
        where = [(i, self.used[i]) for i in range(n + 1) if self.used[i] > self.cap]
        return f"mfma={n} fill={tot} over={over} where={where[:60]}"

def fix_m0(trace):
    out = []
    for x in trace:
        if x.kind == "vmem" and " lds" in x.text:
            prev = [y for y in out[-3:] if y.kind not in ("comment", "label")]
            if prev and prev[-1].kind == "salu" and "m0" in prev[-1].text.split(",")[0]:
                y = Ins("s_nop 0"); y.once = x.once; out.append(y)
        out.append(x)
    return out

def resolve_waits(trace, drop=True):
    out = []
    lg = []; vm = []
    lgdone = 0; vmdone = 0
    drop0 = drop
    opt = set()
    for x in trace:
        if x.text.startswith("; @IT "): drop = False
        if x.text.startswith("; @ENDIT "): drop = drop0
        if x.kind == "lds": lg.append(x.tag)
        elif x.kind == "vmem" and "w0only" not in x.text:
            vm.append(x.tag)
            if "; opt" in x.text: opt.add(len(vm) - 1)
        elif x.kind == "smem": lg.append("__smem")
        if x.kind == "wait":
            if x.text == "WAIT":
                parts = []
                for (tag, lst, done, nm, mx) in ((x.vm, vm, vmdone, "vmcnt", 63), (x.lg, lg, lgdone, "lgkmcnt", 15)):
                    if tag is None: continue
                    if tag == "all": idx = len(lst) - 1
                    else:
                        idxs = [i for i, t in enumerate(lst) if t == tag]
                        if not idxs: raise RuntimeError(f"wait on unissued tag {tag}")
                        idx = idxs[-1]
                    n = len(lst) - 1 - idx
                    if nm == "vmcnt": n -= sum(1 for o in opt if o > idx)
                    if nm == "lgkmcnt" and "__smem" in lst[done:]: n = 0
                    n = min(n, mx)
                    if drop and idx < done: continue
                    parts.append(f"{nm}({n})")
                    if nm == "vmcnt": vmdone = max(vmdone, idx + 1)
                    else: lgdone = max(lgdone, len(lst) - n)
                y = Ins("s_waitcnt " + " ".join(parts)) if parts else Ins("; (wait dropped)")
                y.once = x.once
                out.append(y); continue
            elif "w0only" not in x.text:
                m = re.search(r"vmcnt\((\d+)\)", x.text)
                if m and int(m.group(1)) == 0: vmdone = len(vm)
                m = re.search(r"lgkmcnt\((\d+)\)", x.text)
                if m: lgdone = max(lgdone, len(lg) - int(m.group(1)))
        out.append(x)
    return out

_reg = re.compile(r"\b([vas])(\d+)\b|\b([vas])\[(\d+):(\d+)\]|\b(vcc|exec|m0|scc)\b")
def regs(op):
    r = []
    for m in _reg.finditer(op):
        if m.group(1): r.append(m.group(1) + m.group(2))
        elif m.group(3): r += [m.group(3) + str(i) for i in range(int(m.group(4)), int(m.group(5)) + 1)]
        else: r.append(m.group(6))
    return r

def rw(x):
    t = x.text.split(";")[0]
    mn, _, rest = t.partition(" ")
    ops = [o.strip() for o in re.split(r",(?![^\[]*\])", rest)] if rest.strip() else []
    R = []; Wr = []
    k = x.kind
    if k == "mfma":
        Wr = regs(ops[0]); R = regs(ops[1]) + regs(ops[2]) + regs(ops[3])
    elif k == "lds":
        if mn.startswith(("ds_read", "ds_bpermute", "ds_swizzle", "ds_permute")): Wr = regs(ops[0]); R = sum((regs(o) for o in ops[1:]), [])
        else: R = sum((regs(o) for o in ops), [])
    elif k == "vmem":
        if mn in ("buffer_inv", "buffer_wbl2"): pass
        elif " lds" in t: R = sum((regs(o) for o in ops), []) + ["m0"]
        elif "load" in mn: Wr = regs(ops[0]); R = sum((regs(o) for o in ops[1:]), [])
        elif "atomic" in mn and " sc0" in t: R = sum((regs(o) for o in ops), []); Wr = regs(ops[0])
        else: R = sum((regs(o) for o in ops), [])
    elif k in ("valu", "trans"):
        if mn.startswith(("v_swap", "v_permlane")): R = regs(ops[0]) + regs(ops[1]); Wr = list(R)
        elif mn.startswith("v_nop"): pass
        else:
            Wr = regs(ops[0]); R = sum((regs(o) for o in ops[1:]), [])
            if mn.startswith(("v_fmac", "v_dot2c", "v_writelane")) or "_dpp" in mn: R += Wr
            if mn.startswith(("v_add_co", "v_addc_co", "v_sub_co")): Wr += regs(ops[1])
            if mn.startswith("v_cndmask") and len(ops) == 3: R.append("vcc")
    elif k in ("salu", "smem"):
        if mn.startswith(("s_cmp", "s_cbranch", "s_branch", "s_endpgm", "s_setprio", "s_sleep", "s_bitcmp")): R = sum((regs(o) for o in ops), [])
        elif ops: Wr = regs(ops[0]); R = sum((regs(o) for o in ops[1:]), [])
    return R, Wr

def check(trace, name="", passes=4):
    errs = []
    DL = {4: (8, 6, 3), 8: (12, 10, 7)}
    pend = {}
    cnt = {"lg": 0, "vm": 0}; done = {"lg": 0, "vm": 0}
    pos = 0
    last_valu_w = {}; last_trans_w = {}; last_mfma_w = {}; last_mfma_c = {}; last_store = {}; last_salu_w = {}; last_valu_sw = {}
    reads = []
    dmas = defaultdict(list)
    bar_lg = 0; bar_vm = 0
    smem_out = False
    vmtags = []
    for n, x in enumerate(trace):
        if x.kind == "comment" and x.text.startswith("; @ASSERT"):
            idx = [i for i, t in enumerate(vmtags) if t == x.vm]
            if not idx or idx[-1] >= (done["vm"] if x.text.endswith("D") else bar_vm): errs.append(f"[{name}] #{n} ASSERT {x.vm} not complete at last barrier")
        if x.kind in ("label", "comment"): continue
        def err(m): errs.append(f"[{name}] #{n} '{x.text}': {m}")
        if x.kind == "wait" and "w0only" in x.text:
            pend.pop("v125", None); pos += 1; continue
        if x.kind == "wait":
            m = re.search(r"vmcnt\((\d+)\)", x.text)
            if m: done["vm"] = max(done["vm"], cnt["vm"] - int(m.group(1)))
            m = re.search(r"lgkmcnt\((\d+)\)", x.text)
            if m:
                v = int(m.group(1))
                if v == 0: smem_out = False
                if not smem_out: done["lg"] = max(done["lg"], cnt["lg"] - v)
            pos += 1; continue
        if x.kind == "barrier":
            bar_lg = done["lg"]; bar_vm = done["vm"]; pos += 1; continue
        if x.kind == "nop":
            pos += int(x.text.split()[1]) + 1; continue
        R, Wr = rw(x)
        mn = x.text.split()[0]
        for r in (R if x.tag == "touch" else R + Wr):
            if r in pend:
                c, i = pend[r]
                if x.kind == "vmem" and c == "vm" and r in Wr and r not in R and len(Wr) == 1: continue
                if i >= done[c]: err(f"reg {r} has pending {c} load #{i} (done {done[c]})")
                else: del pend[r]
        def dist(d, r): return pos - d[r] - 1 if r in d else 99
        if x.kind == "mfma":
            ops = [o.strip() for o in re.split(r",(?![^\[]*\])", x.text.partition(" ")[2])]
            D = regs(ops[0]); A = regs(ops[1]) + regs(ops[2]); C = regs(ops[3])
            for r in A + C:
                if dist(last_valu_w, r) < 2: err(f"VALU->MFMA {r} dist {dist(last_valu_w, r)}")
            for r in A:
                if r in last_mfma_w and pos - last_mfma_w[r][0] - 1 < DL[last_mfma_w[r][2]][0]: err(f"MFMA D->A/B {r}")
            for r in C:
                if r in last_mfma_w and last_mfma_w[r][1] != tuple(C) and pos - last_mfma_w[r][0] - 1 < DL[last_mfma_w[r][2]][1]: err(f"MFMA D->C overlap {r}")
            p = 8 if "32x32" in mn else 4
            for r in D:
                last_mfma_w[r] = (pos, tuple(D), p)
            for r in C: last_mfma_c[r] = (pos, p)
        else:
            if x.kind in ("valu", "trans", "vmem", "lds"):
                for r in R + Wr:
                    if r in last_mfma_w and pos - last_mfma_w[r][0] - 1 < DL[last_mfma_w[r][2]][0]: err(f"MFMA D->use {r} dist {pos - last_mfma_w[r][0] - 1}")
            if x.kind in ("valu", "trans"):
                for r in Wr:
                    if r in last_mfma_c and pos - last_mfma_c[r][0] - 1 < DL[last_mfma_c[r][1]][2]: err(f"MFMA C WAR {r}")
                    if dist(last_store, r) < 2: err(f"store data WAR {r}")
                if x.kind == "valu":
                    for r in R:
                        if dist(last_trans_w, r) < 1: err(f"trans->valu {r}")
                for r in R:
                    if r[0] in "s" and r[1:].isdigit() or r == "vcc":
                        if dist(last_valu_sw, r) < 2: err(f"VALU sgpr->VALU const {r}")
                if mn.startswith(("v_readlane", "v_readfirstlane")):
                    for r in R:
                        if dist(last_valu_w, r) < 1: err(f"VALU->readlane {r}")
                if mn.startswith("v_permlane") or "_dpp" in mn:
                    for r in R:
                        if dist(last_valu_w, r) < 2: err(f"VALU->permlane/dpp {r}")
            if x.kind == "vmem":
                for r in R:
                    if dist(last_valu_sw, r) < 5: err(f"VALU sgpr->VMEM {r}")
                if " lds" in x.text and dist(last_salu_w, "m0") < 1: err("m0->lds dma")
            if x.kind in ("vmem", "lds"):
                for r in Wr:
                    if dist(last_store, r) < 1: err(f"store data WAR(load) {r}")
        if x.kind == "lds":
            if x.rd:
                lo, hi, gen = x.rd
                if gen is not None:
                    if gen not in dmas: err(f"read of gen {gen} w/o dma")
                    elif max(dmas[gen]) >= bar_vm: err(f"read of gen {gen} not covered by vmcnt+barrier (dma {max(dmas[gen])} bar_vm {bar_vm})")
                reads.append((lo, hi, gen, cnt["lg"]))
            for r in Wr: pend[r] = ("lg", cnt["lg"])
            cnt["lg"] += 1
        elif x.kind == "smem":
            for r in Wr: pend[r] = ("lg", cnt["lg"])
            cnt["lg"] += 1; smem_out = True
        elif x.kind == "vmem" and "w0only" in x.text: pass
        elif x.kind == "vmem":
            if x.wr:
                lo, hi, gen = x.wr
                for (l2, h2, g2, li) in reads:
                    if g2 != gen and l2 < hi and lo < h2 and li >= bar_lg: err(f"DMA gen {gen} overwrites region read (gen {g2}) not retired before barrier"); break
                for g2, rng in getattr(check, "_rng", {}).items(): pass
                dmas[gen].append(cnt["vm"])
            for r in Wr: pend[r] = ("vm", cnt["vm"])
            if "store" in mn and ("x4" in mn or "x3" in mn):
                for r in regs(x.text.partition(" ")[2].split(",")[0] if mn.startswith("buffer") else x.text.split(",")[1]): last_store[r] = pos
            cnt["vm"] += 1; vmtags.append(x.tag)
        if x.kind in ("valu", "trans"):
            for r in Wr:
                if r[0] in "va" and r[1:].isdigit(): last_valu_w[r] = pos
                else: last_valu_sw[r] = pos
                if x.kind == "trans": last_trans_w[r] = pos
                elif r in last_trans_w: del last_trans_w[r]
        if x.kind == "salu":
            for r in Wr: last_salu_w[r] = pos
        pos += 1
    return errs

def text(trace):
    return "\n".join((x.text if x.label else "  " + x.text) for x in trace if not (x.kind == "comment" and "dropped" in x.text)) + "\n"

def _merge_wait(a, b):
    d = {}
    for t in (a, b):
        for nm, v in re.findall(r"(vmcnt|lgkmcnt)\((\d+)\)", t): d[nm] = min(d.get(nm, 99), int(v))
    return "s_waitcnt " + " ".join(f"{k}({d[k]})" for k in ("vmcnt", "lgkmcnt") if k in d)

def collapse(trace):
    names = []
    for x in trace:
        if x.text.startswith("; @IT "):
            n = x.text.split()[2]
            if n not in names: names.append(n)
    prog = list(trace)
    for nm in names:
        st = [i for i, x in enumerate(trace) if x.text == f"; @IT {nm}"]
        en = [i for i, x in enumerate(trace) if x.text == f"; @ENDIT {nm}"][0]
        its = [[x for x in trace[a + 1:b] if x.kind != "comment" and not getattr(x, "once", False)] for a, b in zip(st, st[1:] + [en])]
        n0 = len(its[0])
        for k, it in enumerate(its):
            bad = len(it) != n0 or any((x.text != y.text) and not (x.kind == "wait" and y.kind == "wait") for x, y in zip(it, its[0]))
            if bad:
                import difflib
                print("\n".join(list(difflib.unified_diff([x.text for x in its[0]], [x.text for x in it], lineterm="", n=2))[:50]))
                raise SystemExit(f"loop {nm}: iteration {k} differs")
        for i in range(n0):
            if its[0][i].kind == "wait":
                t = its[0][i].text
                for it in its[1:]: t = _merge_wait(t, it[i].text)
                for it in its: it[i].text = t
        a = [i for i, x in enumerate(prog) if x.text == f"; @IT {nm}"][0]
        b = [i for i, x in enumerate(prog) if x.text == f"; @ENDIT {nm}"][0]
        prog = prog[:a] + [Ins(f"L_{nm}:")] + its[0] + prog[b + 1:]
        print(f"loop {nm}: {len(its)} iterations x {n0} instrs")
    return trace, prog
```

```python
import sys, struct, math
from gen_core import *
from asmlib import build_file, NAME
from gen import srd, tr_addr, wdma_addr, lane_consts, MF
XN_OFF = 0; O_OFF = 4 << 20; H_OFF = 20 << 20; EX_OFF = 36 << 20; MB_REL = 16 << 20; TS_OFF = 104 << 20
STG = 45056
GST = [0, 90112, 45056]
PAIR = [131072, 98304, 65536, 32768, 0]
K2SLOT = [0, 16384, 32768, 49152, 131072, 147456]
FBSLOT0 = 98304
BRING = [176, 192, 208, 224, 240, 144]
AFR = [192, 200, 224, 232, 64, 72, 80, 88]
def b2reg(n, s, mb):
    b = BRING[n % 6] + (s * 2 + mb) * 4
    return f'a[{b}:{b+3}]'
f2u = lambda f: struct.unpack("<I", struct.pack("<f", f))[0]
QSCALE = f2u(math.log2(math.e) / math.sqrt(128.0))
LNLDS = 163840 - 512
STAMP = False
SC = " sc1"
NST = [0]
def stamp():
    if not STAMP: return []
    k = NST[0]; NST[0] += 1
    return L(f"s_memtime s[84:85]\ns_memrealtime s[86:87]\ns_waitcnt lgkmcnt(0)\nv_writelane_b32 v0, s84, {2*k}\nv_writelane_b32 v0, s86, {2*k+1}")
def stamp_store():
    if not STAMP: return []
    t = srd(8, 60, 61, 1 << 20, TS_OFF)
    t += L("s_lshl_b32 s62, s2, 10\ns_lshl_b32 s63, s33, 8\ns_add_u32 s62, s62, s63\nv_lshlrev_b32 v1, 2, v1\nv_add_u32 v1, s62, v1\nbuffer_store_dword v0, v1, s[8:11], 0 offen")
    return t
def once(lst):
    for x in lst: x.once = True
    return lst
def ASSERTD(tag):
    x = Ins("; @ASSERTD"); x.vm = tag; return x
def ASSERT(tag):
    x = Ins("; @ASSERT"); x.vm = tag; return x

def gen_fused(P=None):
    P = dict(dict(LA=2, LA2=4, thr=f2u(2.0 ** 24), touch0=1, touch=1, ocap=3, slp0=0, slp=2, xsp=3, wsp=5, lb=56, ctouch=1, order=2, sync=1, ocap2=4, flt=2, pub5=60, fl5=16), **(P or {}))
    NST[0] = 0
    LA = P["LA"]; LA2 = P["LA2"]
    ool = []
    pro = L("""
    s_cmp_ge_u32 s2, 256
    s_cbranch_scc1 L_end
    s_load_dwordx2 s[92:93], s[0:1], 0      ; x
    s_load_dwordx4 s[48:51], s[0:1], 8      ; K, V
    s_load_dwordx4 s[52:55], s[0:1], 24
    s_load_dwordx4 s[56:59], s[0:1], 48
    s_load_dwordx4 s[72:75], s[0:1], 64
    s_load_dwordx4 s[60:63], s[0:1], 80
    """)
    pro += lane_consts()
    pro += L("""
    s_lshr_b32 s34, s2, 3
    s_and_b32 s35, s2, 1
    s_lshl_b32 s35, s35, 2
    s_and_b32 s32, s34, 3
    s_add_u32 s32, s32, s35           ; rb
    s_bfe_u32 s35, s2, 0x20001
    s_lshr_b32 s34, s34, 2
    s_lshl_b32 s3, s35, 3
    s_add_u32 s34, s34, s3            ; j
    s_lshl_b32 s3, s32, 5
    s_add_u32 s3, s3, s34
    s_lshl_b32 s4, s3, 3
    v_and_b32 v32, 7, v1
    v_add_u32 v33, s4, v32            ; row
    v_lshlrev_b32 v34, 11, v33
    v_lshrrev_b32 v35, 3, v1
    s_lshl_b32 s4, s33, 3
    v_add_u32 v35, s4, v35            ; kstep s
    v_lshl_add_u32 v34, v35, 6, v34
    s_mov_b32 s94, 0x400000
    s_mov_b32 s95, 0x20000
    s_waitcnt lgkmcnt(0)
    """)
    for i in range(4): pro += [Ins(f"buffer_load_dwordx4 v[{64+4*i}:{67+4*i}], v34, s[92:95], 0 offen offset:{16*i}", tag="x")]
    pro += stamp()
    defer = []
    dst = (lambda: defer) if P["order"] else (lambda: pro)
    if P["ctouch"]:
        pro += L(f"""
        s_getpc_b64 s[72:73]
        """) * 0
        dst().extend(L(f"""
        s_getpc_b64 s[84:85]
        L_pc:
        s_sub_u32 s84, s84, L_pc-{NAME}_kernel
        s_subb_u32 s85, s85, 0
        s_lshr_b32 s86, s2, 3
        s_lshl_b32 s86, s86, 2
        s_add_u32 s86, s86, s33
        s_and_b32 s86, s86, 31
        s_lshl_b32 s86, s86, 12
        v_lshl_add_u32 v124, v1, 6, s86
        s_mov_b32 s87, L_code_end-{NAME}_kernel-4
        v_min_u32 v124, s87, v124
        """) + [Ins("global_load_dword v124, v124, s[84:85]", tag="touch")])
    pro += L("s_mov_b32 s44, s60\ns_mov_b32 s45, s61\ns_mov_b32 s46, 256\ns_mov_b32 s47, 0x20000\ns_mov_b32 s60, s62\ns_mov_b32 s61, s63")
    pro += L("s_lshl_b32 s62, s34, 8")
    pro += wdma_addr(7, 8192, "s62", t0=36, st=63)
    pro += L(f"""
    s_lshr_b32 s62, s34, 1
    s_mul_i32 s62, s62, 448
    s_and_b32 s63, s34, 1
    s_lshl_b32 s70, s63, 8
    s_add_u32 s70, s70, s62           ; colP
    s_lshl_b32 s71, s63, 5
    s_add_u32 s71, s71, s62
    s_add_u32 s71, s71, 192           ; colX
    v_lshrrev_b32 v36, 5, v1
    v_lshlrev_b32 v36, 3, v36
    v_bfe_u32 v37, v1, 2, 3
    v_add_u32 v36, v36, v37
    s_lshl_b32 s62, s33, 4
    v_add_u32 v36, s62, v36
    s_movk_i32 s62, 7168
    v_mul_lo_u32 v11, v36, s62
    v_bfe_u32 v36, v1, 4, 1
    v_lshlrev_b32 v36, 1, v36
    v_and_b32 v37, 3, v1
    v_xor_b32 v36, v36, v37
    v_lshl_add_u32 v11, v36, 4, v11
    s_add_u32 s70, s70, 4096
    v_add_u32 v11, s70, v11
    v_subrev_u32 v12, 960, v11
    v_subrev_u32 v13, 1920, v11
    v_lshrrev_b32 v36, 1, v1
    s_and_b32 s63, s33, 1
    s_lshl_b32 s63, s63, 5
    v_add_u32 v36, s63, v36
    v_mul_lo_u32 v14, v36, s62
    v_and_b32 v37, 1, v1
    v_lshl_add_u32 v14, v37, 4, v14
    s_add_u32 s71, s71, 4096
    v_add_u32 v14, s71, v14
    s_lshl_b32 s5, s33, 12
    s_mul_i32 s6, s33, 3072
    s_lshl_b32 s7, s33, 10
    """)
    pro += srd(8, 52, 53, 8 << 20) + srd(12, 56, 57, (7 << 20) + 4096, -4096) + srd(16, 58, 59, (7 << 20) + 4096, -4096)
    pro += L("s_cmp_lt_u32 s33, 2\ns_cselect_b32 s20, s12, s16\ns_cselect_b32 s21, s13, s17") + L(f"s_mov_b32 s22, {(7<<20)+4096:#x}\ns_mov_b32 s23, 0x20000")
    pro += srd(76, 54, 55, 8 << 20) + srd(80, 72, 73, 7 << 20) + srd(96, 74, 75, 4 << 20)
    pro += L("s_mov_b32 s52, 0\ns_mov_b32 s53, 0\ns_mov_b32 s54, 0")
    pro += L(f"s_mov_b32 s90, {GST[0]}\ns_mov_b32 s88, {GST[1]}\ns_mov_b32 s89, {GST[2]}")
    def wloads(t):
        sb = GST[t % 3]
        reg = (sb, sb + STG, ("G", t)); tag = ("W", t)
        r = [Ins("s_add_u32 m0, s5, s90")]
        r += [Ins(f"buffer_load_dwordx4 v{7+z}, s[8:11], s52 offen offset:{z*1024} lds", tag=tag, wr=reg) for z in range(4)]
        r += [Ins("s_add_u32 s100, s6, s90"), Ins("s_add_u32 m0, s100, 16384")]
        r += [Ins(f"buffer_load_dwordx4 v{11+z}, s[12:15], s53 offen offset:{z*1024} lds", tag=tag, wr=reg) for z in range(3)]
        r += [Ins("s_add_u32 m0, s100, 28672")]
        r += [Ins(f"buffer_load_dwordx4 v{11+z}, s[16:19], s53 offen offset:{z*1024} lds", tag=tag, wr=reg) for z in range(3)]
        r += [Ins("s_add_u32 s100, s7, s90"), Ins("s_add_u32 m0, s100, 40960")]
        r += [Ins(f"buffer_load_dwordx4 v14, s[20:23], s53 offen lds", tag=tag, wr=reg)]
        r += [Ins("s_add_u32 s52, s52, 0x80000"), Ins("s_add_u32 s53, s53, 0x70000")]
        r += L("s_mov_b32 s100, s90\ns_mov_b32 s90, s88\ns_mov_b32 s88, s89\ns_mov_b32 s89, s100")
        return r
    def breg(t, s, mb):
        k = (s * 4 + mb) * 4
        return f"v[{64+k}:{67+k}]" if t % 2 == 0 else f"a[{224+k}:{227+k}]"
    def xloads(t):
        r = [Ins(f"buffer_load_dwordx4 {breg(t, s, mb)}, v{15+s}, s[24:27], s54 offen offset:{mb*1024}{SC}", tag=("X", t)) for s in range(2) for mb in range(4)]
        r += [Ins("s_add_u32 s54, s54, 0x2000")]
        return r
    wl0 = wloads(0); wl1 = wloads(1); late_w1 = []
    if P['order'] == 1: defer[:0] = wl0 + wl1
    elif P['order'] == 2: pro += wl0; defer[:0] = wl1
    elif P['order'] == 3: defer[:0] = wl0; late_w1 = wl1
    elif P['order'] == 4: pro += wl0; late_w1 = wl1
    elif P['order'] == 5: pro += wl0; defer[:0] = wl1
    else: pro += wl0 + wl1
    pro += L("""
    s_lshl_b32 s62, s2, 2
    s_add_u32 s62, s62, s33
    s_lshl_b32 s63, s62, 12
    v_lshlrev_b32 v31, 6, v1
    v_add_u32 v31, s63, v31
    s_lshl_b32 s63, s62, 10
    v_and_b32 v30, 15, v1
    v_lshlrev_b32 v30, 6, v30
    v_add_u32 v30, s63, v30
    """)
    def touch(v, sr, off):
        return [Ins(f"s_mov_b32 s62, {off:#x}"), Ins(f"buffer_load_dword v127, v{v}, s[{sr}:{sr+3}], s62 offen", tag="touch")]
    if P["touch0"]:
        dst().extend(touch(30, 8, 128 * 8192) + touch(30, 12, 4096 + 128 * 7168) + touch(30, 16, 4096 + 128 * 7168))
    pro += srd(64, 60, 61, MB_REL + 32768, EX_OFF)
    pro += L(f"""
    s_lshl_b32 s62, s3, 7
    s_add_u32 s62, s62, {MB_REL:#x}
    v_and_b32 v36, 31, v1
    v_add_u32 v28, s62, v1
    s_lshl_b32 s62, s32, 12
    s_add_u32 s62, s62, s34
    s_add_u32 s62, s62, {MB_REL:#x}
    v_lshl_add_u32 v29, v36, 7, s62
    v_mov_b32 v37, 0x7fff0000
    v_lshrrev_b32 v38, 5, v1
    v_or_b32 v38, s33, v38
    v_cmp_eq_u32 vcc, 0, v38
    v_mov_b32 v126, 0
    s_nop 0
    v_cndmask_b32 v29, v37, v29, vcc
    s_cmp_eq_u32 s33, 0
    s_cselect_b32 s70, 0, 0x40000000
    v_or_b32 v38, s33, v1
    v_cmp_eq_u32 vcc, 0, v38
    v_mov_b32 v36, s3
    s_lshl_b32 s62, s32, 5
    v_cndmask_b32 v27, v37, v36, vcc
    v_and_b32 v26, 31, v1
    v_add_u32 v26, s62, v26
    """)
    if P.get("lnst"): pro += stamp()
    pro += L(f"s_mov_b32 s62, 0xffff0000") + [W(vm="x")]
    if P.get("lnst"): pro += stamp()
    for e in range(32):
        pro += L(f"v_lshlrev_b32 v{80+e}, 16, v{64+e//2}" if e % 2 == 0 else f"v_and_b32 v{80+e}, s62, v{64+e//2}")
    def red8(v):
        return L(f"""
        s_nop 1
        v_add_f32_dpp v{v}, v{v}, v{v} row_ror:8 row_mask:0xf bank_mask:0xf
        v_mov_b32 v40, v{v}
        s_nop 1
        v_permlane16_swap_b32 v{v}, v40
        v_add_f32 v{v}, v{v}, v40
        v_mov_b32 v40, v{v}
        s_nop 1
        v_permlane32_swap_b32 v{v}, v40
        v_add_f32 v{v}, v{v}, v40
        """)
    pro += L("v_add_f32 v36, v80, v81\nv_add_f32 v37, v82, v83")
    for e in range(4, 32, 2): pro += L(f"v_add_f32 v36, v36, v{80+e}\nv_add_f32 v37, v37, v{81+e}")
    pro += L("v_add_f32 v36, v36, v37") + red8(36) + L("v_mul_f32 v36, 0x3b800000, v36")
    pro += L("v_sub_f32 v38, v80, v36\nv_sub_f32 v39, v81, v36\nv_mul_f32 v37, v38, v38\nv_mul_f32 v41, v39, v39")
    for e in range(2, 32, 2): pro += L(f"v_sub_f32 v38, v{80+e}, v36\nv_sub_f32 v39, v{81+e}, v36\nv_fmac_f32 v37, v38, v38\nv_fmac_f32 v41, v39, v39")
    pro += L("v_add_f32 v37, v37, v41") + red8(37)
    pro += L(f"""
    v_lshlrev_b32 v38, 5, v32
    v_add_u32 v38, {LNLDS:#x}, v38
    s_lshl_b32 s63, s33, 3
    v_add_u32 v39, s63, v38
    ds_write_b64 v39, v[36:37]
    s_waitcnt lgkmcnt(0)
    s_barrier
    ds_read_b128 v[44:47], v38
    ds_read_b128 v[48:51], v38 offset:16
    v_lshrrev_b32 v42, 6, v33
    v_lshlrev_b32 v42, 17, v42
    v_lshl_add_u32 v42, v35, 12, v42
    v_bfe_u32 v43, v33, 4, 2
    v_lshl_add_u32 v42, v43, 10, v42
    v_and_b32 v43, 15, v33
    v_lshl_add_u32 v42, v43, 4, v42
    """)
    pro += srd(24, 60, 61, 4 << 20, XN_OFF)
    pro += L("""
    s_waitcnt lgkmcnt(0)
    v_add_f32 v36, v44, v46
    v_add_f32 v37, v48, v50
    v_add_f32 v36, v36, v37
    v_mul_f32 v36, 0.25, v36
    v_add_f32 v37, v45, v47
    v_add_f32 v38, v49, v51
    v_add_f32 v37, v37, v38
    v_sub_f32 v44, v44, v36
    v_sub_f32 v46, v46, v36
    v_sub_f32 v48, v48, v36
    v_sub_f32 v50, v50, v36
    v_mul_f32 v38, v44, v44
    v_fmac_f32 v38, v46, v46
    v_fmac_f32 v38, v48, v48
    v_fmac_f32 v38, v50, v50
    v_fmac_f32 v37, 0x43800000, v38
    v_mul_f32 v37, 0x3a800000, v37
    v_cvt_pk_bf16_f32 v38, v36, v37
    v_lshlrev_b32 v36, 16, v38
    v_and_b32 v37, s62, v38
    v_add_f32 v37, 0x3727c5ac, v37
    v_cvt_pk_bf16_f32 v37, v37, v37
    v_and_b32 v37, s62, v37
    v_sqrt_f32 v37, v37
    s_nop 0
    v_cvt_pk_bf16_f32 v37, v37, v37
    v_and_b32 v37, s62, v37
    v_rcp_f32 v37, v37
    """)
    for e in range(32): pro += L(f"v_sub_f32 v{80+e}, v{80+e}, v36")
    for q in range(16): pro += L(f"v_cvt_pk_bf16_f32 v{64+q}, v{80+2*q}, v{81+2*q}")
    for e in range(32):
        pro += L(f"v_lshlrev_b32 v{80+e}, 16, v{64+e//2}" if e % 2 == 0 else f"v_and_b32 v{80+e}, s62, v{64+e//2}")
    for e in range(32): pro += L(f"v_mul_f32 v{80+e}, v{80+e}, v37")
    for g in range(4):
        for h, q in enumerate((2 * g, 2 * g + 1, 8 + 2 * g, 9 + 2 * g)):
            pro += L(f"v_cvt_pk_bf16_f32 v{64+g*4+h}, v{80+2*q}, v{81+2*q}")
        pro += [Ins(f"buffer_store_dwordx4 v[{64+g*4}:{67+g*4}], v42, s[24:27], 0 offen offset:{g*256}{SC}", tag="xn")]
    pro += L(f"buffer_store_byte v126, v28, s[64:67], s70 offen{SC}")
    if P.get("lnst"): pro += stamp()
    pro += L("s_nop 0\nv_mov_b32 v126, 1")
    pro += tr_addr(96, 0, True, 1024, 36) + tr_addr(97, 1, True, 1024, 36) + tr_addr(98, 0, False, 512, 36) + tr_addr(99, 1, False, 512, 36)
    pro += L("v_lshlrev_b32 v100, 3, v1")
    for i in range(5): pro += L(f"v_mov_b32 v{2+i}, v{96+i}")
    if P.get("lnst"): pro += [W(vm="all")] + stamp()
    if P["sync"] == 0:
        pro += [W(vm="all"), Ins("s_barrier"), Ins(f"buffer_store_byte v126, v27, s[44:47], 0 offen{SC}", tag="flag")]
    else:
        pro += L("v_and_b32 v27, 0xffffffe0, v27\nv_mov_b32 v125, 1")
        pro += [W(vm="all"), Ins("s_barrier"), Ins(f"buffer_atomic_add v125, v27, s[44:47], 0 offen sc0 sc1", tag="flag")]
    pro += stamp()
    if P["sync"]:
        pro += [W(vm="flag")] + L(f"""
        v_readfirstlane_b32 s70, v125
        s_sub_u32 s63, 48, s34
        s_cmp_eq_u32 s70, 31
        s_cselect_b32 s62, s63, 0x40000000
        buffer_store_byte v126, v29, s[64:67], s62 offen{SC}
        """)
    if P["order"] == 5:
        def cp(lst, m):
            o = []
            for x in fix_m0(lst):
                y = x.copy(); y.text = y.text.replace("L_pc", "L_pc" + m) + ("" if y.label else " ; opt" + m); o.append(y)
            return o
        pro += L("s_cmp_eq_u32 s33, 0\ns_cbranch_scc1 L_skipA") + cp(defer, "A") + L("L_skipA:")
        late_w1 = L("s_cmp_lg_u32 s33, 0\ns_cbranch_scc1 L_skipB") + cp(defer, "B") + L("L_skipB:")
    else: pro += defer
    pro += L(f"""
    s_lshl_b32 s62, s32, 2
    s_add_u32 s62, s62, s33
    s_lshl_b32 s63, s62, 17
    v_lshlrev_b32 v25, 4, v1
    v_add_u32 v15, s63, v25
    v_add_u32 v16, 0x1000, v15
    s_lshl_b32 s62, s35, 19
    s_add_u32 s62, s62, {1536*256:#x}
    s_add_u32 s28, s48, s62
    s_addc_u32 s29, s49, 0
    s_mov_b32 s30, 0x20000
    s_mov_b32 s31, 0x20000
    s_add_u32 s36, s50, s62
    s_addc_u32 s37, s51, 0
    s_mov_b32 s38, 0x20000
    s_mov_b32 s39, 0x20000
    v_lshrrev_b32 v36, 4, v1
    v_and_b32 v37, 15, v1
    v_lshl_add_u32 v38, v36, 8, s5
    """)
    pro += srd(40, 60, 61, 16 << 20, O_OFF)
    for z in range(4):
        pro += L(f"v_add_u32 v39, {4*z}, v36\nv_xor_b32 v39, v39, v37\nv_lshl_add_u32 v{17+z}, v39, 4, v38")
    pro += wdma_addr(21, 256, "0", t0=40, st=63)
    pro += L("s_mov_b32 s55, 0\ns_mov_b32 s56, 0\ns_mov_b32 s57, -1\ns_mov_b32 s91, 6")
    for i in range(224): pro += L(f"v_accvgpr_write_b32 a{i}, 0")
    for i in range(128, 256, 2): pro += L(f"v_mov_b64 v[{i}:{i+1}], 0")
    if P["sync"] == 0:
        pro += [W(vm=("W", 0))]
        pro += L(f"""
        s_cmp_lg_u32 s33, 0
        s_cbranch_scc1 L_x_go
        s_mov_b32 s70, 0x40000
        s_sleep {P['slp0']}
        L_x_poll:
        buffer_load_ubyte v125, v26, s[44:47], 0 offen{SC} ; w0only
        s_waitcnt vmcnt(0) ; w0only
        v_cmp_gt_u32 vcc, 1, v125
        s_sub_u32 s70, s70, 1
        s_cbranch_scc1 L_x_go
        s_cbranch_vccz L_x_go
        s_sleep {P['slp']}
        s_branch L_x_poll
        L_x_go:
        s_barrier
        """)
    else:
        pro += [W(vm=("W", 0))]
        pro += L(f"""
        s_cmp_lg_u32 s33, 0
        s_cbranch_scc1 L_x_go
        s_mov_b32 s70, 0x40000
        L_x_poll:
        buffer_load_ubyte v125, v28, s[64:67], 0 offen{SC} ; w0only
        s_waitcnt vmcnt(0) ; w0only
        v_readlane_b32 s62, v125, 48
        s_sub_u32 s70, s70, 1
        s_cbranch_scc1 L_x_go
        s_cmp_eq_u32 s62, 0
        s_cbranch_scc1 L_x_poll
        L_x_go:
        s_barrier
        """)
    pro += stamp() + (xloads(0) + late_w1 + xloads(1) if not P.get('o6') else xloads(0) + xloads(1) + [W(vm=('X', 0))] + late_w1)
    pro += srd(44, 60, 61, 14 << 20, H_OFF)
    pro += stamp()
    def kvloads(tau, dyn):
        r = []
        for v in range(2):
            sb = PAIR[tau % 5] + v * 16384; i = 2 * tau + v; reg = (sb, sb + 16384, ("KV", i)); tag = ("KV", i)
            r.append(Ins(f"s_add_u32 m0, s89, {v*16384}" if dyn else f"s_add_u32 m0, s5, {sb:#x}"))
            for z in range(4):
                r.append(Ins(f"buffer_load_dwordx4 v{(21 if v else 17)+z}, s[{36 if v else 28}:{39 if v else 31}], s55 offen offset:{z*1024} lds", tag=tag, wr=reg))
        r.append(Ins("s_add_u32 s55, s55, 0x4000"))
        return r
    blocks = []
    for p in range(3):
        for e in range(2):
            for m in range(2):
                bi = (p * 2 + e) * 2 + m
                blocks.append((4 + e, (lambda s, r, p=p, m=m: 16384 + m * 12288 + (2 * s + r) * 3072 + p * 1024), "a", bi * 16))
    for m in range(2):
        blocks.append((6, (lambda s, r, m=m: 40960 + m * 2048 + s * 1024 + r * 512), "a", (12 + m) * 16))
    for nb in range(8):
        b32, e = nb >> 1, nb & 1
        blocks.append((2 + e, (lambda s, r, b32=b32: (b32 >> 1) * 8192 + (b32 & 1) * 512 + s * 4096 + r * 2048), "v", 128 + nb * 16))
    NB = len(blocks); T = 16; TM = NB * 8
    gg = [(t, nb) for t in range(14) for nb in range(NB)] + [(14, nb) for nb in range(14)] + [(15, nb) for nb in range(14)] + [(14, nb) for nb in range(14, 22)] + [(15, nb) for nb in range(14, 22)]
    gidx = {k: i for i, k in enumerate(gg)}
    sc = Sched(2)
    for G, (t, nb) in enumerate(gg):
        va, imm, ak, ab = blocks[nb]; fb = 32 + (G % 4) * 8
        for mb in range(4):
            for s in range(2):
                ac = f"{ak}[{ab+mb*4}:{ab+mb*4+3}]"
                sc.mfma(f"{MF} {ac}, v[{fb+s*4}:{fb+s*4+3}], {breg(t, s, mb)}, {ac}")
    def rd(G):
        t, nb = gg[G]; va, imm, _, _ = blocks[nb]; fb = 32 + (G % 4) * 8; sb = GST[t % 3]
        return [Ins(f"ds_read_b64_tr_b16 v[{fb+s*4+r*2}:{fb+s*4+r*2+1}], v{va} offset:{imm(s, r)}", tag=("P", G), rd=(sb, sb + STG, ("G", t))) for s in range(2) for r in range(2)]
    LB = P['lb']
    for it in range(8):
        g = 2 * it * TM + LB
        if it == 0: sc.used[g] += 2
        else: sc.fixed_front(g, L("s_sub_u32 s91, s91, 1\ns_cbranch_scc0 L_G"))
        sc.fixed_front(g, Ins("; @IT G" if it < 7 else "; @ENDIT G"))
    for t in range(0, T):
        g0 = gidx[(t, 0)] * 8
        if t >= 1: sc.fixed_front(g0 - 8 * LA, [W(vm=("W", t)), Ins("s_barrier")])
        sc.fixed_back(g0, W(vm=("X", t)))
    for G in range(len(gg)): sc.fixed_back(G * 8, W(lg=("P", G)))
    d15 = GST[0] - GST[2]
    for G, (t, nb) in enumerate(gg):
        upd = []
        if nb == 0 and 0 < t < 15: upd = [f"v_add_u32 v{va}, s88, v{94+va}" for va in range(2, 7)]
        if (t, nb) == (15, 0): upd = [f"v_subrev_u32 v{va}, {-d15:#x}, v{va}" for va in (4, 5, 6)]
        if (t, nb) == (15, 14): upd = [f"v_subrev_u32 v{va}, {-d15:#x}, v{va}" for va in (2, 3)]
        for u_ in upd: sc.flow("lds", 8 * (G - LA) - 3, Ins(u_), deadline=8 * (G - LA))
        for i, x in enumerate(rd(G)): sc.flow("lds", 8 * (G - LA) + i, x, deadline=8 * (G - 1) + 2)
    for t in range(1, 15): sc.fixed_front(t * TM + 2, Ins("s_barrier"))
    def vflow(S, g, its, sp, dl=None):
        for x in its:
            if x.kind == "vmem": x.cost = 2
            g = S.flow("vm", g if dl is None else min(g, dl), x, mingap=(1 if x.kind == "vmem" and S.qpos.get("vm") != dl else 0), deadline=dl) + (sp if x.kind == "vmem" else 0)
        return g
    for t in range(0, 15):
        g = t * TM + 1
        if t == 0:
            its = []
            if P["touch"]:
                its += touch(31, 8, 256 * 8192) + touch(31, 12, 4096 + 256 * 7168) + touch(31, 16, 4096 + 256 * 7168)
                its += touch(31, 8, 512 * 8192) + touch(31, 12, 4096 + (3 << 20)) + touch(31, 16, 4096 + (3 << 20)) + touch(30, 28, 0) + touch(30, 36, 0)
            g = vflow(sc, g, its, P["xsp"] - 1)
        else: g = vflow(sc, g, xloads(t + 1), P["xsp"])
        assert g < t * TM + LB + P["xsp"], g - t * TM
        g = t * TM + LB + 1
        items = wloads(t + 2) if t + 2 < T else []
        if t == 14:
            items += kvloads(0, False) + kvloads(1, False)
            if P["touch"]: items += touch(31, 80, 0) + touch(31, 80, 3 << 20) + touch(31, 76, 0) + touch(31, 76, 4 << 20)
        g = vflow(sc, g, items, P["wsp"] if t < 14 else 3)
        assert g < (t + 1) * TM - 8 * LA - 4 + P["wsp"] or t >= 14, g - t * TM
    g0 = 14 * TM + LB + 1
    hs = L(f"""
    s_lshl_b32 s62, s32, 2
    s_add_u32 s62, s62, s33           ; mb64
    s_mul_i32 s63, s62, {112*4096}
    s_lshr_b32 s3, s34, 1
    s_mul_i32 s3, s3, 7
    s_and_b32 s4, s34, 1
    s_lshl_b32 s52, s4, 2
    s_add_u32 s52, s52, s3
    s_lshl_b32 s52, s52, 12
    s_add_u32 s52, s52, s63           ; P base
    s_add_u32 s3, s3, 3
    s_lshl_b32 s3, s3, 12
    s_add_u32 s3, s3, s63
    s_lshl_b32 s4, s4, 3
    s_add_u32 s3, s3, s4
    s_add_u32 s53, s52, 4096
    s_add_u32 s54, s52, 8192
    s_mov_b32 s72, s63
    s_lshl_b32 s75, s62, 19
    s_mov_b32 s70, {QSCALE:#x}
    s_mov_b32 s71, s70
    """)
    for x in hs: sc.flow("hd", sc.qpos["vm"] + 1, x)
    k = 0
    for p in range(4):
        ne = 2 if p < 3 else 1
        for mb in range(4):
            tb = 96; ob = 112 + (k % 3) * 4; k += 1
            last = gidx[(15, 4 * p + 3 if p < 3 else 13)] * 8 + mb * 2 + 1
            g = last + 6
            for e in range(ne):
                bi = (p * 2 + e) * 2 if p < 3 else 12
                for i in range(4):
                    sc.flow("hd", g, Ins(f"v_accvgpr_read_b32 v{tb+e*4+i}, a{bi*16+mb*4+i}")); sc.flow("hd", g, Ins(f"v_accvgpr_read_b32 v{tb+8+e*4+i}, a{(bi+1)*16+mb*4+i}"))
            for q in range(4 * ne): sc.flow("hd", g, Ins(f"v_mul_f32 v{tb+q}, v{tb+q}, v{tb+8+q}"))
            for q in range(2 * ne): sc.flow("hd", g, Ins(f"v_cvt_pk_bf16_f32 v{ob+q}, v{tb+2*q}, v{tb+2*q+1}"))
            if p < 3: x = Ins(f"buffer_store_dwordx4 v[{ob}:{ob+3}], v25, s[44:47], s{52+p} offen offset:{mb*1024}{SC}", tag="Hst")
            else: x = Ins(f"buffer_store_dwordx2 v[{ob}:{ob+1}], v25, s[44:47], s3 offen offset:{mb*1024}{SC}", tag="Hst")
            sc.flow("hd", g, x)
    def qfr(qb, be): return 128 + 32 * be + 4 * qb
    for be in range(4):
        g = gidx[(15, 14 + 2 * be + 1)] * 8 + 7 + 6
        for qb in range(4):
            a = qfr(qb, be); b = a + 16
            for r in (a, a + 1, a + 2, a + 3, b, b + 1, b + 2, b + 3): sc.flow("qp", g, Ins(f"v_mul_f32 v{r}, s70, v{r}"))
            for h, r in enumerate((a, a + 2, b, b + 2)): sc.flow("qp", g, Ins(f"v_cvt_pk_bf16_f32 v{a+h}, v{r}, v{r+1}"))
        sw_ = L("s_mov_b64 exec, s[56:57]") + sum([L(f"v_swap_b32 v{qfr(qb, be)}, v{qfr(qb, be)+2}\nv_swap_b32 v{qfr(qb, be)+1}, v{qfr(qb, be)+3}") for qb in range(4)], []) + L("s_mov_b64 exec, -1")
        sc.flowg("qp", len(sc.mf), sw_)
    tail = sc.mid[len(sc.mf)]; nt = []
    i = 0
    while i < len(tail):
        x = tail[i]
        if i + 1 < len(tail) and x.text.startswith("v_mul_f32") and tail[i + 1].text.startswith("v_mul_f32"):
            o1 = [o.strip() for o in x.text[10:].split(",")]; o2 = [o.strip() for o in tail[i + 1].text[10:].split(",")]
            r = int(o1[0][1:])
            if r % 2 == 0 and int(o2[0][1:]) == r + 1:
                if o1[1] == "s70": nt.append(Ins(f"v_pk_mul_f32 v[{r}:{r+1}], v[{r}:{r+1}], s[70:71]"))
                else:
                    q = int(o1[2][1:]); nt.append(Ins(f"v_pk_mul_f32 v[{r}:{r+1}], v[{r}:{r+1}], v[{q}:{q+1}]"))
                i += 2; continue
        nt.append(x); i += 1
    print("G", sc.stats()[:50], "exposed tail instrs", len(nt))
    sc.mid[len(sc.mf)] = stamp() + L("s_nop 7") + nt
    G_ = sc.emit()
    mid = L("""
    v_and_b32 v116, 3, v1
    v_cmp_eq_u32 vcc, 0, v116
    v_mov_b32 v117, 0x3f803f80
    v_lshrrev_b32 v118, 4, v1
    v_cndmask_b32 v112, 0, v117, vcc
    v_cndmask_b32 v113, 0, v117, vcc
    v_cndmask_b32 v114, 0, v117, vcc
    v_cndmask_b32 v115, 0, v117, vcc
    v_and_b32 v119, 15, v1
    """)
    for b in range(4):
        mid += L(f"v_add_u32 v120, {4*b}, v118\nv_xor_b32 v120, v120, v119\nv_lshlrev_b32 v120, 4, v120\nv_lshl_add_u32 v{11+b}, v119, 8, v120\nv_add_u32 v{11+b}, {PAIR[0]:#x}, v{11+b}")
    mid += L(f"s_mov_b32 s100, 0xffff8000\ns_mov_b32 s101, 0x20000\ns_add_u32 s4, s5, {PAIR[0]:#x}")
    mid += stamp()
    late = tr_addr(15, 0, False, 1024, 120) + tr_addr(16, 1, False, 1024, 120)
    late += L(f"v_add_u32 v15, {PAIR[0]+16384+32768:#x}, v15\nv_add_u32 v16, {PAIR[0]+16384+32768:#x}, v16")
    late2 = L(f"""
    v_add_u32 v6, 0x20000, v2
    v_add_u32 v30, 0x20000, v3
    s_lshr_b32 s48, s34, 4            ; type
    s_bfe_u32 s49, s34, 0x30001
    s_lshl_b32 s49, s49, 8            ; ct bytes
    s_lshl_b32 s73, s34, 14
    s_add_u32 s53, s75, s73           ; O store base
    s_and_b32 s50, s34, 1
    s_lshl_b32 s51, s32, 1
    s_add_u32 s50, s50, s51           ; rt
    s_lshl_b32 s51, s50, 1
    s_lshr_b32 s73, s33, 1
    s_add_u32 s51, s51, s73           ; mb64 of K2 rows
    s_mul_i32 s71, s48, {1792*2048}
    s_mul_i32 s72, s51, {112*4096}
    s_mul_i32 s73, s48, {56*4096}
    s_add_u32 s72, s72, s73
    s_lshl_b32 s74, s48, 22
    s_lshl_b32 s75, s51, 19
    s_lshl_b32 s73, s48, 18
    s_add_u32 s75, s75, s73
    s_and_b32 s73, s33, 1
    s_lshl_b32 s73, s73, 11
    v_add_u32 v26, s73, v25
    v_add_u32 v27, 0x1000, v26
    s_mov_b64 s[8:9], s[80:81]
    s_mov_b32 s10, s82
    s_mov_b64 s[12:13], s[44:45]
    s_mov_b32 s14, s46
    s_mov_b32 s88, 3
    s_mov_b32 s91, 4
    """) + wdma_addr(7, 2048, "0", t0=120, st=63) + L("s_lshl_b32 s63, s48, 7\ns_xor_b32 s63, s63, 128")
    for z in range(4): late2 += L(f"v_xor_b32 v{7+z}, s63, v{7+z}\nv_add_u32 v{7+z}, s49, v{7+z}")
    at = Sched(2)
    qk0 = {}; pv0 = {}
    KR = 11; VR = 15
    def sbl(u, qb, kb): return 144 + 64 * (u % 2) + 32 * kb + 4 * qb
    def kfb(u, kb, be):
        f = (144 if u % 2 else 64) + (kb * 4 + be) * 4
        return f"{'a' if u % 2 else 'v'}[{f}:{f+3}]"
    def qk_list(u, first, kf):
        r = []
        for qb in range(4):
            for kb in range(2):
                d = sbl(u, qb, kb)
                for be in range(4):
                    c = f"v[{d}:{d+3}]" if be else ("0" if first else f"v[{96+qb*4}:{99+qb*4}]")
                    q = qfr(qb, be)
                    r.append(f"{MF} v[{d}:{d+3}], {kf(kb, be)}, v[{q}:{q+3}], {c}")
        return r
    def dborder(u): return [8, 0, 1, 2, 3, 4, 5, 6, 7] if u == 15 else list(range(9))
    def pv_list(u, vf, first=False):
        r = []
        for db in dborder(u):
            for qb in range(4):
                ac = (db * 4 + qb) * 4; pf = sbl(u, qb, 0)
                a = vf(db) if db < 8 else "v[112:115]"
                r.append(f"{MF} a[{ac}:{ac+3}], {a}, v[{pf}:{pf+3}], {'0' if first else f'a[{ac}:{ac+3}]'}")
        return r
    def QK(u):
        qk0[u] = len(at.mf)
        for m in qk_list(u, u == 0, lambda kb, be: kfb(u, kb, be)): at.mfma(m)
    def PV(u):
        pv0[u] = len(at.mf)
        for m in pv_list(u, lambda db: f"v[{32+db*4}:{35+db*4}]", u == 0): at.mfma(m)
    QK(0); QK(1)
    for u in range(14): PV(u); QK(u + 2)
    PV(14); PV(15)
    NU = 16
    def pvpos(u, db): return pv0[u] + dborder(u).index(db) * 4
    kb0 = len(at.mf)
    NT = 60; R2 = 6; NN = 54; PD = 5
    grp = [(n, nb) for n in range(NN) for nb in range(8)] + [(n, nb) for n in range(NN, NT) for nb in range(4)] + [(n, nb) for n in range(NN, NT) for nb in range(4, 8)]
    g2 = {k: i for i, k in enumerate(grp)}
    for G, (n, nb) in enumerate(grp):
        fb = AFR[G % 8]
        for mb in range(2):
            for s in range(2):
                r = 128 + (nb * 2 + mb) * 4; ac = f"v[{r}:{r+3}]"
                at.mfma(f"{MF} {ac}, v[{fb+s*4}:{fb+s*4+3}], {b2reg(n, s, mb)}, {'0' if (n == 0 and s == 0) else ac}")
    def gp(G): return kb0 + 4 * G
    def t0(n): return gp(g2[(n, 0)])
    VLA = 12; ALB = 4
    CHK = pv0[15] + 12
    for it in range(1, 7):
        g = pv0[2 * it] + ALB
        if it == 1: at.used[g] += 2
        else: at.fixed_front(g, L("s_sub_u32 s91, s91, 1\ns_cbranch_scc0 L_A"))
        at.fixed_front(g, Ins("; @IT A" if it < 6 else "; @ENDIT A"))
    at.fixed_front(-10, [W(vm=("KV", 0)), Ins("s_barrier")])
    bpos = {}
    for tau in range(8):
        bpos[tau] = pv0[2 * tau] - VLA - 1
        at.fixed_front(bpos[tau], [W(vm=("KV", min(2 * tau + 2, 15))), Ins("s_barrier")])
    SAVE = [208 + 2 * i for i in range(8)] + [240 + 2 * i for i in range(8)]
    def exch(br, store, base, tag):
        r = []
        for h in range(2):
            r += L(f"s_mov_b32 s58, {br*(8<<20)+h*4096:#x}")
            for i in range(4):
                b = base + (h * 4 + i) * 4
                r.append(Ins(f"buffer_store_dwordx4 v[{b}:{b+3}], v17, s[64:67], s58 offen offset:{i*1024}{SC}" if store else f"buffer_load_dwordx4 v[{b}:{b+3}], v18, s[64:67], s58 offen offset:{i*1024}{SC}", tag=tag))
        return r
    sw = once(L("L_K_sw:\ns_nop 7") + exch(0, True, 128, "Bst") +
              sum([L(f"v_mov_b64 v[{SAVE[i]}:{SAVE[i]+1}], v[{160+2*i}:{161+2*i}]") for i in range(16)], []) +
              sum([L(f"v_mov_b64 v[{r}:{r+1}], 0") for r in range(128, 192, 2)], []) +
              L("s_mov_b32 s19, 0\ns_nop 0\ns_branch L_K_sw_ret"))
    for k in range(1, 10):
        g = t0(R2 * k)
        if k == 1: at.used[g] += 2
        else: at.fixed_front(g, L("s_sub_u32 s91, s91, 1\ns_cbranch_scc0 L_K"))
        at.fixed_front(g, Ins("; @IT K" if k < 9 else "; @ENDIT K"))
        if k < 9:
            g = t0(R2 * k + 4)
            at.fixed_front(g, L("s_cmp_eq_u32 s91, 4\ns_cbranch_scc1 L_K_sw"))
            if k == 4: at.front[g] += sw
            at.fixed_front(g, Ins("L_K_sw_ret:"))
    b2 = {}
    for n in range(NT):
        b2[n] = t0(n) - 4 * LA2
        if n > NN + 1 and n % 2 == 0: continue
        at.fixed_front(b2[n], [W(vm=("T", n if n <= NN else min(n + 1, NT - 1))), Ins("s_barrier")])
    for G in range(0, len(grp), 2): at.fixed_back(gp(G), W(lg=("P2", G + 1)))
    assert b2[0] > CHK
    for u in range(NU):
        at.fixed_back(qk0[u], W(lg=("K", u, 0)))
        at.fixed_back(qk0[u] + 4, W(lg=("K", u, 1)))
        for db in range(0, 8, 2): at.fixed_back(pvpos(u, db), W(lg=("V", u, db + 1)))
    chk = []
    for qb in range(4): chk += L(f"v_accvgpr_read_b32 v{116+qb}, a{128+qb*4}")
    chk += L(f"""
    v_max3_f32 v124, v116, v117, v118
    s_mov_b32 s62, {P['thr']:#x}
    v_max_f32 v124, v124, v119
    v_cmp_nge_f32 vcc, s62, v124
    s_cbranch_vccnz L_fallback
    L_fb_ret:
    """)
    for qb in range(4): chk += L(f"v_rcp_f32 v{120+qb}, v{116+qb}")
    at.fixed_front(CHK, chk)
    for x in late: at.flow("late", -8, x, deadline=20)
    ev = []; evk = []
    def kreads(u):
        tau = u // 2; sb = PAIR[tau % 5]; r = []
        if u % 2 == 0 and u > 0:
            r.append(L("s_cmp_eq_u32 s88, 2\ns_cselect_b32 s90, s101, s100") if 4 <= u <= 12 else L("s_mov_b32 s90, s100"))
            r += [Ins(f"v_add_u32 v{x}, s90, v{x}") for x in range(KR, KR + 4)]
        for kb in range(2):
            for be in range(4):
                r.append(Ins(f"ds_read_b128 {kfb(u, kb, be)}, v{KR+be} offset:{((u%2)*2+kb)*4096}", tag=("K", u, kb), rd=(sb, sb + 16384, ("KV", 2 * tau))))
        return r
    def vreads(u, db):
        tau = u // 2; sb = PAIR[tau % 5] + 16384; r = []
        if u % 2 == 0 and db == 0:
            r.append(L("s_cmp_eq_u32 s88, 2\ns_cselect_b32 s59, s101, s100") if 4 <= u <= 12 else L("s_mov_b32 s59, s100"))
            r += [Ins(f"v_add_u32 v{x}, s59, v{x}") for x in (VR, VR + 1)]
        b32, e = db >> 1, db & 1; f = 32 + db * 4
        for rr in range(2):
            r.append(Ins(f"ds_read_b64_tr_b16 v[{f+rr*2}:{f+rr*2+1}], v{VR+e} offset:{(b32>>1)*8192+(b32&1)*512+(u%2)*4096+rr*2048}", tag=("V", u, db), rd=(sb, sb + 16384, ("KV", 2 * tau + 1))))
        return r
    for i, x in enumerate(kreads(0)): evk.append((-9 + i // 2, 0, x))
    for i, x in enumerate(kreads(1)): evk.append((4 + 2 * (i // 2 * 2), qk0[1] - 4, x))
    for u in range(NU):
        for db in range(8):
            lo = pvpos(u, db) - VLA
            if u >= 1: lo = max(lo, pvpos(u - 1, db) + 4)
            for x in vreads(u, db): ev.append((lo, pvpos(u, db & ~1) - 4, x))
        if u + 2 < NU:
            kr = kreads(u + 2); off = 1 if len(kr) > 8 else 0
            for i, x in enumerate(kr): evk.append((pv0[u] + ALB + 3 + (4 if u % 2 else 3) * ((i + off) // 2), qk0[u + 2] - 4, x))
    def rd2(G):
        n, nb = grp[G]; sb = K2SLOT[n % R2]; fb = AFR[G % 8]
        b32, e = nb >> 1, nb & 1
        va = [(2, 3), (4, 5), (6, 30)][sb >> 16][e]
        return [Ins(f"ds_read_b64_tr_b16 v[{fb+s*4+rr*2}:{fb+s*4+rr*2+1}], v{va} offset:{(sb & 0xffff)+(b32>>1)*8192+(b32&1)*512+s*4096+rr*2048}", tag=("P2", G), rd=(sb, sb + 16384, ("T", n))) for s in range(2) for rr in range(2)]
    for G in range(len(grp)):
        for i, x in enumerate(rd2(G)): ev.append((gp(G - LA2) + i, gp(G - 2), x))
    ev.sort(key=lambda e: e[0])
    for it in range(1, 6):
        at.fixed_front(pv0[2 * it] + ALB + 1, L("s_add_u32 s88, s88, 1\ns_cmp_eq_u32 s88, 5\ns_cselect_b32 s88, 0, s88"))
        at.fixed_front(pv0[2 * it] + ALB + 2, L("s_lshl_b32 s89, s88, 15\ns_sub_u32 s89, s4, s89"))
    def maxseq(a, b, t0):
        return [f"v_max3_f32 v{t0}, v{a}, v{a+1}, v{a+2}", f"v_max3_f32 v{t0+1}, v{a+3}, v{b}, v{b+1}", f"v_max3_f32 v{t0}, v{t0}, v{b+2}, v{b+3}", f"v_max_f32 v{t0}, v{t0}, v{t0+1}"]
    def xlane(t0, t1):
        return [f"v_mov_b32 v{t1}, v{t0}", "s_nop 1", f"v_permlane16_swap_b32 v{t0}, v{t1}", f"v_max_f32 v{t0}, v{t0}, v{t1}",
                f"v_mov_b32 v{t1}, v{t0}", "s_nop 1", f"v_permlane32_swap_b32 v{t0}, v{t1}", f"v_max_f32 v{t0}, v{t0}, v{t1}"]
    for q_, lst in (("lds", ev), ("ldsk", evk)):
        for g, dl, x in lst:
            if isinstance(x, list): at.flowg(q_, g, x, deadline=dl, strict=True)
            else: at.flow(q_, g, x, deadline=dl)
    nspin = [0]
    def flagload(tag, so="0"): return Ins(f"buffer_load_ubyte v125, v28, s[64:67], {so} offen{SC}", tag=tag)
    def check_(tag, test):
        k = nspin[0]; nspin[0] += 1
        ool.extend(L(f"L_spin{k}:\ns_mov_b32 s70, 0x40000\nL_spin{k}_l:\n{flagload(0).text}\ns_waitcnt vmcnt(0)\ns_sub_u32 s70, s70, 1\ns_cbranch_scc1 L_spin{k}_ret\n{test}\ns_cbranch_scc0 L_spin{k}_ret\ns_sleep 1\ns_branch L_spin{k}_l"))
        return [W(vm=tag)] + L(f"{test}\ns_cbranch_scc1 L_spin{k}\nL_spin{k}_ret:")
    def flagcheck(tag, need): return check_(tag, f"v_cmp_gt_u32 vcc, {need}, v125\ns_and_b32 s62, vcc_lo, -1")
    def finecheck(tag, need): return check_(tag, f"v_cmp_gt_u32 vcc, {need}, v125\ns_and_b64 s[62:63], vcc, s[68:69]")
    def pubstore(): return Ins(f"buffer_store_byte v126, v29, s[64:67], 0 offen{SC}", tag="flag")
    def finepub(so): return Ins(f"buffer_store_byte v126, v23, s[64:67], {so} offen{SC}", tag="flag")
    def loads2(n):
        sb = K2SLOT[n % R2]
        r = [Ins(f"s_add_u32 m0, s5, {sb:#x}")]
        d = [Ins(f"buffer_load_dwordx4 v{7+z}, s[8:11], s71 offen offset:{z*1024} lds", tag=("T", n), wr=(sb, sb + 16384, ("T", n))) for z in range(4)]
        b = [Ins(f"buffer_load_dwordx4 {b2reg(n, s, mb)}, v{26+s}, s[12:15], s72 offen offset:{mb*1024}{SC}", tag=("T", n)) for s in range(2) for mb in range(2)]
        for z in range(4): r += [d[z], b[z]]
        r += L("s_add_u32 s71, s71, 0x20000\ns_add_u32 s72, s72, 0x2000")
        return r
    vq = []
    vq.append((-9, kvloads(2, False), 3, 48))
    at.front[bpos[0]].insert(0, W(vm="Hst")); at.used[bpos[0]] += 1
    vq.append((bpos[0] + 1, [ASSERT("Hst"), Ins("v_mov_b32 v126, 2"), pubstore()], 0, bpos[0] + 6))
    vq.append((pv0[0] + ALB + 3, kvloads(3, False), 13, pv0[0] + ALB + 125))
    for it in range(1, 6): vq.append((pv0[2 * it] + ALB + 3, kvloads(it + 3, True), 13, pv0[2 * it] + ALB + 125))
    e0 = pv0[12] + ALB
    vq.append((e0 + 1, [flagload("fH")], 0, e0 + 6))
    vq.append((e0 + 40, [flagcheck("fH", 2)], 0, e0 + 40))
    for n in range(4): vq.append((e0 + 41 + n * 30, loads2(n), 2, e0 + 41 + n * 30 + 29))
    vq.append((CHK + 1, loads2(4), 0, CHK + 12))
    for g in range(CHK + 2, b2[R2]): at.capo[g] = P["ocap"]
    hook = once(L("L_K_hook:") + flagcheck("flO", 3) + L("s_mov_b64 s[8:9], s[76:77]\ns_mov_b32 s10, s78\ns_mov_b64 s[12:13], s[40:41]\ns_mov_b32 s14, s42\ns_mov_b32 s71, s74\ns_mov_b32 s72, s75\ns_branch L_K_hook_ret"))
    for n in range(PD, NT):
        its = loads2(n); m = n - PD + 1
        if m > NN: vq.append((b2[NN + 1] + 1, its, 1)); continue
        g = b2[m] + 1
        if n % R2 == 28 % R2 and g >= t0(R2):
            its = [L("s_cmp_eq_u32 s91, 5\ns_cbranch_scc1 L_K_hook") + (hook if n == 28 else []) + L("L_K_hook_ret:")] + its
        elif m == R2: its = [L("s_nop 0\ns_nop 0")] + its
        vq.append((g, its, 2))
    for k in range(1, 9):
        n = R2 * k + P["flt"]
        a = [ASSERTD("Bst")] if k == 6 else []
        vq.append((t0(n) + 2, a + [L("s_cmp_eq_u32 s91, 2\ns_cselect_b32 s17, s16, s18"), finepub("s17"), L("s_cmp_eq_u32 s91, s19\ns_cselect_b32 s17, 0, s18"), flagload({3: "flO", 8: "fB"}.get(k, "flx"), "s17")], 1))
    g = t0(NN + 2)
    vq.append((g, [finecheck("fB", 1)] + [Ins(f"buffer_load_dwordx4 v[{96+(mb*2+b)*4}:{99+(mb*2+b)*4}], v21, s[92:95], {'s53' if mb else '0'} offen offset:{b*64}", tag="xld") for mb in range(2) for b in range(2)] + exch(0, False, 32, "Bld"), 1))
    gk = gp(g2[(NN, 4)])
    vq.append((gk + 5, exch(1, True, 128, "Sst"), 1))
    vq.append((gk + P["pub5"], [[Ins("v_mov_b32 v126, 2"), W(vm="Sst"), finepub("s16")]], 0))
    vq.append((len(at.mf) - P["fl5"], [flagload("f5")], 0))
    vq.sort(key=lambda e: e[0])
    for g, its, sp, *dl in vq:
        dl = dl[0] if dl else None
        for x in its:
            if dl is not None: g = min(g, dl)
            if isinstance(x, list):
                g = at.flowg("vm", g, x, deadline=dl); at.used[g] -= sum(y.cost for y in x if y.once)
            elif x.kind == "comment":
                g = max(g, at.qpos.get("vm", g)); at.mid[g].append(x); at.qpos["vm"] = g
            elif g < CHK: g = vflow(at, g, [x], sp, dl)
            else: g = at.flow("vm", g, x, mingap=(1 if (" lds" in x.text and at.qpos.get("vm") != dl) else 0), deadline=dl) + (sp if x.kind == "vmem" else 0)
    rdy0 = {}
    for qb in range(4):
        a, b = sbl(0, qb, 0), sbl(0, qb, 1); t0_ = 116 + (qb % 2) * 2; g = qb * 8 + 7 + 6
        seq = maxseq(a, b, t0_) + xlane(t0_, t0_ + 1) + [f"v_sub_f32 v{96+qb*4+i}, 0, v{t0_}" for i in range(4)] + [f"v_sub_f32 v{r}, v{r}, v{t0_}" for r in list(range(a, a + 4)) + list(range(b, b + 4))]
        for i, s_ in enumerate(seq): at.flow("mx", g, Ins(s_), deadline=(qk0[1] + qb * 8 - 2 if i < 16 else pv0[0] - 6))
        rdy0[qb] = at.qpos["mx"] + 1
    exps = []
    for u in range(NU):
        w0 = pv0[u - 1] + ALB if 1 <= u <= 14 else 0
        for i in range(32):
            qb, rem = divmod(i, 8)
            ready = qk0[u] + qb * 8 + (rem // 4) * 4 + 3 + 6
            if u == 0: ready = max(ready, rdy0[qb])
            exps.append((max(ready, w0), u, i))
    ei = 0; pend = []
    def put(g, x): at.mid[g].append(x); at.used[g] += x.cost
    for g in range(0, kb0):
        def do_exp():
            nonlocal ei
            _, u, i = exps[ei]; ei += 1
            qb, rem = divmod(i, 8); r = sbl(u, qb, rem // 4) + rem % 4
            put(g, Ins(f"v_exp_f32 v{r}, v{r}"))
            if i % 2: pend.append((g + 1, u, Ins(f"v_cvt_pk_bf16_f32 v{sbl(u, qb, 0)+rem//2}, v{r-1}, v{r}")))
        while ei < len(exps) and pv0[exps[ei][1]] - 2 <= g: do_exp()
        while pend and pv0[pend[0][1]] - 1 <= g: put(g, pend.pop(0)[2])
        nr = sum(1 for p_ in pend if p_[0] <= g)
        if at.used[g] == 0 and ei < len(exps) and exps[ei][0] <= g and nr < 4: do_exp()
        while at.used[g] < 2 and pend and pend[0][0] <= g: put(g, pend.pop(0)[2])
    assert ei == len(exps) and not pend
    for x in late2: at.flow("late", pv0[0] + 1, x, deadline=pv0[2] + ALB - 1)
    for g in range(CHK + 2, t0(R2)): at.capo[g] = P["ocap2"]
    for x in L("s_add_u32 s54, s53, 4096\ns_add_u32 s55, s53, 8192\ns_add_u32 s3, s53, 12288"): at.flow("od", CHK + 1, x)
    k = 0
    for b32 in range(4):
        for qb in range(4):
            tb_ = 96 + (k % 2) * 8; ob = 112 + (k % 2) * 4; k += 1
            g = pvpos(15, 2 * b32 + 1) + 4 + 8
            for e in range(2):
                for i in range(4): at.flow("od", g, Ins(f"v_accvgpr_read_b32 v{tb_+e*4+i}, a{((b32*2+e)*4+qb)*4+i}"))
            for q in range(8): at.flow("od", g, Ins(f"v_mul_f32 v{tb_+q}, v{tb_+q}, v{120+qb}"))
            for q in range(4): gq = at.flow("od", g, Ins(f"v_cvt_pk_bf16_f32 v{ob+q}, v{tb_+2*q}, v{tb_+2*q+1}"))
            at.flow("od", gq, Ins(f"buffer_store_dwordx4 v[{ob}:{ob+3}], v25, s[40:43], {['s53','s54','s55','s3'][b32]} offen offset:{qb*1024}{SC}", tag="Ost"))
    npub = [n for n in range(NN) if b2[n] > at.qpos["od"] + 24][0]
    print("O drain ends at K2 tile", (at.qpos["od"] - kb0) / 32, "publish at b2", npub); assert npub <= R2
    at.front[b2[npub]].insert(0, W(vm="Ost")); at.used[b2[npub]] += 1
    for x in [ASSERT("Ost"), Ins("v_mov_b32 v126, 3"), pubstore()]: at.flow("od", b2[npub] + 1, x)
    at.flow("od", b2[npub] + 2, Ins("v_mov_b32 v126, 1"), deadline=t0(R2) - 1)
    xa = L(f"""
    s_lshl_b32 s62, s32, 5
    s_add_u32 s62, s62, s34           ; gid
    s_lshl_b32 s63, s62, 15
    s_lshl_b32 s4, s33, 13
    s_add_u32 s63, s63, s4
    v_add_u32 v17, s63, v25
    v_xor_b32 v18, {16<<15:#x}, v17
    s_lshl_b32 s62, s62, 7
    s_add_u32 s62, s62, s33
    s_add_u32 s62, s62, {MB_REL+32:#x}
    s_xor_b32 s16, s62, {16<<7:#x}
    s_add_u32 s4, s33, 32
    s_lshl_b64 s[68:69], 1, s4
    v_cmp_eq_u32 vcc, 0, v1
    v_mov_b32 v23, 0x3ff00000
    v_and_b32 v21, 15, v1
    v_cndmask_b32 v23, v23, 0, vcc
    s_lshl_b32 s62, s50, 7
    s_lshl_b32 s63, s33, 5
    s_add_u32 s62, s62, s63
    v_add_u32 v21, s62, v21
    v_lshlrev_b32 v21, 11, v21
    v_lshrrev_b32 v24, 4, v1
    v_lshl_add_u32 v21, v24, 4, v21
    s_lshl_b32 s62, s48, 7
    s_add_u32 s62, s62, s49
    v_add_u32 v21, s62, v21
    s_mov_b32 s91, 7
    s_mov_b32 s19, 5
    s_mov_b32 s18, 0x40000000
    """)
    for x in xa: at.flow("xa", kb0, x, deadline=t0(R2) - 1)
    at.flow("od", t0(NN) + 1, Ins("s_mov_b32 s53, 0x8000"))
    print("attn+k2", at.stats()[:300])
    A_ = at.emit()
    if STAMP:
        i = [k for k, x in enumerate(A_) if x is at.mf[kb0]][0]
        A_ = A_[:i] + stamp() + A_[i:]
        i = [k for k, x in enumerate(A_) if x.text == "; @IT K"][0]
        A_ = A_[:i] + stamp() + A_[i:]
        i = [k for k, x in enumerate(A_) if x.text == "; @ENDIT K"][0] + 1
        A_ = A_[:i] + stamp() + A_[i:]
    epi = stamp() + finecheck("f5", 2) + exch(1, False, 128, "Sld") + stamp()
    epi += [W(vm="Bld")] + L("s_mov_b32 s62, 0xbfb8aa3b\ns_mov_b32 s63, s62\ns_mov_b32 s69, 0xffff0000")
    for i0 in range(0, 32, 4):
        tmp = 112 + (i0 // 4 % 2) * 4; r = 32 + i0
        for i in (0, 2): epi += L(f"v_pk_add_f32 v[{r+i}:{r+i+1}], v[{r+i}:{r+i+1}], v[{SAVE[(i0+i)//2]}:{SAVE[(i0+i)//2]+1}]")
        for i in (0, 2): epi += L(f"v_pk_mul_f32 v[{tmp+i}:{tmp+i+1}], v[{r+i}:{r+i+1}], s[62:63]")
        for i in range(4): epi += L(f"v_exp_f32 v{tmp+i}, v{tmp+i}")
        for i in range(4): epi += L(f"v_add_f32 v{tmp+i}, 1.0, v{tmp+i}")
        for i in range(4): epi += L(f"v_rcp_f32 v{tmp+i}, v{tmp+i}")
        epi += L("s_nop 0")
        for i in (0, 2): epi += L(f"v_pk_mul_f32 v[{r+i}:{r+i+1}], v[{r+i}:{r+i+1}], v[{tmp+i}:{tmp+i+1}]")
    epi += L("s_mov_b64 exec, s[56:57]")
    for f in range(4): epi += L(f"v_swap_b32 v{96+f*4}, v{98+f*4}\nv_swap_b32 v{97+f*4}, v{99+f*4}")
    epi += L("s_mov_b64 exec, -1")
    def ix(mb, b, q): return ((b * 2 + q // 4) * 2 + mb) * 4 + q % 4
    for mb in range(2):
        for b in range(2):
            for q in range(8):
                src = 96 + (mb * 2 + b) * 4 + q // 2
                epi += L(f"v_lshlrev_b32 v{64+ix(mb, b, q)}, 16, v{src}" if q % 2 == 0 else f"v_and_b32 v{64+ix(mb, b, q)}, s69, v{src}")
    for i in range(0, 32, 2): epi += L(f"v_pk_fma_f32 v[{64+i}:{65+i}], v[{160+i}:{161+i}], v[{32+i}:{33+i}], v[{64+i}:{65+i}]")
    epi += stamp() + [W(vm="Sld")]
    for mb in range(2):
        for b in range(2):
            for q in range(0, 8, 2):
                i = ix(mb, b, q)
                epi += L(f"v_pk_fma_f32 v[{64+i}:{65+i}], v[{128+i}:{129+i}], v[{32+i}:{33+i}], v[{64+i}:{65+i}]")
            r = 96 + (mb * 2 + b) * 4
            for q in range(0, 8, 2): epi += L(f"v_cvt_pk_bf16_f32 v{r+q//2}, v{64+ix(mb, b, q)}, v{65+ix(mb, b, q)}")
            epi += L(f"s_mov_b64 exec, s[56:57]\nv_swap_b32 v{r}, v{r+2}\nv_swap_b32 v{r+1}, v{r+3}\ns_mov_b64 exec, -1")
            epi += L(f"buffer_store_dwordx4 v[{r}:{r+3}], v21, s[96:99], {'s53' if mb else '0'} offen offset:{b*64}")
    epi += L("s_waitcnt vmcnt(0)") * STAMP + stamp() + stamp_store()
    epi += L("L_end:\ns_endpgm")
    vcur = PAIR[7 % 5] + 16384; kcur = PAIR[7 % 5]
    fbk = L(f"""
    L_fallback:
    s_waitcnt vmcnt(0) lgkmcnt(0)
    s_nop 7
    s_lshl_b32 s62, s33, 14
    s_add_u32 s88, s62, {FBSLOT0:#x}
    s_and_b32 s62, s33, 1
    s_lshl_b32 s62, s62, 13
    s_lshr_b32 s63, s33, 1
    s_lshl_b32 s63, s63, 7
    s_add_u32 s62, s62, s63
    """)
    for z in range(4): fbk += L(f"v_subrev_u32 v{17+z}, s5, v{17+z}\nv_subrev_u32 v{21+z}, s62, v{21+z}")
    fbk += L(f"s_sub_u32 s62, s88, {kcur:#x}")
    for b in range(4): fbk += L(f"v_add_u32 v{KR+b}, s62, v{KR+b}")
    fbk += L(f"s_sub_u32 s62, s88, {vcur:#x}\nv_add_u32 v116, s62, v{VR}\nv_add_u32 v117, s62, v{VR+1}")
    for qb in range(4): fbk += L(f"v_mov_b32 v{120+qb}, 0xff800000")
    def fb_k(first):
        o = []
        for kb in range(2):
            o += L(f"s_add_u32 m0, s88, {4096+kb*8192}\ns_add_u32 s89, s55, {kb*4096}")
            for z in range(4): o += L(f"buffer_load_dwordx4 v{17+z}, s[28:31], s89 offen offset:{z*1024} lds")
        o += L("s_waitcnt vmcnt(0)")
        for kb in range(2):
            for be in range(4): o += L(f"ds_read_b128 {kfb(0, kb, be)}, v{KR+be} offset:{4096+kb*8192}")
        o += L("s_waitcnt lgkmcnt(0)")
        o += L("\n".join(qk_list(1, first, lambda kb, be: kfb(0, kb, be)))) + L("s_nop 7")
        return o
    fbk += L("s_mov_b32 s55, 0\nL_fb1:") + fb_k(True)
    for qb in range(4):
        fbk += L("\n".join(maxseq(sbl(1, qb, 0), sbl(1, qb, 1), 118))) + L(f"v_max_f32 v{120+qb}, v{120+qb}, v118")
    fbk += L("s_add_u32 s55, s55, 0x2000\ns_cmp_lt_u32 s55, 0x20000\ns_cbranch_scc1 L_fb1")
    for qb in range(4):
        fbk += L("\n".join(xlane(120 + qb, 118)))
        for i in range(4): fbk += L(f"v_sub_f32 v{96+qb*4+i}, 0, v{120+qb}")
    for i in range(144): fbk += L(f"v_accvgpr_write_b32 a{i}, 0")
    fbk += L("s_mov_b32 s55, 0\nL_fb2:")
    for bp in range(2):
        fbk += L(f"s_add_u32 m0, s88, {bp*8192}\ns_add_u32 s89, s55, {bp*128}")
        for z in range(4): fbk += L(f"buffer_load_dwordx4 v{21+z}, s[36:39], s89 offen offset:{z*1024} lds")
    fbk += fb_k(False)
    for db in range(8):
        b32, e = db >> 1, db & 1
        for rr in range(2): fbk += L(f"ds_read_b64_tr_b16 a[{144+db*4+rr*2}:{145+db*4+rr*2}], v{116+e} offset:{(b32>>1)*8192+(b32&1)*512+rr*2048}")
    for qb in range(4):
        for kb in range(2):
            for i in range(4): fbk += L(f"v_exp_f32 v{sbl(1, qb, kb)+i}, v{sbl(1, qb, kb)+i}")
    for qb in range(4):
        for h in range(4): fbk += L(f"v_cvt_pk_bf16_f32 v{sbl(1, qb, 0)+h}, v{sbl(1, qb, h//2)+(h%2)*2}, v{sbl(1, qb, h//2)+(h%2)*2+1}")
    pl = pv_list(15, lambda db: f"a[{144+db*4}:{147+db*4}]")
    nfirst = CHK - pv0[15]
    fbk += L("s_waitcnt lgkmcnt(0)") + L("\n".join(pl[:nfirst]))
    fbk += L("s_add_u32 s55, s55, 0x2000\ns_cmp_lt_u32 s55, 0x20000\ns_cbranch_scc0 L_fb_done") + L("\n".join(pl[nfirst:])) + L("s_branch L_fb2\nL_fb_done:\ns_nop 7")
    for qb in range(4): fbk += L(f"v_accvgpr_read_b32 v{116+qb}, a{128+qb*4}")
    fbk += L("s_branch L_fb_ret")
    errs = check(fbk, "fb")
    assert not errs, "\n".join(errs[:30])
    full = resolve_waits(fix_m0(pro + G_ + mid + A_ + epi))
    full, prog = collapse(full)
    errs = check([x for x in full if "; optA" not in x.text], "fusedB") + check([x for x in full if "; optB" not in x.text], "fusedA")
    assert not errs, "\n".join(errs[:30])
    def keep(x):
        t = x.tag
        if isinstance(t, tuple):
            if P.get("ablT") and t[0] == "T" and t[1] >= 6: return False
        return True
    prog = [x for x in prog if keep(x)]
    return dict(name=NAME + "_kernel", body=text(prog + [x for x in full if x.once] + ool + fbk + L("L_code_end:")), grid=256, block=256, lds=163840, vgpr=512, accum=256, sgpr=102)

if __name__ == "__main__":
    STAMP = "stamp" in sys.argv
    open("t_i.s", "w").write(build_file([gen_fused()]))
    for v in sys.argv[1:]:
        if v == "stamp": continue
        P = {}
        for kv in v.split(","):
            k, _, val = kv.partition("="); P[k] = int(val, 0) if val else 1
        open("t_i_" + v.replace(",", "_").replace("=", "") + ".s", "w").write(build_file([gen_fused(P)]))
```

```python
import re
from collections import defaultdict

TRANS = ("v_exp_", "v_rcp_", "v_rsq_", "v_sqrt_", "v_log_", "v_sin_", "v_cos_")

class Ins:
    __slots__ = ("text", "kind", "cost", "tag", "lg", "vm", "rd", "wr", "label", "once")
    def __init__(self, text, tag=None, rd=None, wr=None, lg=None, vm=None):
        self.text = text.strip()
        self.once = False; self.tag = tag; self.rd = rd; self.wr = wr; self.lg = lg; self.vm = vm
        t = self.text
        self.label = t.endswith(":")
        if self.label: k = "label"
        elif t.startswith("v_mfma"): k = "mfma"
        elif t.startswith(TRANS): k = "trans"
        elif t.startswith("v_"): k = "valu"
        elif t.startswith("ds_"): k = "lds"
        elif t.startswith(("buffer_", "global_")): k = "vmem"
        elif t.startswith("WAIT") or t.startswith("s_waitcnt"): k = "wait"
        elif t.startswith("s_barrier"): k = "barrier"
        elif t.startswith("s_nop"): k = "nop"
        elif t.startswith(("s_load", "s_memtime", "s_memrealtime", "s_atomic")): k = "smem"
        elif t.startswith(";"): k = "comment"
        else: k = "salu"
        self.kind = k
        self.cost = 2 if k == "trans" else (0 if k in ("label", "comment") else 1)
    def copy(self):
        n = Ins(self.text, self.tag, self.rd, self.wr, self.lg, self.vm); return n

def W(lg=None, vm=None):
    return Ins("WAIT", lg=lg, vm=vm)

def L(text, **kw):
    return [Ins(l, **kw) for l in text.strip().split("\n") if l.strip()]

class Sched:
    def __init__(self, cap=2):
        self.cap = cap
        self.mf = []
        self.front = defaultdict(list); self.mid = defaultdict(list); self.back = defaultdict(list)
        self.used = defaultdict(int)
        self.qpos = {}
        self.capo = {}
    def capat(self, g): return self.capo.get(g, self.cap)
    def mfma(self, text):
        self.mf.append(Ins(text)); return len(self.mf) - 1
    def fixed_front(self, idx, ins):
        for x in (ins if isinstance(ins, list) else [ins]):
            self.front[idx].append(x); self.used[idx] += x.cost
    def fixed_back(self, idx, ins):
        for x in (ins if isinstance(ins, list) else [ins]):
            self.back[idx].append(x); self.used[idx] += x.cost
    def flow(self, q, idx, ins, deadline=None, mingap=0):
        g = max(idx, self.qpos.get(q, -10**9) + mingap)
        while self.used[g] + ins.cost > self.capat(g):
            if deadline is not None and g >= deadline: break
            if g >= len(self.mf): break
            g += 1
        if deadline is not None and g > deadline:
            raise RuntimeError(f"deadline miss q={q} idx={idx} g={g} dl={deadline} {ins.text}")
        self.mid[g].append(ins); self.used[g] += ins.cost; self.qpos[q] = g
        return g
    def flowg(self, q, idx, group, deadline=None, strict=False):
        cost = sum(x.cost for x in group)
        g = max(idx, self.qpos.get(q, -10**9))
        while self.used[g] + (min(cost, self.capat(g)) if strict else 1) > self.capat(g):
            if deadline is not None and g >= deadline: break
            if g >= len(self.mf): break
            g += 1
        self.mid[g] += group; self.used[g] += cost; self.qpos[q] = g
        return g
    def emit(self):
        out = []
        n = len(self.mf)
        mx = max([n] + list(self.front) + list(self.mid) + list(self.back))
        mn = min([0] + list(self.front) + list(self.mid) + list(self.back))
        for i in range(mn, mx + 1):
            out += self.front[i] + self.mid[i] + self.back[i]
            if i == 0: out.append(Ins('; @MFMA0'))
            if 0 <= i < n: out.append(self.mf[i])
        return out
    def stats(self):
        n = len(self.mf)
        over = sum(max(0, self.used[i] - self.cap) for i in range(n + 1))
        tot = sum(self.used[i] for i in range(n + 1))
        where = [(i, self.used[i]) for i in range(n + 1) if self.used[i] > self.cap]
        return f"mfma={n} fill={tot} over={over} where={where[:60]}"

def fix_m0(trace):
    out = []
    for x in trace:
        if x.kind == "vmem" and " lds" in x.text:
            prev = [y for y in out[-3:] if y.kind not in ("comment", "label")]
            if prev and prev[-1].kind == "salu" and "m0" in prev[-1].text.split(",")[0]:
                y = Ins("s_nop 0"); y.once = x.once; out.append(y)
        out.append(x)
    return out

def resolve_waits(trace, drop=True):
    out = []
    lg = []; vm = []
    lgdone = 0; vmdone = 0
    drop0 = drop
    opt = set()
    for x in trace:
        if x.text.startswith("; @IT "): drop = False
        if x.text.startswith("; @ENDIT "): drop = drop0
        if x.kind == "lds": lg.append(x.tag)
        elif x.kind == "vmem" and "w0only" not in x.text:
            vm.append(x.tag)
            if "; opt" in x.text: opt.add(len(vm) - 1)
        elif x.kind == "smem": lg.append("__smem")
        if x.kind == "wait":
            if x.text == "WAIT":
                parts = []
                for (tag, lst, done, nm, mx) in ((x.vm, vm, vmdone, "vmcnt", 63), (x.lg, lg, lgdone, "lgkmcnt", 15)):
                    if tag is None: continue
                    if tag == "all": idx = len(lst) - 1
                    else:
                        idxs = [i for i, t in enumerate(lst) if t == tag]
                        if not idxs: raise RuntimeError(f"wait on unissued tag {tag}")
                        idx = idxs[-1]
                    n = len(lst) - 1 - idx
                    if nm == "vmcnt": n -= sum(1 for o in opt if o > idx)
                    if nm == "lgkmcnt" and "__smem" in lst[done:]: n = 0
                    n = min(n, mx)
                    if drop and idx < done: continue
                    parts.append(f"{nm}({n})")
                    if nm == "vmcnt": vmdone = max(vmdone, idx + 1)
                    else: lgdone = max(lgdone, len(lst) - n)
                y = Ins("s_waitcnt " + " ".join(parts)) if parts else Ins("; (wait dropped)")
                y.once = x.once
                out.append(y); continue
            elif "w0only" not in x.text:
                m = re.search(r"vmcnt\((\d+)\)", x.text)
                if m and int(m.group(1)) == 0: vmdone = len(vm)
                m = re.search(r"lgkmcnt\((\d+)\)", x.text)
                if m: lgdone = max(lgdone, len(lg) - int(m.group(1)))
        out.append(x)
    return out

_reg = re.compile(r"\b([vas])(\d+)\b|\b([vas])\[(\d+):(\d+)\]|\b(vcc|exec|m0|scc)\b")
def regs(op):
    r = []
    for m in _reg.finditer(op):
        if m.group(1): r.append(m.group(1) + m.group(2))
        elif m.group(3): r += [m.group(3) + str(i) for i in range(int(m.group(4)), int(m.group(5)) + 1)]
        else: r.append(m.group(6))
    return r

def rw(x):
    t = x.text.split(";")[0]
    mn, _, rest = t.partition(" ")
    ops = [o.strip() for o in re.split(r",(?![^\[]*\])", rest)] if rest.strip() else []
    R = []; Wr = []
    k = x.kind
    if k == "mfma":
        Wr = regs(ops[0]); R = regs(ops[1]) + regs(ops[2]) + regs(ops[3])
    elif k == "lds":
        if mn.startswith(("ds_read", "ds_bpermute", "ds_swizzle", "ds_permute")): Wr = regs(ops[0]); R = sum((regs(o) for o in ops[1:]), [])
        else: R = sum((regs(o) for o in ops), [])
    elif k == "vmem":
        if mn in ("buffer_inv", "buffer_wbl2"): pass
        elif " lds" in t: R = sum((regs(o) for o in ops), []) + ["m0"]
        elif "load" in mn: Wr = regs(ops[0]); R = sum((regs(o) for o in ops[1:]), [])
        elif "atomic" in mn and " sc0" in t: R = sum((regs(o) for o in ops), []); Wr = regs(ops[0])
        else: R = sum((regs(o) for o in ops), [])
    elif k in ("valu", "trans"):
        if mn.startswith(("v_swap", "v_permlane")): R = regs(ops[0]) + regs(ops[1]); Wr = list(R)
        elif mn.startswith("v_nop"): pass
        else:
            Wr = regs(ops[0]); R = sum((regs(o) for o in ops[1:]), [])
            if mn.startswith(("v_fmac", "v_dot2c", "v_writelane")) or "_dpp" in mn: R += Wr
            if mn.startswith(("v_add_co", "v_addc_co", "v_sub_co")): Wr += regs(ops[1])
            if mn.startswith("v_cndmask") and len(ops) == 3: R.append("vcc")
    elif k in ("salu", "smem"):
        if mn.startswith(("s_cmp", "s_cbranch", "s_branch", "s_endpgm", "s_setprio", "s_sleep", "s_bitcmp")): R = sum((regs(o) for o in ops), [])
        elif ops: Wr = regs(ops[0]); R = sum((regs(o) for o in ops[1:]), [])
    return R, Wr

def check(trace, name="", passes=4):
    errs = []
    DL = {4: (8, 6, 3), 8: (12, 10, 7)}
    pend = {}
    cnt = {"lg": 0, "vm": 0}; done = {"lg": 0, "vm": 0}
    pos = 0
    last_valu_w = {}; last_trans_w = {}; last_mfma_w = {}; last_mfma_c = {}; last_store = {}; last_salu_w = {}; last_valu_sw = {}
    reads = []
    dmas = defaultdict(list)
    bar_lg = 0; bar_vm = 0
    smem_out = False
    vmtags = []
    for n, x in enumerate(trace):
        if x.kind == "comment" and x.text.startswith("; @ASSERT"):
            idx = [i for i, t in enumerate(vmtags) if t == x.vm]
            if not idx or idx[-1] >= (done["vm"] if x.text.endswith("D") else bar_vm): errs.append(f"[{name}] #{n} ASSERT {x.vm} not complete at last barrier")
        if x.kind in ("label", "comment"): continue
        def err(m): errs.append(f"[{name}] #{n} '{x.text}': {m}")
        if x.kind == "wait" and "w0only" in x.text:
            pend.pop("v125", None); pos += 1; continue
        if x.kind == "wait":
            m = re.search(r"vmcnt\((\d+)\)", x.text)
            if m: done["vm"] = max(done["vm"], cnt["vm"] - int(m.group(1)))
            m = re.search(r"lgkmcnt\((\d+)\)", x.text)
            if m:
                v = int(m.group(1))
                if v == 0: smem_out = False
                if not smem_out: done["lg"] = max(done["lg"], cnt["lg"] - v)
            pos += 1; continue
        if x.kind == "barrier":
            bar_lg = done["lg"]; bar_vm = done["vm"]; pos += 1; continue
        if x.kind == "nop":
            pos += int(x.text.split()[1]) + 1; continue
        R, Wr = rw(x)
        mn = x.text.split()[0]
        for r in (R if x.tag == "touch" else R + Wr):
            if r in pend:
                c, i = pend[r]
                if x.kind == "vmem" and c == "vm" and r in Wr and r not in R and len(Wr) == 1: continue
                if i >= done[c]: err(f"reg {r} has pending {c} load #{i} (done {done[c]})")
                else: del pend[r]
        def dist(d, r): return pos - d[r] - 1 if r in d else 99
        if x.kind == "mfma":
            ops = [o.strip() for o in re.split(r",(?![^\[]*\])", x.text.partition(" ")[2])]
            D = regs(ops[0]); A = regs(ops[1]) + regs(ops[2]); C = regs(ops[3])
            for r in A + C:
                if dist(last_valu_w, r) < 2: err(f"VALU->MFMA {r} dist {dist(last_valu_w, r)}")
            for r in A:
                if r in last_mfma_w and pos - last_mfma_w[r][0] - 1 < DL[last_mfma_w[r][2]][0]: err(f"MFMA D->A/B {r}")
            for r in C:
                if r in last_mfma_w and last_mfma_w[r][1] != tuple(C) and pos - last_mfma_w[r][0] - 1 < DL[last_mfma_w[r][2]][1]: err(f"MFMA D->C overlap {r}")
            p = 8 if "32x32" in mn else 4
            for r in D:
                last_mfma_w[r] = (pos, tuple(D), p)
            for r in C: last_mfma_c[r] = (pos, p)
        else:
            if x.kind in ("valu", "trans", "vmem", "lds"):
                for r in R + Wr:
                    if r in last_mfma_w and pos - last_mfma_w[r][0] - 1 < DL[last_mfma_w[r][2]][0]: err(f"MFMA D->use {r} dist {pos - last_mfma_w[r][0] - 1}")
            if x.kind in ("valu", "trans"):
                for r in Wr:
                    if r in last_mfma_c and pos - last_mfma_c[r][0] - 1 < DL[last_mfma_c[r][1]][2]: err(f"MFMA C WAR {r}")
                    if dist(last_store, r) < 2: err(f"store data WAR {r}")
                if x.kind == "valu":
                    for r in R:
                        if dist(last_trans_w, r) < 1: err(f"trans->valu {r}")
                for r in R:
                    if r[0] in "s" and r[1:].isdigit() or r == "vcc":
                        if dist(last_valu_sw, r) < 2: err(f"VALU sgpr->VALU const {r}")
                if mn.startswith(("v_readlane", "v_readfirstlane")):
                    for r in R:
                        if dist(last_valu_w, r) < 1: err(f"VALU->readlane {r}")
                if mn.startswith("v_permlane") or "_dpp" in mn:
                    for r in R:
                        if dist(last_valu_w, r) < 2: err(f"VALU->permlane/dpp {r}")
            if x.kind == "vmem":
                for r in R:
                    if dist(last_valu_sw, r) < 5: err(f"VALU sgpr->VMEM {r}")
                if " lds" in x.text and dist(last_salu_w, "m0") < 1: err("m0->lds dma")
            if x.kind in ("vmem", "lds"):
                for r in Wr:
                    if dist(last_store, r) < 1: err(f"store data WAR(load) {r}")
        if x.kind == "lds":
            if x.rd:
                lo, hi, gen = x.rd
                if gen is not None:
                    if gen not in dmas: err(f"read of gen {gen} w/o dma")
                    elif max(dmas[gen]) >= bar_vm: err(f"read of gen {gen} not covered by vmcnt+barrier (dma {max(dmas[gen])} bar_vm {bar_vm})")
                reads.append((lo, hi, gen, cnt["lg"]))
            for r in Wr: pend[r] = ("lg", cnt["lg"])
            cnt["lg"] += 1
        elif x.kind == "smem":
            for r in Wr: pend[r] = ("lg", cnt["lg"])
            cnt["lg"] += 1; smem_out = True
        elif x.kind == "vmem" and "w0only" in x.text: pass
        elif x.kind == "vmem":
            if x.wr:
                lo, hi, gen = x.wr
                for (l2, h2, g2, li) in reads:
                    if g2 != gen and l2 < hi and lo < h2 and li >= bar_lg: err(f"DMA gen {gen} overwrites region read (gen {g2}) not retired before barrier"); break
                for g2, rng in getattr(check, "_rng", {}).items(): pass
                dmas[gen].append(cnt["vm"])
            for r in Wr: pend[r] = ("vm", cnt["vm"])
            if "store" in mn and ("x4" in mn or "x3" in mn):
                for r in regs(x.text.partition(" ")[2].split(",")[0] if mn.startswith("buffer") else x.text.split(",")[1]): last_store[r] = pos
            cnt["vm"] += 1; vmtags.append(x.tag)
        if x.kind in ("valu", "trans"):
            for r in Wr:
                if r[0] in "va" and r[1:].isdigit(): last_valu_w[r] = pos
                else: last_valu_sw[r] = pos
                if x.kind == "trans": last_trans_w[r] = pos
                elif r in last_trans_w: del last_trans_w[r]
        if x.kind == "salu":
            for r in Wr: last_salu_w[r] = pos
        pos += 1
    return errs

def text(trace):
    return "\n".join((x.text if x.label else "  " + x.text) for x in trace if not (x.kind == "comment" and "dropped" in x.text)) + "\n"

def _merge_wait(a, b):
    d = {}
    for t in (a, b):
        for nm, v in re.findall(r"(vmcnt|lgkmcnt)\((\d+)\)", t): d[nm] = min(d.get(nm, 99), int(v))
    return "s_waitcnt " + " ".join(f"{k}({d[k]})" for k in ("vmcnt", "lgkmcnt") if k in d)

def collapse(trace):
    names = []
    for x in trace:
        if x.text.startswith("; @IT "):
            n = x.text.split()[2]
            if n not in names: names.append(n)
    prog = list(trace)
    for nm in names:
        st = [i for i, x in enumerate(trace) if x.text == f"; @IT {nm}"]
        en = [i for i, x in enumerate(trace) if x.text == f"; @ENDIT {nm}"][0]
        its = [[x for x in trace[a + 1:b] if x.kind != "comment" and not getattr(x, "once", False)] for a, b in zip(st, st[1:] + [en])]
        n0 = len(its[0])
        for k, it in enumerate(its):
            bad = len(it) != n0 or any((x.text != y.text) and not (x.kind == "wait" and y.kind == "wait") for x, y in zip(it, its[0]))
            if bad:
                import difflib
                print("\n".join(list(difflib.unified_diff([x.text for x in its[0]], [x.text for x in it], lineterm="", n=2))[:50]))
                raise SystemExit(f"loop {nm}: iteration {k} differs")
        for i in range(n0):
            if its[0][i].kind == "wait":
                t = its[0][i].text
                for it in its[1:]: t = _merge_wait(t, it[i].text)
                for it in its: it[i].text = t
        a = [i for i, x in enumerate(prog) if x.text == f"; @IT {nm}"][0]
        b = [i for i, x in enumerate(prog) if x.text == f"; @ENDIT {nm}"][0]
        prog = prog[:a] + [Ins(f"L_{nm}:")] + its[0] + prog[b + 1:]
        print(f"loop {nm}: {len(its)} iterations x {n0} instrs")
    return trace, prog

import subprocess, os
def sizes_of(prog, kname):
    src = '.amdgcn_target "amdgcn-amd-amdhsa--gfx950"\n.text\n' + kname + ":\n" + text(prog)
    open("_sz.s", "w").write(src)
    subprocess.run(["clang", "-x", "assembler", "-target", "amdgcn-amd-amdhsa", "-mcpu=gfx950", "-c", "_sz.s", "-o", "_sz.o"], check=True)
    out = subprocess.run(["llvm-objdump", "-d", "--mcpu=gfx950", "_sz.o"], capture_output=True, text=True).stdout
    sz = [4 * len(l.split("//")[1].split(":")[1].split()) for l in out.splitlines() if "//" in l and l.startswith("\t")]
    n = [x for x in prog if x.kind not in ("label", "comment")]
    assert len(sz) == len(n), (len(sz), len(n))
    return sz

def add_pads(prog, kname, spacing):
    sz = iter(sizes_of(prog, kname))
    out = []; cur = None; acc = 0; cnt = {}
    for x in prog:
        if x.text.startswith("; @PAD "):
            cur = x.text.split()[2]; acc = 10 ** 6; cnt.setdefault(cur, 0); continue
        if x.text.startswith("; @ENDPAD"):
            cur = None; continue
        if x.kind in ("label", "comment"): out.append(x); continue
        s = next(sz)
        if cur is not None and acc + s + 4 > spacing:
            i = cnt[cur]; cnt[cur] += 1
            out += [Ins(f"L_pad{cur}_{i}:"), Ins(f"s_cbranch_execz L_pad{cur}_{i+1}")]; acc = 4
        out.append(x); acc += s
    for x in out:
        if x.text.startswith("s_cbranch_execz L_pad"):
            k, i = x.text.split("L_pad")[1].split("_")
            if int(i) == cnt[k]: x.text = "s_cbranch_execz L_scout_ret"
    print("pads", cnt)
    return out
```

```python
import sys, struct, math
from gen_core import *
from asmlib import build_file, NAME
from gen import srd, tr_addr, wdma_addr, lane_consts, MF
XN_OFF = 0; O_OFF = 4 << 20; H_OFF = 20 << 20; EX_OFF = 36 << 20; MB_REL = 16 << 20; TS_OFF = 104 << 20
STG = 45056
GST = [0, 90112, 45056]
PAIR = [131072, 98304, 65536, 32768, 0]
K2SLOT = [0, 16384, 32768, 49152, 131072, 147456]
FBSLOT0 = 98304
BRING = [176, 192, 208, 224, 240, 144]
AFR = [192, 200, 224, 232, 64, 72, 80, 88]
def b2reg(n, s, mb):
    b = BRING[n % 6] + (s * 2 + mb) * 4
    return f'a[{b}:{b+3}]'
f2u = lambda f: struct.unpack("<I", struct.pack("<f", f))[0]
QSCALE = f2u(math.log2(math.e) / math.sqrt(128.0))
LNLDS = 163840 - 512
STAMP = False
SC = " sc1"
NST = [0]
def stamp():
    if not STAMP: return []
    k = NST[0]; NST[0] += 1
    return L(f"s_memtime s[84:85]\ns_memrealtime s[86:87]\ns_waitcnt lgkmcnt(0)\nv_writelane_b32 v0, s84, {2*k}\nv_writelane_b32 v0, s86, {2*k+1}")
def stamp_store():
    if not STAMP: return []
    t = srd(8, 60, 61, 1 << 20, TS_OFF)
    t += L("s_lshl_b32 s62, s2, 10\ns_lshl_b32 s63, s33, 8\ns_add_u32 s62, s62, s63\nv_lshlrev_b32 v1, 2, v1\nv_add_u32 v1, s62, v1\nbuffer_store_dword v0, v1, s[8:11], 0 offen")
    return t
def once(lst):
    for x in lst: x.once = True
    return lst
def ASSERTD(tag):
    x = Ins("; @ASSERTD"); x.vm = tag; return x
def ASSERT(tag):
    x = Ins("; @ASSERT"); x.vm = tag; return x

def gen_fused(P=None):
    P = dict(dict(LA=2, LA2=4, thr=f2u(2.0 ** 24), touch0=0, touch=4, ocap=3, slp0=0, slp=2, xsp=3, wsp=5, lb=56, ctouch=4, order=2, sync=1, pre=1, tg=0, tkv=0, pad=0, ectouch=0, ocap2=4, flt=0, bal=1, pub5=60, fl5=16), **(P or {}))
    NST[0] = 0
    LA = P["LA"]; LA2 = P["LA2"]
    ool = []
    pro = L("""
    s_cmp_ge_u32 s2, 256
    s_cbranch_scc1 L_end
    s_load_dwordx2 s[92:93], s[0:1], 0      ; x
    s_load_dwordx4 s[48:51], s[0:1], 8      ; K, V
    s_load_dwordx4 s[52:55], s[0:1], 24
    s_load_dwordx4 s[56:59], s[0:1], 48
    s_load_dwordx4 s[72:75], s[0:1], 64
    s_load_dwordx4 s[60:63], s[0:1], 80
    """)
    pro += lane_consts()
    pro += L("""
    s_lshr_b32 s34, s2, 3
    s_and_b32 s35, s2, 4
    s_and_b32 s32, s34, 3
    s_add_u32 s32, s32, s35           ; rb
    s_bfe_u32 s35, s2, 0x10001
    s_and_b32 s3, s2, 1
    s_lshl_b32 s3, s3, 1
    s_add_u32 s35, s35, s3
    s_lshr_b32 s34, s34, 2
    s_lshl_b32 s3, s35, 3
    s_add_u32 s34, s34, s3            ; j
    s_lshl_b32 s3, s32, 5
    s_add_u32 s3, s3, s34
    s_lshl_b32 s4, s3, 3
    v_and_b32 v32, 7, v1
    v_add_u32 v33, s4, v32            ; row
    v_lshlrev_b32 v34, 11, v33
    v_lshrrev_b32 v35, 3, v1
    s_lshl_b32 s4, s33, 3
    v_add_u32 v35, s4, v35            ; kstep s
    v_lshl_add_u32 v34, v35, 6, v34
    s_mov_b32 s94, 0x400000
    s_mov_b32 s95, 0x20000
    s_waitcnt lgkmcnt(0)
    """)
    for i in range(4): pro += [Ins(f"buffer_load_dwordx4 v[{64+4*i}:{67+4*i}], v34, s[92:95], 0 offen offset:{16*i}", tag="x")]
    pro += stamp()
    defer = []
    dst = (lambda: pro) if P["ectouch"] else (lambda: defer)
    if P["ctouch"]:
        pro += L(f"""
        s_getpc_b64 s[72:73]
        """) * 0
        dst().extend(L(f"""
        s_getpc_b64 s[84:85]
        L_pc:
        s_sub_u32 s84, s84, L_pc-{NAME}_kernel
        s_subb_u32 s85, s85, 0
        s_lshr_b32 s86, s2, 3
        s_lshl_b32 s86, s86, 2
        s_add_u32 s86, s86, s33
        s_and_b32 s86, s86, 31
        s_lshl_b32 s86, s86, 12
        v_lshl_add_u32 v124, v1, 6, s86
        s_mov_b32 s87, L_code_end-{NAME}_kernel-4
        v_min_u32 v124, s87, v124
        """) + [Ins("global_load_dword v124, v124, s[84:85]", tag="touch")])
    pro += L("s_mov_b32 s44, s60\ns_mov_b32 s45, s61\ns_mov_b32 s46, 256\ns_mov_b32 s47, 0x20000\ns_mov_b32 s60, s62\ns_mov_b32 s61, s63")
    pro += L("s_lshl_b32 s62, s34, 8")
    pro += wdma_addr(7, 8192, "s62", t0=36, st=63)
    pro += L(f"""
    s_lshr_b32 s62, s34, 1
    s_mul_i32 s62, s62, 448
    s_and_b32 s63, s34, 1
    s_lshl_b32 s70, s63, 8
    s_add_u32 s70, s70, s62           ; colP
    s_lshl_b32 s71, s63, 5
    s_add_u32 s71, s71, s62
    s_add_u32 s71, s71, 192           ; colX
    v_lshrrev_b32 v36, 5, v1
    v_lshlrev_b32 v36, 3, v36
    v_bfe_u32 v37, v1, 2, 3
    v_add_u32 v36, v36, v37
    s_lshl_b32 s62, s33, 4
    v_add_u32 v36, s62, v36
    s_movk_i32 s62, 7168
    v_mul_lo_u32 v11, v36, s62
    v_bfe_u32 v36, v1, 4, 1
    v_lshlrev_b32 v36, 1, v36
    v_and_b32 v37, 3, v1
    v_xor_b32 v36, v36, v37
    v_lshl_add_u32 v11, v36, 4, v11
    s_add_u32 s70, s70, 4096
    v_add_u32 v11, s70, v11
    v_subrev_u32 v12, 960, v11
    v_subrev_u32 v13, 1920, v11
    v_lshrrev_b32 v36, 1, v1
    s_and_b32 s63, s33, 1
    s_lshl_b32 s63, s63, 5
    v_add_u32 v36, s63, v36
    v_mul_lo_u32 v14, v36, s62
    v_and_b32 v37, 1, v1
    v_lshl_add_u32 v14, v37, 4, v14
    s_add_u32 s71, s71, 4096
    v_add_u32 v14, s71, v14
    s_lshl_b32 s5, s33, 12
    s_mul_i32 s6, s33, 3072
    s_lshl_b32 s7, s33, 10
    """)
    pro += srd(8, 52, 53, 8 << 20) + srd(12, 56, 57, (7 << 20) + 4096, -4096) + srd(16, 58, 59, (7 << 20) + 4096, -4096)
    pro += L("s_cmp_lt_u32 s33, 2\ns_cselect_b32 s20, s12, s16\ns_cselect_b32 s21, s13, s17") + L(f"s_mov_b32 s22, {(7<<20)+4096:#x}\ns_mov_b32 s23, 0x20000")
    pro += srd(76, 54, 55, 8 << 20) + srd(80, 72, 73, 7 << 20) + srd(96, 74, 75, 4 << 20)
    pro += L("s_mov_b32 s52, 0\ns_mov_b32 s53, 0\ns_mov_b32 s54, 0")
    pro += L(f"s_mov_b32 s90, {GST[0]}\ns_mov_b32 s88, {GST[1]}\ns_mov_b32 s89, {GST[2]}")
    def wloads(t):
        sb = GST[t % 3]
        reg = (sb, sb + STG, ("G", t)); tag = ("W", t)
        r = [Ins("s_add_u32 m0, s5, s90")]
        r += [Ins(f"buffer_load_dwordx4 v{7+z}, s[8:11], s52 offen offset:{z*1024} lds", tag=tag, wr=reg) for z in range(4)]
        r += [Ins("s_add_u32 s100, s6, s90"), Ins("s_add_u32 m0, s100, 16384")]
        r += [Ins(f"buffer_load_dwordx4 v{11+z}, s[12:15], s53 offen offset:{z*1024} lds", tag=tag, wr=reg) for z in range(3)]
        r += [Ins("s_add_u32 m0, s100, 28672")]
        r += [Ins(f"buffer_load_dwordx4 v{11+z}, s[16:19], s53 offen offset:{z*1024} lds", tag=tag, wr=reg) for z in range(3)]
        r += [Ins("s_add_u32 s100, s7, s90"), Ins("s_add_u32 m0, s100, 40960")]
        r += [Ins(f"buffer_load_dwordx4 v14, s[20:23], s53 offen lds", tag=tag, wr=reg)]
        r += [Ins("s_add_u32 s52, s52, 0x80000"), Ins("s_add_u32 s53, s53, 0x70000")]
        r += L("s_mov_b32 s100, s90\ns_mov_b32 s90, s88\ns_mov_b32 s88, s89\ns_mov_b32 s89, s100")
        return r
    def breg(t, s, mb):
        k = (s * 4 + mb) * 4
        return f"v[{64+k}:{67+k}]" if t % 2 == 0 else f"a[{224+k}:{227+k}]"
    def xloads(t):
        r = [Ins(f"buffer_load_dwordx4 {breg(t, s, mb)}, v{15+s}, s[24:27], s54 offen offset:{mb*1024}{SC}", tag=("X", t)) for s in range(2) for mb in range(4)]
        r += [Ins("s_add_u32 s54, s54, 0x2000")]
        return r
    wl0 = wloads(0); wl1 = wloads(1); late_w1 = []
    if P['order'] == 1: defer[:0] = wl0 + wl1
    elif P['order'] == 2: pro += wl0; defer[:0] = wl1
    elif P['order'] == 3: defer[:0] = wl0; late_w1 = wl1
    elif P['order'] == 4: pro += wl0; late_w1 = wl1
    elif P['order'] == 5: pro += wl0; defer[:0] = wl1
    else: pro += wl0 + wl1
    pro += L("""
    s_lshl_b32 s62, s2, 2
    s_add_u32 s62, s62, s33
    s_lshl_b32 s63, s62, 12
    v_lshlrev_b32 v31, 6, v1
    v_add_u32 v31, s63, v31
    s_lshl_b32 s63, s62, 10
    v_and_b32 v30, 15, v1
    v_lshlrev_b32 v30, 6, v30
    v_add_u32 v30, s63, v30
    """)
    if P["touch"] == 4:
        pro += L("s_mul_i32 s63, s62, 1280\nv_min_u32 v31, 9, v1\nv_lshlrev_b32 v31, 7, v31\nv_add_u32 v31, s63, v31")
    def touch(v, sr, off):
        return [Ins(f"s_mov_b32 s62, {off:#x}"), Ins(f"buffer_load_dword v127, v{v}, s[{sr}:{sr+3}], s62 offen", tag="touch")]
    if P["touch0"]:
        defer.extend(touch(30, 8, 128 * 8192) + touch(30, 12, 4096 + 128 * 7168) + touch(30, 16, 4096 + 128 * 7168))
    pro += srd(64, 60, 61, MB_REL + 32768, EX_OFF)
    pro += L(f"""
    s_lshl_b32 s62, s3, 7
    s_add_u32 s62, s62, {MB_REL:#x}
    v_and_b32 v36, 31, v1
    v_add_u32 v28, s62, v1
    s_lshl_b32 s62, s32, 12
    s_add_u32 s62, s62, s34
    s_add_u32 s62, s62, {MB_REL:#x}
    v_lshl_add_u32 v29, v36, 7, s62
    v_mov_b32 v37, 0x7fff0000
    v_lshrrev_b32 v38, 5, v1
    v_or_b32 v38, s33, v38
    v_cmp_eq_u32 vcc, 0, v38
    v_mov_b32 v126, 0
    s_nop 0
    v_cndmask_b32 v29, v37, v29, vcc
    s_cmp_eq_u32 s33, 0
    s_cselect_b32 s70, 0, 0x40000000
    v_or_b32 v38, s33, v1
    v_cmp_eq_u32 vcc, 0, v38
    v_mov_b32 v36, s3
    s_lshl_b32 s62, s32, 5
    v_cndmask_b32 v27, v37, v36, vcc
    v_and_b32 v26, 31, v1
    v_add_u32 v26, s62, v26
    """)
    if P.get("lnst"): pro += stamp()
    pro += L(f"s_mov_b32 s62, 0xffff0000") + [W(vm="x")]
    if P.get("lnst"): pro += stamp()
    for e in range(32):
        pro += L(f"v_lshlrev_b32 v{80+e}, 16, v{64+e//2}" if e % 2 == 0 else f"v_and_b32 v{80+e}, s62, v{64+e//2}")
    def red8(v):
        return L(f"""
        s_nop 1
        v_add_f32_dpp v{v}, v{v}, v{v} row_ror:8 row_mask:0xf bank_mask:0xf
        v_mov_b32 v40, v{v}
        s_nop 1
        v_permlane16_swap_b32 v{v}, v40
        v_add_f32 v{v}, v{v}, v40
        v_mov_b32 v40, v{v}
        s_nop 1
        v_permlane32_swap_b32 v{v}, v40
        v_add_f32 v{v}, v{v}, v40
        """)
    pro += L("v_add_f32 v36, v80, v81\nv_add_f32 v37, v82, v83")
    for e in range(4, 32, 2): pro += L(f"v_add_f32 v36, v36, v{80+e}\nv_add_f32 v37, v37, v{81+e}")
    pro += L("v_add_f32 v36, v36, v37") + red8(36) + L("v_mul_f32 v36, 0x3b800000, v36")
    pro += L("v_sub_f32 v38, v80, v36\nv_sub_f32 v39, v81, v36\nv_mul_f32 v37, v38, v38\nv_mul_f32 v41, v39, v39")
    for e in range(2, 32, 2): pro += L(f"v_sub_f32 v38, v{80+e}, v36\nv_sub_f32 v39, v{81+e}, v36\nv_fmac_f32 v37, v38, v38\nv_fmac_f32 v41, v39, v39")
    pro += L("v_add_f32 v37, v37, v41") + red8(37)
    pro += L(f"""
    v_lshlrev_b32 v38, 5, v32
    v_add_u32 v38, {LNLDS:#x}, v38
    s_lshl_b32 s63, s33, 3
    v_add_u32 v39, s63, v38
    ds_write_b64 v39, v[36:37]
    s_waitcnt lgkmcnt(0)
    s_barrier
    ds_read_b128 v[44:47], v38
    ds_read_b128 v[48:51], v38 offset:16
    v_lshrrev_b32 v42, 6, v33
    v_lshlrev_b32 v42, 17, v42
    v_lshl_add_u32 v42, v35, 12, v42
    v_bfe_u32 v43, v33, 4, 2
    v_lshl_add_u32 v42, v43, 10, v42
    v_and_b32 v43, 15, v33
    v_lshl_add_u32 v42, v43, 4, v42
    """)
    pro += srd(24, 60, 61, 4 << 20, XN_OFF)
    pro += L("""
    s_waitcnt lgkmcnt(0)
    v_add_f32 v36, v44, v46
    v_add_f32 v37, v48, v50
    v_add_f32 v36, v36, v37
    v_mul_f32 v36, 0.25, v36
    v_add_f32 v37, v45, v47
    v_add_f32 v38, v49, v51
    v_add_f32 v37, v37, v38
    v_sub_f32 v44, v44, v36
    v_sub_f32 v46, v46, v36
    v_sub_f32 v48, v48, v36
    v_sub_f32 v50, v50, v36
    v_mul_f32 v38, v44, v44
    v_fmac_f32 v38, v46, v46
    v_fmac_f32 v38, v48, v48
    v_fmac_f32 v38, v50, v50
    v_fmac_f32 v37, 0x43800000, v38
    v_mul_f32 v37, 0x3a800000, v37
    v_cvt_pk_bf16_f32 v38, v36, v37
    v_lshlrev_b32 v36, 16, v38
    v_and_b32 v37, s62, v38
    v_add_f32 v37, 0x3727c5ac, v37
    v_cvt_pk_bf16_f32 v37, v37, v37
    v_and_b32 v37, s62, v37
    v_sqrt_f32 v37, v37
    s_nop 0
    v_cvt_pk_bf16_f32 v37, v37, v37
    v_and_b32 v37, s62, v37
    v_rcp_f32 v37, v37
    """)
    for e in range(32): pro += L(f"v_sub_f32 v{80+e}, v{80+e}, v36")
    for q in range(16): pro += L(f"v_cvt_pk_bf16_f32 v{64+q}, v{80+2*q}, v{81+2*q}")
    for e in range(32):
        pro += L(f"v_lshlrev_b32 v{80+e}, 16, v{64+e//2}" if e % 2 == 0 else f"v_and_b32 v{80+e}, s62, v{64+e//2}")
    for e in range(32): pro += L(f"v_mul_f32 v{80+e}, v{80+e}, v37")
    for g in range(4):
        for h, q in enumerate((2 * g, 2 * g + 1, 8 + 2 * g, 9 + 2 * g)):
            pro += L(f"v_cvt_pk_bf16_f32 v{64+g*4+h}, v{80+2*q}, v{81+2*q}")
        pro += [Ins(f"buffer_store_dwordx4 v[{64+g*4}:{67+g*4}], v42, s[24:27], 0 offen offset:{g*256}{SC}", tag="xn")]
    pro += L(f"buffer_store_byte v126, v28, s[64:67], s70 offen{SC}")
    if P.get("lnst"): pro += stamp()
    pro += L("s_nop 0\nv_mov_b32 v126, 1")
    pro += tr_addr(96, 0, True, 1024, 36) + tr_addr(97, 1, True, 1024, 36) + tr_addr(98, 0, False, 512, 36) + tr_addr(99, 1, False, 512, 36)
    pro += L("v_lshlrev_b32 v100, 3, v1")
    for i in range(5): pro += L(f"v_mov_b32 v{2+i}, v{96+i}")
    if P.get("lnst"): pro += [W(vm="all")] + stamp()
    if P["sync"] == 0:
        pro += [W(vm="all"), Ins("s_barrier"), Ins(f"buffer_store_byte v126, v27, s[44:47], 0 offen{SC}", tag="flag")]
    else:
        pro += L("v_and_b32 v27, 0xffffffe0, v27\nv_mov_b32 v125, 1")
        pro += [W(vm="all"), Ins("s_barrier"), Ins(f"buffer_atomic_add v125, v27, s[44:47], 0 offen sc0 sc1", tag="flag")]
    pro += stamp()
    if P["sync"]:
        pro += [W(vm="flag")] + L(f"""
        v_readfirstlane_b32 s70, v125
        s_sub_u32 s63, 48, s34
        s_and_b32 s70, s70, 31
        s_cmp_eq_u32 s70, 31
        s_cselect_b32 s62, s63, 0x40000000
        buffer_store_byte v126, v29, s[64:67], s62 offen{SC}
        """)
    if P["order"] == 5:
        def cp(lst, m):
            o = []
            for x in fix_m0(lst):
                y = x.copy(); y.text = y.text.replace("L_pc", "L_pc" + m) + ("" if y.label else " ; opt" + m); o.append(y)
            return o
        pro += L("s_cmp_eq_u32 s33, 0\ns_cbranch_scc1 L_skipA") + cp(defer, "A") + L("L_skipA:")
        late_w1 = L("s_cmp_lg_u32 s33, 0\ns_cbranch_scc1 L_skipB") + cp(defer, "B") + L("L_skipB:")
    else: pro += defer
    pro += L(f"""
    s_lshl_b32 s62, s32, 2
    s_add_u32 s62, s62, s33
    s_lshl_b32 s63, s62, 17
    v_lshlrev_b32 v25, 4, v1
    v_add_u32 v15, s63, v25
    v_add_u32 v16, 0x1000, v15
    s_lshl_b32 s62, s35, 19
    s_add_u32 s62, s62, {1536*256:#x}
    s_add_u32 s28, s48, s62
    s_addc_u32 s29, s49, 0
    s_mov_b32 s30, 0x20000
    s_mov_b32 s31, 0x20000
    s_add_u32 s36, s50, s62
    s_addc_u32 s37, s51, 0
    s_mov_b32 s38, 0x20000
    s_mov_b32 s39, 0x20000
    v_lshrrev_b32 v36, 4, v1
    v_and_b32 v37, 15, v1
    v_lshl_add_u32 v38, v36, 8, s5
    """)
    pro += srd(40, 60, 61, 16 << 20, O_OFF)
    for z in range(4):
        pro += L(f"v_add_u32 v39, {4*z}, v36\nv_xor_b32 v39, v39, v37\nv_lshl_add_u32 v{17+z}, v39, 4, v38")
    pro += wdma_addr(21, 256, "0", t0=40, st=63)
    pro += L("s_mov_b32 s55, 0\ns_mov_b32 s56, 0\ns_mov_b32 s57, -1\ns_mov_b32 s91, 6\ns_mov_b32 s58, 0")
    for i in range(224): pro += L(f"v_accvgpr_write_b32 a{i}, 0")
    for i in range(128, 256, 2): pro += L(f"v_mov_b64 v[{i}:{i+1}], 0")
    if P["sync"] == 0:
        pro += [W(vm=("W", 0))]
        pro += L(f"""
        s_cmp_lg_u32 s33, 0
        s_cbranch_scc1 L_x_go
        s_mov_b32 s70, 0x40000
        s_sleep {P['slp0']}
        L_x_poll:
        buffer_load_ubyte v125, v26, s[44:47], 0 offen{SC} ; w0only
        s_waitcnt vmcnt(0) ; w0only
        v_cmp_gt_u32 vcc, 1, v125
        s_sub_u32 s70, s70, 1
        s_cbranch_scc1 L_x_go
        s_cbranch_vccz L_x_go
        s_sleep {P['slp']}
        s_branch L_x_poll
        L_x_go:
        s_barrier
        """)
    else:
        if P["pad"]:
            pro += L("""
            s_cmp_eq_u32 s33, 0
            s_cbranch_scc1 L_scout_ret
            s_mov_b64 exec, 0
            s_cmp_eq_u32 s33, 1
            s_cbranch_scc1 L_pad1_0
            s_cmp_eq_u32 s33, 2
            s_cbranch_scc1 L_pad2_0
            s_branch L_pad3_0
            L_scout_ret:
            s_mov_b64 exec, -1
            """)
        pro += [W(vm=("W", 0))]
        pro += L(f"""
        s_cmp_lg_u32 s33, 0
        s_cbranch_scc1 L_x_go
        s_mov_b32 s70, 0x40000
        L_x_poll:
        buffer_load_ubyte v125, v28, s[64:67], 0 offen{SC} ; w0only
        s_waitcnt vmcnt(0) ; w0only
        v_readlane_b32 s62, v125, 48
        s_sub_u32 s70, s70, 1
        s_cbranch_scc1 L_x_go
        s_cmp_eq_u32 s62, 0
        s_cbranch_scc1 L_x_poll
        L_x_go:
        s_barrier
        """)
    pro += stamp() + (xloads(0) + late_w1 + xloads(1) if not P.get('o6') else xloads(0) + xloads(1) + [W(vm=('X', 0))] + late_w1)
    pro += srd(44, 60, 61, 14 << 20, H_OFF)
    pro += stamp()
    def kvloads(tau, dyn):
        r = []
        for v in range(2):
            sb = PAIR[tau % 5] + v * 16384; i = 2 * tau + v; reg = (sb, sb + 16384, ("KV", i)); tag = ("KV", i)
            r.append(Ins(f"s_add_u32 m0, s89, {v*16384}" if dyn else f"s_add_u32 m0, s5, {sb:#x}"))
            for z in range(4):
                r.append(Ins(f"buffer_load_dwordx4 v{(21 if v else 17)+z}, s[{36 if v else 28}:{39 if v else 31}], s55 offen offset:{z*1024} lds", tag=tag, wr=reg))
        r.append(Ins("s_add_u32 s55, s55, 0x4000"))
        return r
    blocks = []
    for p in range(3):
        for e in range(2):
            for m in range(2):
                bi = (p * 2 + e) * 2 + m
                blocks.append((4 + e, (lambda s, r, p=p, m=m: 16384 + m * 12288 + (2 * s + r) * 3072 + p * 1024), "a", bi * 16))
    for m in range(2):
        blocks.append((6, (lambda s, r, m=m: 40960 + m * 2048 + s * 1024 + r * 512), "a", (12 + m) * 16))
    for nb in range(8):
        b32, e = nb >> 1, nb & 1
        blocks.append((2 + e, (lambda s, r, b32=b32: (b32 >> 1) * 8192 + (b32 & 1) * 512 + s * 4096 + r * 2048), "v", 128 + nb * 16))
    NB = len(blocks); T = 16; TM = NB * 8
    gg = [(t, nb) for t in range(14) for nb in range(NB)] + [(14, nb) for nb in range(14)] + [(15, nb) for nb in range(14)] + [(14, nb) for nb in range(14, 22)] + [(15, nb) for nb in range(14, 22)]
    gidx = {k: i for i, k in enumerate(gg)}
    sc = Sched(2)
    for G, (t, nb) in enumerate(gg):
        va, imm, ak, ab = blocks[nb]; fb = 32 + (G % 4) * 8
        for mb in range(4):
            for s in range(2):
                ac = f"{ak}[{ab+mb*4}:{ab+mb*4+3}]"
                sc.mfma(f"{MF} {ac}, v[{fb+s*4}:{fb+s*4+3}], {breg(t, s, mb)}, {ac}")
    def rd(G):
        t, nb = gg[G]; va, imm, _, _ = blocks[nb]; fb = 32 + (G % 4) * 8; sb = GST[t % 3]
        return [Ins(f"ds_read_b64_tr_b16 v[{fb+s*4+r*2}:{fb+s*4+r*2+1}], v{va} offset:{imm(s, r)}", tag=("P", G), rd=(sb, sb + STG, ("G", t))) for s in range(2) for r in range(2)]
    LB = P['lb']
    for it in range(8):
        g = 2 * it * TM + LB
        if it == 0: sc.used[g] += 2
        else: sc.fixed_front(g, L("s_sub_u32 s91, s91, 1\ns_cbranch_scc0 L_G"))
        sc.fixed_front(g, Ins("; @IT G" if it < 7 else "; @ENDIT G"))
    for t in range(0, T):
        g0 = gidx[(t, 0)] * 8
        if t >= 1: sc.fixed_front(g0 - 8 * LA, [W(vm=("W", t)), Ins("s_barrier")])
        sc.fixed_back(g0, W(vm=("X", t)))
    for G in range(len(gg)): sc.fixed_back(G * 8, W(lg=("P", G)))
    d15 = GST[0] - GST[2]
    for G, (t, nb) in enumerate(gg):
        upd = []
        if nb == 0 and 0 < t < 15: upd = [f"v_add_u32 v{va}, s88, v{94+va}" for va in range(2, 7)]
        if (t, nb) == (15, 0): upd = [f"v_subrev_u32 v{va}, {-d15:#x}, v{va}" for va in (4, 5, 6)]
        if (t, nb) == (15, 14): upd = [f"v_subrev_u32 v{va}, {-d15:#x}, v{va}" for va in (2, 3)]
        for u_ in upd: sc.flow("lds", 8 * (G - LA) - 3, Ins(u_), deadline=8 * (G - LA))
        for i, x in enumerate(rd(G)): sc.flow("lds", 8 * (G - LA) + i, x, deadline=8 * (G - 1) + 2)
    for t in range(1, 15): sc.fixed_front(t * TM + 2, Ins("s_barrier ; FB"))
    def vflow(S, g, its, sp, dl=None):
        for x in its:
            if x.kind == "vmem": x.cost = 2
            g = S.flow("vm", g if dl is None else min(g, dl), x, mingap=(1 if x.kind == "vmem" and S.qpos.get("vm") != dl else 0), deadline=dl) + (sp if x.kind == "vmem" else 0)
        return g
    for t in range(0, 15):
        g = t * TM + 1
        if t == 0:
            its = []
            if P["tkv"]: its += touch(30, 28, 0) + touch(30, 36, 0)
            if P["tg"]:
                its += touch(31, 8, 256 * 8192) + touch(31, 12, 4096 + 256 * 7168) + touch(31, 16, 4096 + 256 * 7168)
                its += touch(31, 8, 512 * 8192) + touch(31, 12, 4096 + (3 << 20)) + touch(31, 16, 4096 + (3 << 20))
            g = vflow(sc, g, its, P["xsp"] - 1)
        else:
            ex = []
            if P["touch"] == 4 and t % 2 == 1:
                ex = [Ins("buffer_load_dword v127, v31, s[80:83], s58 offen", tag="touch"), Ins("buffer_load_dword v127, v31, s[76:79], s58 offen", tag="touch"), Ins(f"s_add_u32 s58, s58, {1024*1280:#x}")]
            g = vflow(sc, g, xloads(t + 1) + ex, P["xsp"])
        assert g < t * TM + LB + P["xsp"] or t % 2 == 1, g - t * TM
        g = max(g, t * TM + LB + 1)
        items = wloads(t + 2) if t + 2 < T else []
        if t == 14:
            items += kvloads(0, False) + kvloads(1, False)
            if P["touch"] == 1: items += touch(31, 80, 0) + touch(31, 80, 3 << 20) + touch(31, 76, 0) + touch(31, 76, 4 << 20)
        g = vflow(sc, g, items, P["wsp"] if t < 14 else 3)
        assert g < (t + 1) * TM - 8 * LA - 4 + P["wsp"] or t >= 14, g - t * TM
    g0 = 14 * TM + LB + 1
    hs = L(f"""
    s_lshl_b32 s62, s32, 2
    s_add_u32 s62, s62, s33           ; mb64
    s_mul_i32 s63, s62, {112*4096}
    s_lshr_b32 s3, s34, 1
    s_mul_i32 s3, s3, 7
    s_and_b32 s4, s34, 1
    s_lshl_b32 s52, s4, 2
    s_add_u32 s52, s52, s3
    s_lshl_b32 s52, s52, 12
    s_add_u32 s52, s52, s63           ; P base
    s_add_u32 s3, s3, 3
    s_lshl_b32 s3, s3, 12
    s_add_u32 s3, s3, s63
    s_lshl_b32 s4, s4, 3
    s_add_u32 s3, s3, s4
    s_add_u32 s53, s52, 4096
    s_add_u32 s54, s52, 8192
    s_mov_b32 s72, s63
    s_lshl_b32 s75, s62, 19
    s_mov_b32 s70, {QSCALE:#x}
    s_mov_b32 s71, s70
    """)
    for x in hs: sc.flow("hd", sc.qpos["vm"] + 1, x)
    k = 0
    for p in range(4):
        ne = 2 if p < 3 else 1
        for mb in range(4):
            tb = 96; ob = 112 + (k % 3) * 4; k += 1
            last = gidx[(15, 4 * p + 3 if p < 3 else 13)] * 8 + mb * 2 + 1
            g = last + 6
            for e in range(ne):
                bi = (p * 2 + e) * 2 if p < 3 else 12
                for i in range(4):
                    sc.flow("hd", g, Ins(f"v_accvgpr_read_b32 v{tb+e*4+i}, a{bi*16+mb*4+i}")); sc.flow("hd", g, Ins(f"v_accvgpr_read_b32 v{tb+8+e*4+i}, a{(bi+1)*16+mb*4+i}"))
            for q in range(4 * ne): sc.flow("hd", g, Ins(f"v_mul_f32 v{tb+q}, v{tb+q}, v{tb+8+q}"))
            for q in range(2 * ne): sc.flow("hd", g, Ins(f"v_cvt_pk_bf16_f32 v{ob+q}, v{tb+2*q}, v{tb+2*q+1}"))
            if p < 3: x = Ins(f"buffer_store_dwordx4 v[{ob}:{ob+3}], v25, s[44:47], s{52+p} offen offset:{mb*1024}{SC}", tag="Hst")
            else: x = Ins(f"buffer_store_dwordx2 v[{ob}:{ob+1}], v25, s[44:47], s3 offen offset:{mb*1024}{SC}", tag="Hst")
            sc.flow("hd", g, x)
    def qfr(qb, be): return 128 + 32 * be + 4 * qb
    for be in range(4):
        g = gidx[(15, 14 + 2 * be + 1)] * 8 + 7 + 6
        for qb in range(4):
            a = qfr(qb, be); b = a + 16
            for r in (a, a + 1, a + 2, a + 3, b, b + 1, b + 2, b + 3): sc.flow("qp", g, Ins(f"v_mul_f32 v{r}, s70, v{r}"))
            for h, r in enumerate((a, a + 2, b, b + 2)): sc.flow("qp", g, Ins(f"v_cvt_pk_bf16_f32 v{a+h}, v{r}, v{r+1}"))
        sw_ = L("s_mov_b64 exec, s[56:57]") + sum([L(f"v_swap_b32 v{qfr(qb, be)}, v{qfr(qb, be)+2}\nv_swap_b32 v{qfr(qb, be)+1}, v{qfr(qb, be)+3}") for qb in range(4)], []) + L("s_mov_b64 exec, -1")
        sc.flowg("qp", len(sc.mf), sw_)
    tail = sc.mid[len(sc.mf)]; nt = []
    i = 0
    while i < len(tail):
        x = tail[i]
        if i + 1 < len(tail) and x.text.startswith("v_mul_f32") and tail[i + 1].text.startswith("v_mul_f32"):
            o1 = [o.strip() for o in x.text[10:].split(",")]; o2 = [o.strip() for o in tail[i + 1].text[10:].split(",")]
            r = int(o1[0][1:])
            if r % 2 == 0 and int(o2[0][1:]) == r + 1:
                if o1[1] == "s70": nt.append(Ins(f"v_pk_mul_f32 v[{r}:{r+1}], v[{r}:{r+1}], s[70:71]"))
                else:
                    q = int(o1[2][1:]); nt.append(Ins(f"v_pk_mul_f32 v[{r}:{r+1}], v[{r}:{r+1}], v[{q}:{q+1}]"))
                i += 2; continue
        nt.append(x); i += 1
    print("G", sc.stats()[:50], "exposed tail instrs", len(nt))
    sc.mid[len(sc.mf)] = stamp() + L("s_nop 7") + nt
    G_ = sc.emit()
    if STAMP and P.get("gst"):
        i = [k for k, x in enumerate(G_) if x.text == "; @IT G"][0]
        G_ = G_[:i] + stamp() + G_[i:]
        i = [k for k, x in enumerate(G_) if x.text == "; @ENDIT G"][0] + 1
        G_ = G_[:i] + stamp() + G_[i:]
    mid = L("""
    v_and_b32 v116, 3, v1
    v_cmp_eq_u32 vcc, 0, v116
    v_mov_b32 v117, 0x3f803f80
    v_lshrrev_b32 v118, 4, v1
    v_cndmask_b32 v112, 0, v117, vcc
    v_cndmask_b32 v113, 0, v117, vcc
    v_cndmask_b32 v114, 0, v117, vcc
    v_cndmask_b32 v115, 0, v117, vcc
    v_and_b32 v119, 15, v1
    """)
    for b in range(4):
        mid += L(f"v_add_u32 v120, {4*b}, v118\nv_xor_b32 v120, v120, v119\nv_lshlrev_b32 v120, 4, v120\nv_lshl_add_u32 v{11+b}, v119, 8, v120\nv_add_u32 v{11+b}, {PAIR[0]:#x}, v{11+b}")
    mid += L(f"s_mov_b32 s100, 0xffff8000\ns_mov_b32 s101, 0x20000\ns_add_u32 s4, s5, {PAIR[0]:#x}")
    mid += stamp()
    late = tr_addr(15, 0, False, 1024, 120) + tr_addr(16, 1, False, 1024, 120)
    late += L(f"v_add_u32 v15, {PAIR[0]+16384+32768:#x}, v15\nv_add_u32 v16, {PAIR[0]+16384+32768:#x}, v16")
    late2 = L(f"""
    v_add_u32 v6, 0x20000, v2
    v_add_u32 v30, 0x20000, v3
    s_lshr_b32 s48, s34, 4            ; type
    s_bfe_u32 s49, s34, 0x30001
    s_lshl_b32 s49, s49, 8            ; ct bytes
    s_lshl_b32 s73, s34, 14
    s_add_u32 s53, s75, s73           ; O store base
    s_and_b32 s50, s34, 1
    s_lshl_b32 s51, s32, 1
    s_add_u32 s50, s50, s51           ; rt
    s_lshl_b32 s51, s50, 1
    s_lshr_b32 s73, s33, 1
    s_add_u32 s51, s51, s73           ; mb64 of K2 rows
    s_mul_i32 s71, s48, {(28+3*P['bal'])*64*2048}
    s_mul_i32 s72, s51, {112*4096}
    s_mul_i32 s73, s48, {(28+3*P['bal'])*2*4096}
    s_add_u32 s72, s72, s73
    s_lshl_b32 s74, s48, 22
    s_lshl_b32 s75, s51, 19
    s_lshl_b32 s73, s48, 18
    s_add_u32 s75, s75, s73
    s_and_b32 s73, s33, 1
    s_lshl_b32 s73, s73, 11
    v_add_u32 v26, s73, v25
    v_add_u32 v27, 0x1000, v26
    s_mov_b64 s[8:9], s[80:81]
    s_mov_b32 s10, s82
    s_mov_b64 s[12:13], s[44:45]
    s_mov_b32 s14, s46
    s_mov_b32 s88, 3
    s_mov_b32 s91, 4
    """) + wdma_addr(7, 2048, "0", t0=120, st=63)
    if P.get("perm"):
        late2 += L("s_lshr_b32 s63, s33, 1\ns_lshl_b32 s63, s63, 7\ns_and_b32 s73, s49, 0x100\ns_lshr_b32 s73, s73, 1\ns_and_b32 s49, s49, 0x600\ns_add_u32 s49, s49, s73")
        for z in range(4): late2 += L(f"v_add_u32 v{7+z}, s63, v{7+z}")
        late2 += L("s_lshl_b32 s63, s48, 8\ns_xor_b32 s63, s63, 256")
    else: late2 += L("s_lshl_b32 s63, s48, 7\ns_xor_b32 s63, s63, 128")
    for z in range(4): late2 += L(f"v_xor_b32 v{7+z}, s63, v{7+z}\nv_add_u32 v{7+z}, s49, v{7+z}")
    at = Sched(2)
    qk0 = {}; pv0 = {}
    KR = 11; VR = 15
    def sbl(u, qb, kb): return 144 + 64 * (u % 2) + 32 * kb + 4 * qb
    def kfb(u, kb, be):
        f = (144 if u % 2 else 64) + (kb * 4 + be) * 4
        return f"{'a' if u % 2 else 'v'}[{f}:{f+3}]"
    def qk_list(u, first, kf):
        r = []
        for qb in range(4):
            for kb in range(2):
                d = sbl(u, qb, kb)
                for be in range(4):
                    c = f"v[{d}:{d+3}]" if be else ("0" if first else f"v[{96+qb*4}:{99+qb*4}]")
                    q = qfr(qb, be)
                    r.append(f"{MF} v[{d}:{d+3}], {kf(kb, be)}, v[{q}:{q+3}], {c}")
        return r
    def dborder(u): return [8, 0, 1, 2, 3, 4, 5, 6, 7] if u == 15 else list(range(9))
    def pv_list(u, vf, first=False):
        r = []
        for db in dborder(u):
            for qb in range(4):
                ac = (db * 4 + qb) * 4; pf = sbl(u, qb, 0)
                a = vf(db) if db < 8 else "v[112:115]"
                r.append(f"{MF} a[{ac}:{ac+3}], {a}, v[{pf}:{pf+3}], {'0' if first else f'a[{ac}:{ac+3}]'}")
        return r
    def QK(u):
        qk0[u] = len(at.mf)
        for m in qk_list(u, u == 0, lambda kb, be: kfb(u, kb, be)): at.mfma(m)
    def PV(u):
        pv0[u] = len(at.mf)
        for m in pv_list(u, lambda db: f"v[{32+db*4}:{35+db*4}]", u == 0): at.mfma(m)
    QK(0); QK(1)
    for u in range(14): PV(u); QK(u + 2)
    PV(14); PV(15)
    NU = 16
    def pvpos(u, db): return pv0[u] + dborder(u).index(db) * 4
    kb0 = len(at.mf)
    BAL = P['bal']; NT = 60 + 3 * BAL; R2 = 6; NN = NT - 6; PD = 5; NB0 = 28 + 3 * BAL; NL = 54
    grp = [(n, nb) for n in range(NN) for nb in range(8)] + [(n, nb) for n in range(NN, NT - 2) for nb in range(4)] + [(n, nb) for nb in range(4) for n in (NT - 2, NT - 1)] + [(n, nb) for n in range(NN, NT) for nb in range(4, 8)]
    g2 = {k: i for i, k in enumerate(grp)}
    for G, (n, nb) in enumerate(grp):
        fb = AFR[G % 8]
        for mb in range(2):
            for s in range(2):
                r = 128 + (nb * 2 + mb) * 4; ac = f"v[{r}:{r+3}]"
                at.mfma(f"{MF} {ac}, v[{fb+s*4}:{fb+s*4+3}], {b2reg(n, s, mb)}, {'0' if (n == 0 and s == 0) else ac}")
    def gp(G): return kb0 + 4 * G
    def t0(n): return gp(g2[(n, 0)])
    VLA = 12; ALB = 4
    CHK = pv0[15] + 12
    for it in range(1, 7):
        g = pv0[2 * it] + ALB
        if it == 1: at.used[g] += 2
        else: at.fixed_front(g, L("s_sub_u32 s91, s91, 1\ns_cbranch_scc0 L_A"))
        at.fixed_front(g, Ins("; @IT A" if it < 6 else "; @ENDIT A"))
    at.fixed_front(-10, [W(vm=("KV", 0)), Ins("s_barrier")])
    bpos = {}
    for tau in range(8):
        bpos[tau] = pv0[2 * tau] - VLA - 1
        at.fixed_front(bpos[tau], [W(vm=("KV", min(2 * tau + 2, 15))), Ins("s_barrier")])
    SAVE = [208 + 2 * i for i in range(8)] + [240 + 2 * i for i in range(8)]
    def exch(br, store, base, tag):
        so = "s58" if br else "0"
        return [Ins(f"buffer_store_dwordx4 v[{base+4*i}:{base+4*i+3}], v17, s[64:67], {so} offen offset:{i*1024}{SC}" if store else f"buffer_load_dwordx4 v[{base+4*i}:{base+4*i+3}], v18, s[64:67], {so} offen offset:{i*1024}{SC}", tag=tag) for i in range(4)]
    def packs(dst): return [Ins(f"v_cvt_pk_bf16_f32 v{dst+i}, v{128+2*i}, v{129+2*i}") for i in range(16)]
    sw = once(L("L_K_sw:\ns_nop 7") + packs(96) + exch(0, True, 96, "Bst") +
              sum([L(f"v_mov_b64 v[{SAVE[i]}:{SAVE[i]+1}], v[{160+2*i}:{161+2*i}]") for i in range(16)], []) +
              sum([L(f"v_mov_b64 v[{r}:{r+1}], 0") for r in range(128, 192, 2)], []) +
              L("s_nop 1\ns_branch L_K_sw_ret"))
    ksw, psw = divmod(NB0, R2)
    for k in range(1, 10):
        g = t0(R2 * k)
        if k == 1: at.used[g] += 2
        else: at.fixed_front(g, L("s_sub_u32 s91, s91, 1\ns_cbranch_scc0 L_K"))
        at.fixed_front(g, Ins("; @IT K" if k < 9 else "; @ENDIT K"))
        if k < 9:
            g = t0(R2 * k + psw)
            at.fixed_front(g, L(f"s_cmp_eq_u32 s91, {8-ksw}\ns_cbranch_scc1 L_K_sw"))
            if k == ksw: at.front[g] += sw
            at.fixed_front(g, Ins("L_K_sw_ret:"))
    b2 = {}
    for n in range(NT):
        b2[n] = t0(n) - 4 * LA2
        if n in (NN + 2, NN + 3, NT - 1): continue
        at.fixed_front(b2[n], [W(vm=("T", {NN + 1: NN + 3, NT - 2: NT - 1}.get(n, n))), Ins("s_barrier")])
    for G in range(0, len(grp), 2): at.fixed_back(gp(G), W(lg=("P2", G + 1)))
    assert b2[0] > CHK
    for u in range(NU):
        at.fixed_back(qk0[u], W(lg=("K", u, 0)))
        at.fixed_back(qk0[u] + 4, W(lg=("K", u, 1)))
        for db in range(0, 8, 2): at.fixed_back(pvpos(u, db), W(lg=("V", u, db + 1)))
    chk = []
    for qb in range(4): chk += L(f"v_accvgpr_read_b32 v{116+qb}, a{128+qb*4}")
    chk += L(f"""
    v_max3_f32 v124, v116, v117, v118
    s_mov_b32 s62, {P['thr']:#x}
    v_max_f32 v124, v124, v119
    v_cmp_nge_f32 vcc, s62, v124
    s_cbranch_vccnz L_fallback
    L_fb_ret:
    """)
    for qb in range(4): chk += L(f"v_rcp_f32 v{120+qb}, v{116+qb}")
    at.fixed_front(CHK, chk)
    for x in late: at.flow("late", -8, x, deadline=20)
    ev = []; evk = []
    def kreads(u):
        tau = u // 2; sb = PAIR[tau % 5]; r = []
        if u % 2 == 0 and u > 0:
            r.append(L("s_cmp_eq_u32 s88, 2\ns_cselect_b32 s90, s101, s100") if 4 <= u <= 12 else L("s_mov_b32 s90, s100"))
            r += [Ins(f"v_add_u32 v{x}, s90, v{x}") for x in range(KR, KR + 4)]
        for kb in range(2):
            for be in range(4):
                r.append(Ins(f"ds_read_b128 {kfb(u, kb, be)}, v{KR+be} offset:{((u%2)*2+kb)*4096}", tag=("K", u, kb), rd=(sb, sb + 16384, ("KV", 2 * tau))))
        return r
    def vreads(u, db):
        tau = u // 2; sb = PAIR[tau % 5] + 16384; r = []
        if u % 2 == 0 and db == 0:
            r.append(L("s_cmp_eq_u32 s88, 2\ns_cselect_b32 s59, s101, s100") if 4 <= u <= 12 else L("s_mov_b32 s59, s100"))
            r += [Ins(f"v_add_u32 v{x}, s59, v{x}") for x in (VR, VR + 1)]
        b32, e = db >> 1, db & 1; f = 32 + db * 4
        for rr in range(2):
            r.append(Ins(f"ds_read_b64_tr_b16 v[{f+rr*2}:{f+rr*2+1}], v{VR+e} offset:{(b32>>1)*8192+(b32&1)*512+(u%2)*4096+rr*2048}", tag=("V", u, db), rd=(sb, sb + 16384, ("KV", 2 * tau + 1))))
        return r
    for i, x in enumerate(kreads(0)): evk.append((-9 + i // 2, 0, x))
    for i, x in enumerate(kreads(1)): evk.append((4 + 2 * (i // 2 * 2), qk0[1] - 4, x))
    for u in range(NU):
        for db in range(8):
            lo = pvpos(u, db) - VLA
            if u >= 1: lo = max(lo, pvpos(u - 1, db) + 4)
            for x in vreads(u, db): ev.append((lo, pvpos(u, db & ~1) - 4, x))
        if u + 2 < NU:
            kr = kreads(u + 2); off = 1 if len(kr) > 8 else 0
            for i, x in enumerate(kr): evk.append((pv0[u] + ALB + 3 + (4 if u % 2 else 3) * ((i + off) // 2), qk0[u + 2] - 4, x))
    def rd2(G):
        n, nb = grp[G]; sb = K2SLOT[n % R2]; fb = AFR[G % 8]
        b32, e = nb >> 1, nb & 1
        va = [(2, 3), (4, 5), (6, 30)][sb >> 16][e]
        return [Ins(f"ds_read_b64_tr_b16 v[{fb+s*4+rr*2}:{fb+s*4+rr*2+1}], v{va} offset:{(sb & 0xffff)+(b32>>1)*8192+(b32&1)*512+s*4096+rr*2048}", tag=("P2", G), rd=(sb, sb + 16384, ("T", n))) for s in range(2) for rr in range(2)]
    for G in range(len(grp)):
        for i, x in enumerate(rd2(G)): ev.append((gp(G - LA2) + i, gp(G - 2), x))
    ev.sort(key=lambda e: e[0])
    for it in range(1, 6):
        at.fixed_front(pv0[2 * it] + ALB + 1, L("s_add_u32 s88, s88, 1\ns_cmp_eq_u32 s88, 5\ns_cselect_b32 s88, 0, s88"))
        at.fixed_front(pv0[2 * it] + ALB + 2, L("s_lshl_b32 s89, s88, 15\ns_sub_u32 s89, s4, s89"))
    def maxseq(a, b, t0):
        return [f"v_max3_f32 v{t0}, v{a}, v{a+1}, v{a+2}", f"v_max3_f32 v{t0+1}, v{a+3}, v{b}, v{b+1}", f"v_max3_f32 v{t0}, v{t0}, v{b+2}, v{b+3}", f"v_max_f32 v{t0}, v{t0}, v{t0+1}"]
    def xlane(t0, t1):
        return [f"v_mov_b32 v{t1}, v{t0}", "s_nop 1", f"v_permlane16_swap_b32 v{t0}, v{t1}", f"v_max_f32 v{t0}, v{t0}, v{t1}",
                f"v_mov_b32 v{t1}, v{t0}", "s_nop 1", f"v_permlane32_swap_b32 v{t0}, v{t1}", f"v_max_f32 v{t0}, v{t0}, v{t1}"]
    for q_, lst in (("lds", ev), ("ldsk", evk)):
        for g, dl, x in lst:
            if isinstance(x, list): at.flowg(q_, g, x, deadline=dl, strict=True)
            else: at.flow(q_, g, x, deadline=dl)
    nspin = [0]
    def flagload(tag, so="0"): return Ins(f"buffer_load_ubyte v125, v28, s[64:67], {so} offen{SC}", tag=tag)
    def check_(tag, test):
        k = nspin[0]; nspin[0] += 1
        ool.extend(L(f"L_spin{k}:\ns_mov_b32 s70, 0x40000\nL_spin{k}_l:\n{flagload(0).text}\ns_waitcnt vmcnt(0)\ns_sub_u32 s70, s70, 1\ns_cbranch_scc1 L_spin{k}_ret\n{test}\ns_cbranch_scc0 L_spin{k}_ret\ns_sleep 1\ns_branch L_spin{k}_l"))
        return [W(vm=tag)] + L(f"{test}\ns_cbranch_scc1 L_spin{k}\nL_spin{k}_ret:")
    def flagcheck(tag, need): return check_(tag, f"v_cmp_gt_u32 vcc, {need}, v125\ns_and_b32 s62, vcc_lo, -1")
    def finecheck(tag, need): return check_(tag, f"v_cmp_gt_u32 vcc, {need}, v125\ns_and_b64 s[62:63], vcc, s[68:69]")
    def pubstore(): return Ins(f"buffer_store_byte v126, v29, s[64:67], 0 offen{SC}", tag="flag")
    def finepub(so): return Ins(f"buffer_store_byte v126, v23, s[64:67], {so} offen{SC}", tag="flag")
    def loads2(n, part=3):
        sb = K2SLOT[n % R2]
        d = [Ins(f"buffer_load_dwordx4 v{7+z}, s[8:11], s71 offen offset:{z*1024} lds", tag=("T", n), wr=(sb, sb + 16384, ("T", n))) for z in range(4)]
        b = [Ins(f"buffer_load_dwordx4 {b2reg(n, s, mb)}, v{26+s}, s[12:15], s72 offen offset:{mb*1024}{SC}", tag=("T", n)) for s in range(2) for mb in range(2)]
        r = [Ins(f"s_add_u32 m0, s5, {sb:#x}")] * (part & 1)
        for z in range(4): r += [d[z]] * (part & 1) + [b[z]] * (part >> 1)
        r += L("s_add_u32 s71, s71, 0x20000") * (part & 1) + L("s_add_u32 s72, s72, 0x2000") * (part >> 1)
        return r
    vq = []
    vq.append((-9, kvloads(2, False), 3, 48))
    at.front[bpos[0]].insert(0, W(vm="Hst")); at.used[bpos[0]] += 1
    vq.append((bpos[0] + 1, [ASSERT("Hst"), Ins("v_mov_b32 v126, 2"), pubstore()], 0, bpos[0] + 6))
    tk = []
    def touch2(sr, off): return [Ins(f"s_mov_b32 s19, {off:#x}"), Ins(f"buffer_load_dword v127, v31, s[{sr}:{sr+3}], s19 offen", tag="touch")]
    if P["touch"] == 2: tk = touch2(80, 0) + touch2(80, 3 << 20) + touch2(76, 0) + touch2(76, 4 << 20)
    if P["touch"] == 3: tk = L("v_lshlrev_b32 v31, 1, v31") + touch2(80, 0) + touch2(76, 0)
    vq.append((pv0[0] + ALB + 3, kvloads(3, False) + tk, 8 if tk else 13, pv0[0] + ALB + 125))
    for it in range(1, 6): vq.append((pv0[2 * it] + ALB + 3, kvloads(it + 3, True), 13, pv0[2 * it] + ALB + 125))
    e0 = pv0[12] + ALB
    if P["pre"]:
        vq.append((e0 + 1, [flagload("fH")] + loads2(0, 1) + loads2(1, 1), 2, e0 + 35))
        vq.append((e0 + 36, [flagcheck("fH", 2)] + loads2(0, 2) + loads2(1, 2), 2, e0 + 70))
        for n in range(2, 5): vq.append((e0 + 71 + (n - 2) * 28, loads2(n), 2, e0 + 71 + (n - 2) * 28 + 27))
        vq.append((e0 + 155, loads2(5, 1), 2, CHK - 2))
        vq.append((CHK + 1, loads2(5, 2), 0, CHK + 8))
    else:
        vq.append((e0 + 1, [flagload("fH")], 0, e0 + 6))
        vq.append((e0 + 40, [flagcheck("fH", 2)], 0, e0 + 40))
        for n in range(4): vq.append((e0 + 41 + n * 30, loads2(n), 2, e0 + 41 + n * 30 + 29))
        vq.append((CHK + 1, loads2(4), 0, CHK + 12))
    for g in range(CHK + 2, b2[R2]): at.capo[g] = P["ocap"]
    hook = once(L("L_K_hook:") + flagcheck("flO", 3) + L("s_mov_b64 s[8:9], s[76:77]\ns_mov_b32 s10, s78\ns_mov_b64 s[12:13], s[40:41]\ns_mov_b32 s14, s42\ns_mov_b32 s71, s74\ns_mov_b32 s72, s75\ns_branch L_K_hook_ret"))
    khk = (NB0 - PD) // R2
    for n in range(PD + (1 if P['pre'] else 0), NT):
        its = loads2(n); m = n - PD + 1
        if m > NN: vq.append((b2[NN + 1] + 1, its, 1)); continue
        g = b2[m] + 1
        if n % R2 == NB0 % R2 and t0(R2) <= g < t0(NL):
            its = [L(f"s_cmp_eq_u32 s91, {8-khk}\ns_cbranch_scc1 L_K_hook") + (hook if n == NB0 else []) + L("L_K_hook_ret:")] + its
        elif n % R2 == NB0 % R2 and m == R2: its = [L("s_nop 0\ns_nop 0")] + its
        vq.append((g, its, 2))
    FLT = P["flt"] if BAL else 2
    kfl = khk if R2 * khk + FLT < NB0 - PD else khk - 1
    for k in range(1, 9):
        n = R2 * k + FLT
        a = [ASSERTD("Bst")] if k == 7 else []
        vq.append((t0(n) + 2, a + [L("s_cmp_eq_u32 s91, 1\ns_cselect_b32 s17, s16, s18"), finepub("s17"), L(f"s_cmp_eq_u32 s91, {8-kfl}\ns_cselect_b32 s17, 0, s18"), flagload({kfl: "flO"}.get(k, "flx"), "s17")], 1))
    vq.append((t0(NL) + 4, [flagload("fB")], 0))
    g = t0(NN + 2)
    vq.append((g, [finecheck("fB", 1)] + [Ins(f"buffer_load_dwordx4 v[{96+(mb*2+b)*4}:{99+(mb*2+b)*4}], v21, s[92:95], {'s53' if mb else '0'} offen offset:{b*64}", tag="xld") for mb in range(2) for b in range(2)] + exch(0, False, 32, "Bld"), 1))
    for nb in range(4):
        g = gp(g2[(NT - 1, nb)]) + 4 + 5
        vq.append((g, packs(48)[4 * nb:4 * nb + 4] + exch(1, True, 48, "Sst")[nb:nb + 1], 0))
    gk = gp(g2[(NN, 4)])
    vq.append((gk + P["pub5"], [[Ins("v_mov_b32 v126, 2"), W(vm="Sst"), finepub("s16")]], 0))
    vq.append((len(at.mf) - P["fl5"], [flagload("f5")], 0))
    vq.sort(key=lambda e: e[0])
    for g, its, sp, *dl in vq:
        dl = dl[0] if dl else None
        for x in its:
            if dl is not None: g = min(g, dl)
            if isinstance(x, list):
                g = at.flowg("vm", g, x, deadline=dl); at.used[g] -= sum(y.cost for y in x if y.once)
            elif x.kind == "comment":
                g = max(g, at.qpos.get("vm", g)); at.mid[g].append(x); at.qpos["vm"] = g
            elif g < CHK: g = vflow(at, g, [x], sp, dl)
            else: g = at.flow("vm", g, x, mingap=(1 if (" lds" in x.text and at.qpos.get("vm") != dl) else 0), deadline=dl) + (sp if x.kind == "vmem" else 0)
    rdy0 = {}
    for qb in range(4):
        a, b = sbl(0, qb, 0), sbl(0, qb, 1); t0_ = 116 + (qb % 2) * 2; g = qb * 8 + 7 + 6
        seq = maxseq(a, b, t0_) + xlane(t0_, t0_ + 1) + [f"v_sub_f32 v{96+qb*4+i}, 0, v{t0_}" for i in range(4)] + [f"v_sub_f32 v{r}, v{r}, v{t0_}" for r in list(range(a, a + 4)) + list(range(b, b + 4))]
        for i, s_ in enumerate(seq): at.flow("mx", g, Ins(s_), deadline=(qk0[1] + qb * 8 - 2 if i < 16 else pv0[0] - 6))
        rdy0[qb] = at.qpos["mx"] + 1
    exps = []
    for u in range(NU):
        w0 = pv0[u - 1] + ALB if 1 <= u <= 14 else 0
        for i in range(32):
            qb, rem = divmod(i, 8)
            ready = qk0[u] + qb * 8 + (rem // 4) * 4 + 3 + 6
            if u == 0: ready = max(ready, rdy0[qb])
            exps.append((max(ready, w0), u, i))
    ei = 0; pend = []
    def put(g, x): at.mid[g].append(x); at.used[g] += x.cost
    for g in range(0, kb0):
        def do_exp():
            nonlocal ei
            _, u, i = exps[ei]; ei += 1
            qb, rem = divmod(i, 8); r = sbl(u, qb, rem // 4) + rem % 4
            put(g, Ins(f"v_exp_f32 v{r}, v{r}"))
            if i % 2: pend.append((g + 1, u, Ins(f"v_cvt_pk_bf16_f32 v{sbl(u, qb, 0)+rem//2}, v{r-1}, v{r}")))
        while ei < len(exps) and pv0[exps[ei][1]] - 2 <= g: do_exp()
        while pend and pv0[pend[0][1]] - 1 <= g: put(g, pend.pop(0)[2])
        nr = sum(1 for p_ in pend if p_[0] <= g)
        if at.used[g] == 0 and ei < len(exps) and exps[ei][0] <= g and nr < 4: do_exp()
        while at.used[g] < 2 and pend and pend[0][0] <= g: put(g, pend.pop(0)[2])
    assert ei == len(exps) and not pend
    for x in late2: at.flow("late", pv0[0] + 1, x, deadline=pv0[2] + ALB - 1)
    if tk: assert True
    for g in range(CHK + 2, t0(R2)): at.capo[g] = P["ocap2"]
    for x in L("s_add_u32 s54, s53, 4096\ns_add_u32 s55, s53, 8192\ns_add_u32 s3, s53, 12288"): at.flow("od", CHK + 1, x)
    k = 0
    for b32 in range(4):
        for qb in range(4):
            tb_ = 96 + (k % 2) * 8; ob = 112 + (k % 2) * 4; k += 1
            g = pvpos(15, 2 * b32 + 1) + 4 + 8
            for e in range(2):
                for i in range(4): at.flow("od", g, Ins(f"v_accvgpr_read_b32 v{tb_+e*4+i}, a{((b32*2+e)*4+qb)*4+i}"))
            for q in range(8): at.flow("od", g, Ins(f"v_mul_f32 v{tb_+q}, v{tb_+q}, v{120+qb}"))
            for q in range(4): gq = at.flow("od", g, Ins(f"v_cvt_pk_bf16_f32 v{ob+q}, v{tb_+2*q}, v{tb_+2*q+1}"))
            at.flow("od", gq, Ins(f"buffer_store_dwordx4 v[{ob}:{ob+3}], v25, s[40:43], {['s53','s54','s55','s3'][b32]} offen offset:{qb*1024}{SC}", tag="Ost"))
    for g_ in range(CHK + 1, t0(R2)):
        for x in at.mid[g_]:
            if x.kind == "valu" and x.text.startswith(("v_accvgpr_read", "v_mul_f32", "v_cvt_pk")): x.tag = "odv"
    npub = [n for n in range(NN) if b2[n] > at.qpos["od"] + 24][0]
    print("O drain ends at K2 tile", (at.qpos["od"] - kb0) / 32, "publish at b2", npub); assert npub <= R2
    at.front[b2[npub]].insert(0, W(vm="Ost")); at.used[b2[npub]] += 1
    for x in [ASSERT("Ost"), Ins("v_mov_b32 v126, 3"), pubstore()]: at.flow("od", b2[npub] + 1, x)
    at.flow("od", b2[npub] + 2, Ins("v_mov_b32 v126, 1"), deadline=t0(R2) - 1)
    xa = L(f"""
    s_lshl_b32 s62, s32, 5
    s_add_u32 s62, s62, s34           ; gid
    s_lshl_b32 s63, s62, 14
    s_lshl_b32 s4, s33, 12
    s_add_u32 s63, s63, s4
    v_add_u32 v17, s63, v25
    v_xor_b32 v18, {16<<14:#x}, v17
    s_mov_b32 s58, 0x800000
    s_lshl_b32 s62, s62, 7
    s_add_u32 s62, s62, s33
    s_add_u32 s62, s62, {MB_REL+32:#x}
    s_xor_b32 s16, s62, {16<<7:#x}
    s_add_u32 s4, s33, 32
    s_lshl_b64 s[68:69], 1, s4
    v_cmp_eq_u32 vcc, 0, v1
    v_mov_b32 v23, 0x3ff00000
    v_and_b32 v21, 15, v1
    v_cndmask_b32 v23, v23, 0, vcc
    s_lshl_b32 s62, s50, 7
    s_lshl_b32 s63, s33, 5
    s_add_u32 s62, s62, s63
    v_add_u32 v21, s62, v21
    v_lshlrev_b32 v21, 11, v21
    v_lshrrev_b32 v24, 4, v1
    v_lshl_add_u32 v21, v24, 4, v21
    s_lshl_b32 s62, s48, {8 if P.get("perm") else 7}
    s_add_u32 s62, s62, s49
    v_add_u32 v21, s62, v21
    s_sub_u32 s91, 7, {'s48' if BAL else '0'}
    s_mov_b32 s18, 0x40000000
    """)
    for x in xa: at.flow("xa", kb0, x, deadline=t0(R2) - 1)
    at.flow("od", t0(NN) + 1, Ins("s_mov_b32 s53, 0x8000"))
    print("attn+k2", at.stats()[:300])
    A_ = at.emit()
    if STAMP and P.get("ast"):
        i = [k for k, x in enumerate(A_) if x.text == "; @IT A"][0]
        A_ = A_[:i] + stamp() + A_[i:]
        i = [k for k, x in enumerate(A_) if x.text == "; @ENDIT A"][0] + 1
        A_ = A_[:i] + stamp() + A_[i:]
    if STAMP:
        i = [k for k, x in enumerate(A_) if x is at.mf[kb0]][0]
        A_ = A_[:i] + stamp() + A_[i:]
        i = [k for k, x in enumerate(A_) if x.text == "; @IT K"][0]
        A_ = A_[:i] + stamp() + A_[i:]
        i = [k for k, x in enumerate(A_) if x.text == "; @ENDIT K"][0] + 1
        A_ = A_[:i] + stamp() + A_[i:]
    epi = stamp() + finecheck("f5", 2) + exch(1, False, 48, "Sld") + stamp()
    epi += [W(vm="Bld")] + L("s_mov_b32 s62, 0xbfb8aa3b\ns_mov_b32 s63, s62\ns_mov_b32 s69, 0xffff0000")
    def unp(d, src, i): return L(f"v_lshlrev_b32 v{d}, 16, v{src+i//2}" if i % 2 == 0 else f"v_and_b32 v{d}, s69, v{src+i//2}")
    for i0 in range(0, 32, 4):
        tmp = 112 + (i0 // 4 % 2) * 4; r = 128 + i0
        for i in range(4): epi += unp(r + i, 32, i0 + i)
        for i in (0, 2): epi += L(f"v_pk_add_f32 v[{r+i}:{r+i+1}], v[{r+i}:{r+i+1}], v[{SAVE[(i0+i)//2]}:{SAVE[(i0+i)//2]+1}]")
        for i in (0, 2): epi += L(f"v_pk_mul_f32 v[{tmp+i}:{tmp+i+1}], v[{r+i}:{r+i+1}], s[62:63]")
        for i in range(4): epi += L(f"v_exp_f32 v{tmp+i}, v{tmp+i}")
        for i in range(4): epi += L(f"v_add_f32 v{tmp+i}, 1.0, v{tmp+i}")
        for i in range(4): epi += L(f"v_rcp_f32 v{tmp+i}, v{tmp+i}")
        epi += L("s_nop 0")
        for i in (0, 2): epi += L(f"v_pk_mul_f32 v[{r+i}:{r+i+1}], v[{r+i}:{r+i+1}], v[{tmp+i}:{tmp+i+1}]")
    epi += L("s_mov_b64 exec, s[56:57]")
    for f in range(4): epi += L(f"v_swap_b32 v{96+f*4}, v{98+f*4}\nv_swap_b32 v{97+f*4}, v{99+f*4}")
    epi += L("s_mov_b64 exec, -1")
    def ix(mb, b, q): return ((b * 2 + q // 4) * 2 + mb) * 4 + q % 4
    for mb in range(2):
        for b in range(2):
            for q in range(8): epi += unp(64 + ix(mb, b, q), 96 + (mb * 2 + b) * 4, q)
    for i in range(0, 32, 2): epi += L(f"v_pk_fma_f32 v[{64+i}:{65+i}], v[{160+i}:{161+i}], v[{128+i}:{129+i}], v[{64+i}:{65+i}]")
    epi += stamp() + [W(vm="Sld")]
    for mb in range(2):
        for b in range(2):
            for q in range(8): epi += unp(160 + ix(mb, b, q), 48, ix(mb, b, q))
            for q in range(0, 8, 2):
                i = ix(mb, b, q)
                epi += L(f"v_pk_fma_f32 v[{64+i}:{65+i}], v[{160+i}:{161+i}], v[{128+i}:{129+i}], v[{64+i}:{65+i}]")
            r = 96 + (mb * 2 + b) * 4
            for q in range(0, 8, 2): epi += L(f"v_cvt_pk_bf16_f32 v{r+q//2}, v{64+ix(mb, b, q)}, v{65+ix(mb, b, q)}")
            epi += L(f"s_mov_b64 exec, s[56:57]\nv_swap_b32 v{r}, v{r+2}\nv_swap_b32 v{r+1}, v{r+3}\ns_mov_b64 exec, -1")
            epi += L(f"buffer_store_dwordx4 v[{r}:{r+3}], v21, s[96:99], {'s53' if mb else '0'} offen offset:{b*64}")
    epi += L("s_waitcnt vmcnt(0)") * STAMP + stamp() + stamp_store()
    epi += L("L_end:\ns_endpgm")
    vcur = PAIR[7 % 5] + 16384; kcur = PAIR[7 % 5]
    fbk = L(f"""
    L_fallback:
    s_waitcnt vmcnt(0) lgkmcnt(0)
    s_nop 7
    s_lshl_b32 s62, s33, 13
    s_add_u32 s88, s62, {FBSLOT0:#x}
    s_and_b32 s62, s33, 1
    s_lshl_b32 s62, s62, 13
    s_lshr_b32 s63, s33, 1
    s_lshl_b32 s63, s63, 7
    s_add_u32 s62, s62, s63
    """)
    for z in range(4): fbk += L(f"v_subrev_u32 v{17+z}, s5, v{17+z}\nv_subrev_u32 v{21+z}, s62, v{21+z}")
    fbk += L(f"s_sub_u32 s62, s88, {kcur:#x}")
    for b in range(4): fbk += L(f"v_add_u32 v{KR+b}, s62, v{KR+b}")
    fbk += L(f"s_sub_u32 s62, s88, {vcur:#x}\nv_add_u32 v116, s62, v{VR}\nv_add_u32 v117, s62, v{VR+1}")
    for qb in range(4): fbk += L(f"v_mov_b32 v{120+qb}, 0xff800000")
    def fb_k(first):
        o = []
        for kb in range(2):
            o += L(f"s_add_u32 m0, s88, {kb*4096}\ns_add_u32 s89, s55, {kb*4096}")
            for z in range(4): o += L(f"buffer_load_dwordx4 v{17+z}, s[28:31], s89 offen offset:{z*1024} lds")
        o += L("s_waitcnt vmcnt(0)")
        for kb in range(2):
            for be in range(4): o += L(f"ds_read_b128 {kfb(0, kb, be)}, v{KR+be} offset:{kb*4096}")
        o += L("s_waitcnt lgkmcnt(0)")
        o += L("\n".join(qk_list(1, first, lambda kb, be: kfb(0, kb, be)))) + L("s_nop 7")
        return o
    fbk += L("s_mov_b32 s55, 0\nL_fb1:") + fb_k(True)
    for qb in range(4):
        fbk += L("\n".join(maxseq(sbl(1, qb, 0), sbl(1, qb, 1), 118))) + L(f"v_max_f32 v{120+qb}, v{120+qb}, v118")
    fbk += L("s_add_u32 s55, s55, 0x2000\ns_cmp_lt_u32 s55, 0x20000\ns_cbranch_scc1 L_fb1")
    for qb in range(4):
        fbk += L("\n".join(xlane(120 + qb, 118)))
        for i in range(4): fbk += L(f"v_sub_f32 v{96+qb*4+i}, 0, v{120+qb}")
    for i in range(144): fbk += L(f"v_accvgpr_write_b32 a{i}, 0")
    fbk += L("s_mov_b32 s55, 0\nL_fb2:")
    fbk += fb_k(False)
    for bp in range(2):
        fbk += L(f"s_add_u32 m0, s88, {bp*4096}\ns_add_u32 s89, s55, {bp*128}")
        for z in range(4): fbk += L(f"buffer_load_dwordx4 v{21+z}, s[36:39], s89 offen offset:{z*1024} lds")
    fbk += L("s_waitcnt vmcnt(0)")
    for db in range(8):
        b32, e = db >> 1, db & 1
        for rr in range(2): fbk += L(f"ds_read_b64_tr_b16 a[{144+db*4+rr*2}:{145+db*4+rr*2}], v{116+e} offset:{(b32>>1)*4096+(b32&1)*512+rr*2048}")
    for qb in range(4):
        for kb in range(2):
            for i in range(4): fbk += L(f"v_exp_f32 v{sbl(1, qb, kb)+i}, v{sbl(1, qb, kb)+i}")
    for qb in range(4):
        for h in range(4): fbk += L(f"v_cvt_pk_bf16_f32 v{sbl(1, qb, 0)+h}, v{sbl(1, qb, h//2)+(h%2)*2}, v{sbl(1, qb, h//2)+(h%2)*2+1}")
    pl = pv_list(15, lambda db: f"a[{144+db*4}:{147+db*4}]")
    nfirst = CHK - pv0[15]
    fbk += L("s_waitcnt lgkmcnt(0)") + L("\n".join(pl[:nfirst]))
    fbk += L("s_add_u32 s55, s55, 0x2000\ns_cmp_lt_u32 s55, 0x20000\ns_cbranch_scc0 L_fb_done") + L("\n".join(pl[nfirst:])) + L("s_branch L_fb2\nL_fb_done:\ns_nop 7")
    for qb in range(4): fbk += L(f"v_accvgpr_read_b32 v{116+qb}, a{128+qb*4}")
    fbk += L("s_branch L_fb_ret")
    errs = check(fbk, "fb")
    assert not errs, "\n".join(errs[:30])
    full = resolve_waits(fix_m0(pro + G_ + mid + A_ + epi))
    if P.get("unrollK"):
        full = [x for x in full if not ("L_K" in x.text or x.text in ("; @IT K", "; @ENDIT K"))]
        for x in full: x.once = False
    full, prog = collapse(full)
    errs = check([x for x in full if "; optA" not in x.text], "fusedB") + check([x for x in full if "; optB" not in x.text], "fusedA")
    assert not errs, "\n".join(errs[:30])
    def keep(x):
        t = x.tag
        if isinstance(t, tuple):
            if P.get("ablX") and t[0] == "X" and t[1] >= 2: return False
            if P.get("ablW") and t[0] == "W" and t[1] >= 2: return False
            if P.get("ablR") and t[0] == "P": return False
        if P.get("ablH") and t == "Hst": return False
        if P.get("abltouch") and t == "touch": return False
        if P.get("noOst") and t == "Ost": return False
        if P.get("noOv") and t == "odv": return False
        if P.get("nofb") and "; FB" in x.text: return False
        if P.get("ablKV") and isinstance(t, tuple) and t[0] == "KV" and t[1] >= 8: return False
        if isinstance(t, tuple):
            if P.get("ablT") and t[0] == "T" and t[1] >= 6: return False
        return True
    prog = [x for x in prog if keep(x)]
    rest = [x for x in full if x.once] + ool + fbk + L("L_code_end:")
    if P["pad"]:
        def idx(pred): return [i for i, x in enumerate(prog) if pred(x)][0]
        iK = idx(lambda x: x.text == "L_K:"); ikb = idx(lambda x: x.text == "L_fb_ret:")
        iKe = idx(lambda x: x.text == "s_cbranch_scc0 L_K") + 1
        iGe = idx(lambda x: x.text == "s_cbranch_scc0 L_G") + 1
        iA = idx(lambda x: x.text == "L_A:"); iAe = idx(lambda x: x.text == "s_cbranch_scc0 L_A") + 1
        npd = P.get("padn", 550)
        regs_ = {1: (ikb + 1, min(iK, ikb + npd)), 2: (max(iGe, iA - 330 - npd), iA - 330), 3: (min(iK, ikb + npd), iK) if P.get("pad3", 0) == 0 else (iAe, min(ikb - 12, iAe + npd))}
        for k_, (a, b) in sorted(regs_.items(), key=lambda e: -e[1][0]):
            prog = prog[:a] + [Ins(f"; @PAD {k_}")] + prog[a:b] + [Ins("; @ENDPAD")] + prog[b:]
        allp = add_pads(prog + rest + L("L_pad1_0:\nL_pad2_0:\nL_pad3_0:") * 0, NAME + "_kernel", P["pad"]) if False else None
        tmp = [x for x in prog]
        prog = add_pads(tmp + rest + [Ins("L_padd:")], NAME + "_kernel_x", P["pad"]) if False else prog
    return_prog = prog
    allp = prog + rest
    if P["pad"]:
        for x in allp: x.text = x.text.replace("L_pad1_0", "L_scout_ret").replace("L_pad2_0", "L_scout_ret").replace("L_pad3_0", "L_scout_ret") if x.text.startswith(("s_cbranch_scc1 L_pad", "s_branch L_pad")) else x.text
        marks = [x for x in allp if x.text in ("s_cbranch_scc1 L_scout_ret", "s_branch L_scout_ret")]
        allp = add_pads(allp, NAME + "_kernel", P["pad"])
        marks[1].text = "s_cbranch_scc1 L_pad1_0"; marks[2].text = "s_cbranch_scc1 L_pad2_0"; marks[3].text = "s_branch L_pad3_0"
    return dict(name=NAME + "_kernel", body=text(allp), grid=256, block=256, lds=163840, vgpr=512, accum=256, sgpr=102)

if __name__ == "__main__":
    STAMP = "stamp" in sys.argv
    open("t_l.s", "w").write(build_file([gen_fused()]))
    for v in sys.argv[1:]:
        if v == "stamp": continue
        P = {}
        for kv in v.split(","):
            k, _, val = kv.partition("="); P[k] = int(val, 0) if val else 1
        open("t_l_" + v.replace(",", "_").replace("=", "") + ".s", "w").write(build_file([gen_fused(P)]))
```

```python
import sys, struct, math
from gen_core import *
from asmlib import build_file, NAME
from gen import srd, tr_addr, wdma_addr, lane_consts, MF
XN_OFF = 0; O_OFF = 4 << 20; H_OFF = 20 << 20; EX_OFF = 36 << 20; MB_REL = 16 << 20; TS_OFF = 104 << 20
STG = 45056
GST = [0, 90112, 45056]
PAIR = [131072, 98304, 65536, 32768, 0]
K2SLOT = [0, 16384, 32768, 49152, 131072, 147456]
FBSLOT0 = 98304
BRING = [176, 192, 208, 224, 240, 144]
AFR = [192, 200, 224, 232, 64, 72, 80, 88]
def b2reg(n, s, mb):
    b = BRING[n % 6] + (s * 2 + mb) * 4
    return f'a[{b}:{b+3}]'
f2u = lambda f: struct.unpack("<I", struct.pack("<f", f))[0]
QSCALE = f2u(math.log2(math.e) / math.sqrt(128.0))
LNLDS = 163840 - 512
STAMP = False
SC = " sc1"
NST = [0]
def stamp():
    if not STAMP: return []
    k = NST[0]; NST[0] += 1
    return L(f"s_memtime s[84:85]\ns_memrealtime s[86:87]\ns_waitcnt lgkmcnt(0)\nv_writelane_b32 v0, s84, {2*k}\nv_writelane_b32 v0, s86, {2*k+1}")
DBGST = False
def stamp_store():
    if not STAMP: return []
    if DBGST:
        return L("""
        s_load_dwordx2 s[8:9], s[0:1], 80
        s_mov_b32 s10, 256
        s_mov_b32 s11, 0x20000
        v_lshrrev_b32 v2, 1, v1
        v_add_u32 v3, 1, v2
        v_cmp_lt_u32 vcc, 6, v2
        v_add_u32 v4, 1, v3
        s_nop 0
        v_cndmask_b32 v3, v3, v4, vcc
        v_lshlrev_b32 v3, 2, v3
        v_and_b32 v4, 1, v1
        v_cmp_eq_u32 vcc, 1, v4
        v_mov_b32 v4, 0x1000
        s_nop 0
        v_cndmask_b32 v3, v4, v3, vcc
        v_cmp_gt_u32 vcc, 14, v2
        s_nop 1
        v_cndmask_b32 v3, v4, v3, vcc
        s_or_b32 s62, s33, s2
        s_cmp_eq_u32 s62, 3
        s_cselect_b32 s62, 0, 0x1000
        s_cmp_eq_u32 s33, 0
        s_cselect_b32 s62, s62, 0x1000
        s_waitcnt lgkmcnt(0)
        buffer_store_dword v0, v3, s[8:11], s62 offen
        """)
    t = srd(8, 60, 61, 1 << 20, TS_OFF)
    t += L("s_lshl_b32 s62, s2, 10\ns_lshl_b32 s63, s33, 8\ns_add_u32 s62, s62, s63\nv_lshlrev_b32 v1, 2, v1\nv_add_u32 v1, s62, v1\nbuffer_store_dword v0, v1, s[8:11], 0 offen")
    return t
def once(lst):
    for x in lst: x.once = True
    return lst
def ASSERTD(tag):
    x = Ins("; @ASSERTD"); x.vm = tag; return x
def ASSERT(tag):
    x = Ins("; @ASSERT"); x.vm = tag; return x

def gen_fused(P=None):
    P = dict(dict(LA=2, LA2=4, thr=f2u(2.0 ** 24), touch0=0, touch=4, ocap=3, slp0=0, slp=2, xsp=3, wsp=5, lb=56, ctouch=4, order=2, sync=1, pre=1, tg=0, tkv=0, pad=0, ectouch=0, ocap2=4, flt=0, bal=1, pub5=60, fl5=16), **(P or {}))
    NST[0] = 0
    LA = P["LA"]; LA2 = P["LA2"]
    ool = []
    pro = L("""
    s_cmp_ge_u32 s2, 256
    s_cbranch_scc1 L_end
    s_load_dwordx2 s[92:93], s[0:1], 0      ; x
    s_load_dwordx4 s[48:51], s[0:1], 8      ; K, V
    s_load_dwordx4 s[52:55], s[0:1], 24
    s_load_dwordx4 s[56:59], s[0:1], 48
    s_load_dwordx4 s[72:75], s[0:1], 64
    s_load_dwordx4 s[60:63], s[0:1], 80
    """)
    pro += lane_consts()
    pro += L("""
    s_lshr_b32 s34, s2, 3
    s_and_b32 s35, s2, 4
    s_and_b32 s32, s34, 3
    s_add_u32 s32, s32, s35           ; rb
    s_bfe_u32 s35, s2, 0x10001
    s_and_b32 s3, s2, 1
    s_lshl_b32 s3, s3, 1
    s_add_u32 s35, s35, s3
    s_lshr_b32 s34, s34, 2
    s_lshl_b32 s3, s35, 3
    s_add_u32 s34, s34, s3            ; j
    s_lshl_b32 s3, s32, 5
    s_add_u32 s3, s3, s34
    s_lshl_b32 s4, s3, 3
    v_and_b32 v32, 7, v1
    v_add_u32 v33, s4, v32            ; row
    v_lshlrev_b32 v34, 11, v33
    v_lshrrev_b32 v35, 3, v1
    s_lshl_b32 s4, s33, 3
    v_add_u32 v35, s4, v35            ; kstep s
    v_lshl_add_u32 v34, v35, 6, v34
    s_mov_b32 s94, 0x400000
    s_mov_b32 s95, 0x20000
    s_waitcnt lgkmcnt(0)
    """)
    for i in range(4): pro += [Ins(f"buffer_load_dwordx4 v[{64+4*i}:{67+4*i}], v34, s[92:95], 0 offen offset:{16*i}", tag="x")]
    pro += stamp()
    defer = []
    dst = (lambda: pro) if P["ectouch"] else (lambda: defer)
    if P["ctouch"]:
        pro += L(f"""
        s_getpc_b64 s[72:73]
        """) * 0
        dst().extend(L(f"""
        s_getpc_b64 s[84:85]
        L_pc:
        s_sub_u32 s84, s84, L_pc-{NAME}_kernel
        s_subb_u32 s85, s85, 0
        s_lshr_b32 s86, s2, 3
        s_lshl_b32 s86, s86, 2
        s_add_u32 s86, s86, s33
        s_and_b32 s86, s86, 31
        s_lshl_b32 s86, s86, 12
        v_lshl_add_u32 v124, v1, 6, s86
        s_mov_b32 s87, L_code_end-{NAME}_kernel-4
        v_min_u32 v124, s87, v124
        """) + [Ins("global_load_dword v124, v124, s[84:85]", tag="touch")])
    pro += L("s_mov_b32 s44, s60\ns_mov_b32 s45, s61\ns_mov_b32 s46, 256\ns_mov_b32 s47, 0x20000\ns_mov_b32 s60, s62\ns_mov_b32 s61, s63")
    pro += L("s_lshl_b32 s62, s34, 8")
    pro += wdma_addr(7, 8192, "s62", t0=36, st=63)
    pro += L(f"""
    s_lshr_b32 s62, s34, 1
    s_mul_i32 s62, s62, 448
    s_and_b32 s63, s34, 1
    s_lshl_b32 s70, s63, 8
    s_add_u32 s70, s70, s62           ; colP
    s_lshl_b32 s71, s63, 5
    s_add_u32 s71, s71, s62
    s_add_u32 s71, s71, 192           ; colX
    v_lshrrev_b32 v36, 5, v1
    v_lshlrev_b32 v36, 3, v36
    v_bfe_u32 v37, v1, 2, 3
    v_add_u32 v36, v36, v37
    s_lshl_b32 s62, s33, 4
    v_add_u32 v36, s62, v36
    s_movk_i32 s62, 7168
    v_mul_lo_u32 v11, v36, s62
    v_bfe_u32 v36, v1, 4, 1
    v_lshlrev_b32 v36, 1, v36
    v_and_b32 v37, 3, v1
    v_xor_b32 v36, v36, v37
    v_lshl_add_u32 v11, v36, 4, v11
    s_add_u32 s70, s70, 4096
    v_add_u32 v11, s70, v11
    v_subrev_u32 v12, 960, v11
    v_subrev_u32 v13, 1920, v11
    v_lshrrev_b32 v36, 1, v1
    s_and_b32 s63, s33, 1
    s_lshl_b32 s63, s63, 5
    v_add_u32 v36, s63, v36
    v_mul_lo_u32 v14, v36, s62
    v_and_b32 v37, 1, v1
    v_lshl_add_u32 v14, v37, 4, v14
    s_add_u32 s71, s71, 4096
    v_add_u32 v14, s71, v14
    s_lshl_b32 s5, s33, 12
    s_mul_i32 s6, s33, 3072
    s_lshl_b32 s7, s33, 10
    """)
    pro += srd(8, 52, 53, 8 << 20) + srd(12, 56, 57, (7 << 20) + 4096, -4096) + srd(16, 58, 59, (7 << 20) + 4096, -4096)
    pro += L("s_cmp_lt_u32 s33, 2\ns_cselect_b32 s20, s12, s16\ns_cselect_b32 s21, s13, s17") + L(f"s_mov_b32 s22, {(7<<20)+4096:#x}\ns_mov_b32 s23, 0x20000")
    pro += srd(76, 54, 55, 8 << 20) + srd(80, 72, 73, 7 << 20) + srd(96, 74, 75, 4 << 20)
    pro += L("s_mov_b32 s52, 0\ns_mov_b32 s53, 0\ns_mov_b32 s54, 0")
    pro += L(f"s_mov_b32 s90, {GST[0]}\ns_mov_b32 s88, {GST[1]}\ns_mov_b32 s89, {GST[2]}")
    def wloads(t):
        sb = GST[t % 3]
        reg = (sb, sb + STG, ("G", t)); tag = ("W", t)
        r = [Ins("s_add_u32 m0, s5, s90")]
        r += [Ins(f"buffer_load_dwordx4 v{7+z}, s[8:11], s52 offen offset:{z*1024} lds", tag=tag, wr=reg) for z in range(4)]
        r += [Ins("s_add_u32 s100, s6, s90"), Ins("s_add_u32 m0, s100, 16384")]
        r += [Ins(f"buffer_load_dwordx4 v{11+z}, s[12:15], s53 offen offset:{z*1024} lds", tag=tag, wr=reg) for z in range(3)]
        r += [Ins("s_add_u32 m0, s100, 28672")]
        r += [Ins(f"buffer_load_dwordx4 v{11+z}, s[16:19], s53 offen offset:{z*1024} lds", tag=tag, wr=reg) for z in range(3)]
        r += [Ins("s_add_u32 s100, s7, s90"), Ins("s_add_u32 m0, s100, 40960")]
        r += [Ins(f"buffer_load_dwordx4 v14, s[20:23], s53 offen lds", tag=tag, wr=reg)]
        r += [Ins("s_add_u32 s52, s52, 0x80000"), Ins("s_add_u32 s53, s53, 0x70000")]
        r += L("s_mov_b32 s100, s90\ns_mov_b32 s90, s88\ns_mov_b32 s88, s89\ns_mov_b32 s89, s100")
        return r
    def breg(t, s, mb):
        k = (s * 4 + mb) * 4
        return f"v[{64+k}:{67+k}]" if t % 2 == 0 else f"a[{224+k}:{227+k}]"
    def xloads(t):
        r = [Ins(f"buffer_load_dwordx4 {breg(t, s, mb)}, v{15+s}, s[24:27], s54 offen offset:{mb*1024}{SC}", tag=("X", t)) for s in range(2) for mb in range(4)]
        r += [Ins("s_add_u32 s54, s54, 0x2000")]
        return r
    wl0 = wloads(0); wl1 = wloads(1); late_w1 = []
    if P['order'] == 1: defer[:0] = wl0 + wl1
    elif P['order'] == 2: pro += wl0; defer[:0] = wl1
    elif P['order'] == 3: defer[:0] = wl0; late_w1 = wl1
    elif P['order'] == 4: pro += wl0; late_w1 = wl1
    elif P['order'] == 5: pro += wl0; defer[:0] = wl1
    else: pro += wl0 + wl1
    pro += L("""
    s_lshl_b32 s62, s2, 2
    s_add_u32 s62, s62, s33
    s_lshl_b32 s63, s62, 12
    v_lshlrev_b32 v31, 6, v1
    v_add_u32 v31, s63, v31
    s_lshl_b32 s63, s62, 10
    v_and_b32 v30, 15, v1
    v_lshlrev_b32 v30, 6, v30
    v_add_u32 v30, s63, v30
    """)
    if P["touch"] == 4:
        pro += L("s_mul_i32 s63, s62, 1280\nv_min_u32 v31, 9, v1\nv_lshlrev_b32 v31, 7, v31\nv_add_u32 v31, s63, v31")
    def touch(v, sr, off):
        return [Ins(f"s_mov_b32 s62, {off:#x}"), Ins(f"buffer_load_dword v127, v{v}, s[{sr}:{sr+3}], s62 offen", tag="touch")]
    if P["touch0"]:
        defer.extend(touch(30, 8, 128 * 8192) + touch(30, 12, 4096 + 128 * 7168) + touch(30, 16, 4096 + 128 * 7168))
    pro += srd(64, 60, 61, MB_REL + 32768, EX_OFF)
    pro += L(f"""
    s_lshl_b32 s62, s3, 7
    s_add_u32 s62, s62, {MB_REL:#x}
    v_and_b32 v36, 31, v1
    v_add_u32 v28, s62, v1
    s_lshl_b32 s62, s32, 12
    s_add_u32 s62, s62, s34
    s_add_u32 s62, s62, {MB_REL:#x}
    v_lshl_add_u32 v29, v36, 7, s62
    v_mov_b32 v37, 0x7fff0000
    v_lshrrev_b32 v38, 5, v1
    v_or_b32 v38, s33, v38
    v_cmp_eq_u32 vcc, 0, v38
    v_mov_b32 v126, 0
    s_nop 0
    v_cndmask_b32 v29, v37, v29, vcc
    s_cmp_eq_u32 s33, 0
    s_cselect_b32 s70, 0, 0x40000000
    v_or_b32 v38, s33, v1
    v_cmp_eq_u32 vcc, 0, v38
    v_mov_b32 v36, s3
    s_lshl_b32 s62, s32, 5
    v_cndmask_b32 v27, v37, v36, vcc
    v_and_b32 v26, 31, v1
    v_add_u32 v26, s62, v26
    """)
    if P.get("lnst"): pro += stamp()
    pro += L(f"s_mov_b32 s62, 0xffff0000") + [W(vm="x")]
    if P.get("lnst"): pro += stamp()
    for e in range(32):
        pro += L(f"v_lshlrev_b32 v{80+e}, 16, v{64+e//2}" if e % 2 == 0 else f"v_and_b32 v{80+e}, s62, v{64+e//2}")
    def red8(v):
        return L(f"""
        s_nop 1
        v_add_f32_dpp v{v}, v{v}, v{v} row_ror:8 row_mask:0xf bank_mask:0xf
        v_mov_b32 v40, v{v}
        s_nop 1
        v_permlane16_swap_b32 v{v}, v40
        v_add_f32 v{v}, v{v}, v40
        v_mov_b32 v40, v{v}
        s_nop 1
        v_permlane32_swap_b32 v{v}, v40
        v_add_f32 v{v}, v{v}, v40
        """)
    pro += L("v_add_f32 v36, v80, v81\nv_add_f32 v37, v82, v83")
    for e in range(4, 32, 2): pro += L(f"v_add_f32 v36, v36, v{80+e}\nv_add_f32 v37, v37, v{81+e}")
    pro += L("v_add_f32 v36, v36, v37") + red8(36) + L("v_mul_f32 v36, 0x3b800000, v36")
    pro += L("v_sub_f32 v38, v80, v36\nv_sub_f32 v39, v81, v36\nv_mul_f32 v37, v38, v38\nv_mul_f32 v41, v39, v39")
    for e in range(2, 32, 2): pro += L(f"v_sub_f32 v38, v{80+e}, v36\nv_sub_f32 v39, v{81+e}, v36\nv_fmac_f32 v37, v38, v38\nv_fmac_f32 v41, v39, v39")
    pro += L("v_add_f32 v37, v37, v41") + red8(37)
    pro += L(f"""
    v_lshlrev_b32 v38, 5, v32
    v_add_u32 v38, {LNLDS:#x}, v38
    s_lshl_b32 s63, s33, 3
    v_add_u32 v39, s63, v38
    ds_write_b64 v39, v[36:37]
    s_waitcnt lgkmcnt(0)
    s_barrier
    ds_read_b128 v[44:47], v38
    ds_read_b128 v[48:51], v38 offset:16
    v_lshrrev_b32 v42, 6, v33
    v_lshlrev_b32 v42, 17, v42
    v_lshl_add_u32 v42, v35, 12, v42
    v_bfe_u32 v43, v33, 4, 2
    v_lshl_add_u32 v42, v43, 10, v42
    v_and_b32 v43, 15, v33
    v_lshl_add_u32 v42, v43, 4, v42
    """)
    pro += srd(24, 60, 61, 4 << 20, XN_OFF)
    pro += L("""
    s_waitcnt lgkmcnt(0)
    v_add_f32 v36, v44, v46
    v_add_f32 v37, v48, v50
    v_add_f32 v36, v36, v37
    v_mul_f32 v36, 0.25, v36
    v_add_f32 v37, v45, v47
    v_add_f32 v38, v49, v51
    v_add_f32 v37, v37, v38
    v_sub_f32 v44, v44, v36
    v_sub_f32 v46, v46, v36
    v_sub_f32 v48, v48, v36
    v_sub_f32 v50, v50, v36
    v_mul_f32 v38, v44, v44
    v_fmac_f32 v38, v46, v46
    v_fmac_f32 v38, v48, v48
    v_fmac_f32 v38, v50, v50
    v_fmac_f32 v37, 0x43800000, v38
    v_mul_f32 v37, 0x3a800000, v37
    v_cvt_pk_bf16_f32 v38, v36, v37
    v_lshlrev_b32 v36, 16, v38
    v_and_b32 v37, s62, v38
    v_add_f32 v37, 0x3727c5ac, v37
    v_cvt_pk_bf16_f32 v37, v37, v37
    v_and_b32 v37, s62, v37
    v_sqrt_f32 v37, v37
    s_nop 0
    v_cvt_pk_bf16_f32 v37, v37, v37
    v_and_b32 v37, s62, v37
    v_rcp_f32 v37, v37
    """)
    for e in range(32): pro += L(f"v_sub_f32 v{80+e}, v{80+e}, v36")
    for q in range(16): pro += L(f"v_cvt_pk_bf16_f32 v{64+q}, v{80+2*q}, v{81+2*q}")
    for e in range(32):
        pro += L(f"v_lshlrev_b32 v{80+e}, 16, v{64+e//2}" if e % 2 == 0 else f"v_and_b32 v{80+e}, s62, v{64+e//2}")
    for e in range(32): pro += L(f"v_mul_f32 v{80+e}, v{80+e}, v37")
    for g in range(4):
        for h, q in enumerate((2 * g, 2 * g + 1, 8 + 2 * g, 9 + 2 * g)):
            pro += L(f"v_cvt_pk_bf16_f32 v{64+g*4+h}, v{80+2*q}, v{81+2*q}")
        pro += [Ins(f"buffer_store_dwordx4 v[{64+g*4}:{67+g*4}], v42, s[24:27], 0 offen offset:{g*256}{SC}", tag="xn")]
    pro += L(f"buffer_store_byte v126, v28, s[64:67], s70 offen{SC}")
    if P.get("lnst"): pro += stamp()
    pro += L("s_nop 0\nv_mov_b32 v126, 1")
    pro += tr_addr(96, 0, True, 1024, 36) + tr_addr(97, 1, True, 1024, 36) + tr_addr(98, 0, False, 512, 36) + tr_addr(99, 1, False, 512, 36)
    pro += L("v_lshlrev_b32 v100, 3, v1")
    for i in range(5): pro += L(f"v_mov_b32 v{2+i}, v{96+i}")
    if P.get("lnst"): pro += [W(vm="all")] + stamp()
    if P["sync"] == 0:
        pro += [W(vm="all"), Ins("s_barrier"), Ins(f"buffer_store_byte v126, v27, s[44:47], 0 offen{SC}", tag="flag")]
    else:
        pro += L("v_and_b32 v27, 0xffffffe0, v27\nv_mov_b32 v125, 1")
        pro += [W(vm="all"), Ins("s_barrier"), Ins(f"buffer_atomic_add v125, v27, s[44:47], 0 offen sc0 sc1", tag="flag")]
    pro += stamp()
    if P["sync"]:
        pro += [W(vm="flag")] + L(f"""
        v_readfirstlane_b32 s70, v125
        s_sub_u32 s63, 48, s34
        s_and_b32 s70, s70, 31
        s_cmp_eq_u32 s70, 31
        s_cselect_b32 s62, s63, 0x40000000
        buffer_store_byte v126, v29, s[64:67], s62 offen{SC}
        """)
    if P["order"] == 5:
        def cp(lst, m):
            o = []
            for x in fix_m0(lst):
                y = x.copy(); y.text = y.text.replace("L_pc", "L_pc" + m) + ("" if y.label else " ; opt" + m); o.append(y)
            return o
        pro += L("s_cmp_eq_u32 s33, 0\ns_cbranch_scc1 L_skipA") + cp(defer, "A") + L("L_skipA:")
        late_w1 = L("s_cmp_lg_u32 s33, 0\ns_cbranch_scc1 L_skipB") + cp(defer, "B") + L("L_skipB:")
    else: pro += defer
    pro += L(f"""
    s_lshl_b32 s62, s32, 2
    s_add_u32 s62, s62, s33
    s_lshl_b32 s63, s62, 17
    v_lshlrev_b32 v25, 4, v1
    v_add_u32 v15, s63, v25
    v_add_u32 v16, 0x1000, v15
    s_lshl_b32 s62, s35, 19
    s_add_u32 s62, s62, {1536*256:#x}
    s_add_u32 s28, s48, s62
    s_addc_u32 s29, s49, 0
    s_mov_b32 s30, 0x20000
    s_mov_b32 s31, 0x20000
    s_add_u32 s36, s50, s62
    s_addc_u32 s37, s51, 0
    s_mov_b32 s38, 0x20000
    s_mov_b32 s39, 0x20000
    v_lshrrev_b32 v36, 4, v1
    v_and_b32 v37, 15, v1
    v_lshl_add_u32 v38, v36, 8, s5
    """)
    pro += srd(40, 60, 61, 16 << 20, O_OFF)
    for z in range(4):
        pro += L(f"v_add_u32 v39, {4*z}, v36\nv_xor_b32 v39, v39, v37\nv_lshl_add_u32 v{17+z}, v39, 4, v38")
    pro += wdma_addr(21, 256, "0", t0=40, st=63)
    pro += L("s_mov_b32 s55, 0\ns_mov_b32 s56, 0\ns_mov_b32 s57, -1\ns_mov_b32 s91, 6\ns_mov_b32 s58, 0")
    for i in range(224): pro += L(f"v_accvgpr_write_b32 a{i}, 0")
    for i in range(128, 256, 2): pro += L(f"v_mov_b64 v[{i}:{i+1}], 0")
    if P["sync"] == 0:
        pro += [W(vm=("W", 0))]
        pro += L(f"""
        s_cmp_lg_u32 s33, 0
        s_cbranch_scc1 L_x_go
        s_mov_b32 s70, 0x40000
        s_sleep {P['slp0']}
        L_x_poll:
        buffer_load_ubyte v125, v26, s[44:47], 0 offen{SC} ; w0only
        s_waitcnt vmcnt(0) ; w0only
        v_cmp_gt_u32 vcc, 1, v125
        s_sub_u32 s70, s70, 1
        s_cbranch_scc1 L_x_go
        s_cbranch_vccz L_x_go
        s_sleep {P['slp']}
        s_branch L_x_poll
        L_x_go:
        s_barrier
        """)
    else:
        if P["pad"]:
            pro += L("""
            s_cmp_eq_u32 s33, 0
            s_cbranch_scc1 L_scout_ret
            s_mov_b64 exec, 0
            s_cmp_eq_u32 s33, 1
            s_cbranch_scc1 L_pad1_0
            s_cmp_eq_u32 s33, 2
            s_cbranch_scc1 L_pad2_0
            s_branch L_pad3_0
            L_scout_ret:
            s_mov_b64 exec, -1
            """)
        pro += [W(vm=("W", 0))]
        pro += L(f"""
        s_cmp_lg_u32 s33, 0
        s_cbranch_scc1 L_x_go
        s_mov_b32 s70, 0x40000
        L_x_poll:
        buffer_load_ubyte v125, v28, s[64:67], 0 offen{SC} ; w0only
        s_waitcnt vmcnt(0) ; w0only
        v_readlane_b32 s62, v125, 48
        s_sub_u32 s70, s70, 1
        s_cbranch_scc1 L_x_go
        s_cmp_eq_u32 s62, 0
        s_cbranch_scc1 L_x_poll
        L_x_go:
        s_barrier
        """)
    pro += stamp() + (xloads(0) + late_w1 + xloads(1) if not P.get('o6') else xloads(0) + xloads(1) + [W(vm=('X', 0))] + late_w1)
    pro += srd(44, 60, 61, 14 << 20, H_OFF)
    pro += stamp()
    def kvloads(tau, dyn):
        r = []
        for v in range(2):
            sb = PAIR[tau % 5] + v * 16384; i = 2 * tau + v; reg = (sb, sb + 16384, ("KV", i)); tag = ("KV", i)
            r.append(Ins(f"s_add_u32 m0, s89, {v*16384}" if dyn else f"s_add_u32 m0, s5, {sb:#x}"))
            for z in range(4):
                r.append(Ins(f"buffer_load_dwordx4 v{(21 if v else 17)+z}, s[{36 if v else 28}:{39 if v else 31}], s55 offen offset:{z*1024} lds", tag=tag, wr=reg))
        r.append(Ins("s_add_u32 s55, s55, 0x4000"))
        return r
    blocks = []
    for p in range(3):
        for e in range(2):
            for m in range(2):
                bi = (p * 2 + e) * 2 + m
                blocks.append((4 + e, (lambda s, r, p=p, m=m: 16384 + m * 12288 + (2 * s + r) * 3072 + p * 1024), "a", bi * 16))
    for m in range(2):
        blocks.append((6, (lambda s, r, m=m: 40960 + m * 2048 + s * 1024 + r * 512), "a", (12 + m) * 16))
    for nb in range(8):
        b32, e = nb >> 1, nb & 1
        blocks.append((2 + e, (lambda s, r, b32=b32: (b32 >> 1) * 8192 + (b32 & 1) * 512 + s * 4096 + r * 2048), "v", 128 + nb * 16))
    NB = len(blocks); T = 16; TM = NB * 8
    gg = [(t, nb) for t in range(14) for nb in range(NB)] + [(14, nb) for nb in range(14)] + [(15, nb) for nb in range(14)] + [(14, nb) for nb in range(14, 22)] + [(15, nb) for nb in range(14, 22)]
    gidx = {k: i for i, k in enumerate(gg)}
    sc = Sched(2)
    for G, (t, nb) in enumerate(gg):
        va, imm, ak, ab = blocks[nb]; fb = 32 + (G % 4) * 8
        for mb in range(4):
            for s in range(2):
                ac = f"{ak}[{ab+mb*4}:{ab+mb*4+3}]"
                sc.mfma(f"{MF} {ac}, v[{fb+s*4}:{fb+s*4+3}], {breg(t, s, mb)}, {ac}")
    def rd(G):
        t, nb = gg[G]; va, imm, _, _ = blocks[nb]; fb = 32 + (G % 4) * 8; sb = GST[t % 3]
        return [Ins(f"ds_read_b64_tr_b16 v[{fb+s*4+r*2}:{fb+s*4+r*2+1}], v{va} offset:{imm(s, r)}", tag=("P", G), rd=(sb, sb + STG, ("G", t))) for s in range(2) for r in range(2)]
    LB = P['lb']
    for it in range(8):
        g = 2 * it * TM + LB
        if it == 0: sc.used[g] += 2
        else: sc.fixed_front(g, L("s_sub_u32 s91, s91, 1\ns_cbranch_scc0 L_G"))
        sc.fixed_front(g, Ins("; @IT G" if it < 7 else "; @ENDIT G"))
    for t in range(0, T):
        g0 = gidx[(t, 0)] * 8
        if t >= 1: sc.fixed_front(g0 - 8 * LA, [W(vm=("W", t)), Ins("s_barrier")])
        sc.fixed_back(g0, W(vm=("X", t)))
    for G in range(len(gg)): sc.fixed_back(G * 8, W(lg=("P", G)))
    d15 = GST[0] - GST[2]
    for G, (t, nb) in enumerate(gg):
        upd = []
        if nb == 0 and 0 < t < 15: upd = [f"v_add_u32 v{va}, s88, v{94+va}" for va in range(2, 7)]
        if (t, nb) == (15, 0): upd = [f"v_subrev_u32 v{va}, {-d15:#x}, v{va}" for va in (4, 5, 6)]
        if (t, nb) == (15, 14): upd = [f"v_subrev_u32 v{va}, {-d15:#x}, v{va}" for va in (2, 3)]
        for u_ in upd: sc.flow("lds", 8 * (G - LA) - 3, Ins(u_), deadline=8 * (G - LA))
        for i, x in enumerate(rd(G)): sc.flow("lds", 8 * (G - LA) + i, x, deadline=8 * (G - 1) + 2)
    for t in range(1, 15): sc.fixed_front(t * TM + 2, Ins("s_barrier ; FB"))
    def vflow(S, g, its, sp, dl=None):
        for x in its:
            if x.kind == "vmem": x.cost = 2
            g = S.flow("vm", g if dl is None else min(g, dl), x, mingap=(1 if x.kind == "vmem" and S.qpos.get("vm") != dl else 0), deadline=dl) + (sp if x.kind == "vmem" else 0)
        return g
    for t in range(0, 15):
        g = t * TM + 1
        if t == 0:
            its = []
            if P["tkv"]: its += touch(30, 28, 0) + touch(30, 36, 0)
            if P["tg"]:
                its += touch(31, 8, 256 * 8192) + touch(31, 12, 4096 + 256 * 7168) + touch(31, 16, 4096 + 256 * 7168)
                its += touch(31, 8, 512 * 8192) + touch(31, 12, 4096 + (3 << 20)) + touch(31, 16, 4096 + (3 << 20))
            g = vflow(sc, g, its, P["xsp"] - 1)
        else:
            ex = []
            if P["touch"] == 4 and t % 2 == 1:
                ex = [Ins("buffer_load_dword v127, v31, s[80:83], s58 offen", tag="touch"), Ins("buffer_load_dword v127, v31, s[76:79], s58 offen", tag="touch"), Ins(f"s_add_u32 s58, s58, {1024*1280:#x}")]
            g = vflow(sc, g, xloads(t + 1) + ex, P["xsp"])
        assert g < t * TM + LB + P["xsp"] or t % 2 == 1, g - t * TM
        g = max(g, t * TM + LB + 1)
        items = wloads(t + 2) if t + 2 < T else []
        if t == 14:
            items += kvloads(0, False) + kvloads(1, False)
            if P["touch"] == 1: items += touch(31, 80, 0) + touch(31, 80, 3 << 20) + touch(31, 76, 0) + touch(31, 76, 4 << 20)
        g = vflow(sc, g, items, P["wsp"] if t < 14 else 3)
        assert g < (t + 1) * TM - 8 * LA - 4 + P["wsp"] or t >= 14, g - t * TM
    g0 = 14 * TM + LB + 1
    hs = L(f"""
    s_lshl_b32 s62, s32, 2
    s_add_u32 s62, s62, s33           ; mb64
    s_mul_i32 s63, s62, {112*4096}
    s_lshr_b32 s3, s34, 1
    s_mul_i32 s3, s3, 7
    s_and_b32 s4, s34, 1
    s_lshl_b32 s52, s4, 2
    s_add_u32 s52, s52, s3
    s_lshl_b32 s52, s52, 12
    s_add_u32 s52, s52, s63           ; P base
    s_add_u32 s3, s3, 3
    s_lshl_b32 s3, s3, 12
    s_add_u32 s3, s3, s63
    s_lshl_b32 s4, s4, 3
    s_add_u32 s3, s3, s4
    s_add_u32 s53, s52, 4096
    s_add_u32 s54, s52, 8192
    s_mov_b32 s72, s63
    s_lshl_b32 s75, s62, 19
    s_mov_b32 s70, {QSCALE:#x}
    s_mov_b32 s71, s70
    """)
    for x in hs: sc.flow("hd", sc.qpos["vm"] + 1, x)
    k = 0
    for p in range(4):
        ne = 2 if p < 3 else 1
        for mb in range(4):
            tb = 96; ob = 112 + (k % 3) * 4; k += 1
            last = gidx[(15, 4 * p + 3 if p < 3 else 13)] * 8 + mb * 2 + 1
            g = last + 6
            for e in range(ne):
                bi = (p * 2 + e) * 2 if p < 3 else 12
                for i in range(4):
                    sc.flow("hd", g, Ins(f"v_accvgpr_read_b32 v{tb+e*4+i}, a{bi*16+mb*4+i}")); sc.flow("hd", g, Ins(f"v_accvgpr_read_b32 v{tb+8+e*4+i}, a{(bi+1)*16+mb*4+i}"))
            for q in range(4 * ne): sc.flow("hd", g, Ins(f"v_mul_f32 v{tb+q}, v{tb+q}, v{tb+8+q}"))
            for q in range(2 * ne): sc.flow("hd", g, Ins(f"v_cvt_pk_bf16_f32 v{ob+q}, v{tb+2*q}, v{tb+2*q+1}"))
            if p < 3: x = Ins(f"buffer_store_dwordx4 v[{ob}:{ob+3}], v25, s[44:47], s{52+p} offen offset:{mb*1024}{SC}", tag="Hst")
            else: x = Ins(f"buffer_store_dwordx2 v[{ob}:{ob+1}], v25, s[44:47], s3 offen offset:{mb*1024}{SC}", tag="Hst")
            sc.flow("hd", g, x)
    def qfr(qb, be): return 128 + 32 * be + 4 * qb
    for be in range(4):
        g = gidx[(15, 14 + 2 * be + 1)] * 8 + 7 + 6
        for qb in range(4):
            a = qfr(qb, be); b = a + 16
            for r in (a, a + 1, a + 2, a + 3, b, b + 1, b + 2, b + 3): sc.flow("qp", g, Ins(f"v_mul_f32 v{r}, s70, v{r}"))
            for h, r in enumerate((a, a + 2, b, b + 2)): sc.flow("qp", g, Ins(f"v_cvt_pk_bf16_f32 v{a+h}, v{r}, v{r+1}"))
        sw_ = L("s_mov_b64 exec, s[56:57]") + sum([L(f"v_swap_b32 v{qfr(qb, be)}, v{qfr(qb, be)+2}\nv_swap_b32 v{qfr(qb, be)+1}, v{qfr(qb, be)+3}") for qb in range(4)], []) + L("s_mov_b64 exec, -1")
        sc.flowg("qp", len(sc.mf), sw_)
    tail = sc.mid[len(sc.mf)]; nt = []
    i = 0
    while i < len(tail):
        x = tail[i]
        if i + 1 < len(tail) and x.text.startswith("v_mul_f32") and tail[i + 1].text.startswith("v_mul_f32"):
            o1 = [o.strip() for o in x.text[10:].split(",")]; o2 = [o.strip() for o in tail[i + 1].text[10:].split(",")]
            r = int(o1[0][1:])
            if r % 2 == 0 and int(o2[0][1:]) == r + 1:
                if o1[1] == "s70": nt.append(Ins(f"v_pk_mul_f32 v[{r}:{r+1}], v[{r}:{r+1}], s[70:71]"))
                else:
                    q = int(o1[2][1:]); nt.append(Ins(f"v_pk_mul_f32 v[{r}:{r+1}], v[{r}:{r+1}], v[{q}:{q+1}]"))
                i += 2; continue
        nt.append(x); i += 1
    print("G", sc.stats()[:50], "exposed tail instrs", len(nt))
    sc.mid[len(sc.mf)] = stamp() + L("s_nop 7") + nt
    G_ = sc.emit()
    if STAMP and P.get("gst"):
        i = [k for k, x in enumerate(G_) if x.text == "; @IT G"][0]
        G_ = G_[:i] + stamp() + G_[i:]
        i = [k for k, x in enumerate(G_) if x.text == "; @ENDIT G"][0] + 1
        G_ = G_[:i] + stamp() + G_[i:]
    mid = L("""
    v_and_b32 v116, 3, v1
    v_cmp_eq_u32 vcc, 0, v116
    v_mov_b32 v117, 0x3f803f80
    v_lshrrev_b32 v118, 4, v1
    v_cndmask_b32 v112, 0, v117, vcc
    v_cndmask_b32 v113, 0, v117, vcc
    v_cndmask_b32 v114, 0, v117, vcc
    v_cndmask_b32 v115, 0, v117, vcc
    v_and_b32 v119, 15, v1
    """)
    for b in range(4):
        mid += L(f"v_add_u32 v120, {4*b}, v118\nv_xor_b32 v120, v120, v119\nv_lshlrev_b32 v120, 4, v120\nv_lshl_add_u32 v{11+b}, v119, 8, v120\nv_add_u32 v{11+b}, {PAIR[0]:#x}, v{11+b}")
    mid += L(f"s_mov_b32 s100, 0xffff8000\ns_mov_b32 s101, 0x20000\ns_add_u32 s4, s5, {PAIR[0]:#x}")
    mid += stamp()
    late = tr_addr(15, 0, False, 1024, 120) + tr_addr(16, 1, False, 1024, 120)
    late += L(f"v_add_u32 v15, {PAIR[0]+16384+32768:#x}, v15\nv_add_u32 v16, {PAIR[0]+16384+32768:#x}, v16")
    late2 = L(f"""
    v_add_u32 v6, 0x20000, v2
    v_add_u32 v30, 0x20000, v3
    s_lshr_b32 s48, s34, 4            ; type
    s_bfe_u32 s49, s34, 0x30001
    s_lshl_b32 s49, s49, 8            ; ct bytes
    s_lshl_b32 s73, s34, 14
    s_add_u32 s53, s75, s73           ; O store base
    s_and_b32 s50, s34, 1
    s_lshl_b32 s51, s32, 1
    s_add_u32 s50, s50, s51           ; rt
    s_lshl_b32 s51, s50, 1
    s_lshr_b32 s73, s33, 1
    s_add_u32 s51, s51, s73           ; mb64 of K2 rows
    s_mul_i32 s71, s48, {(28+3*P['bal'])*64*2048}
    s_mul_i32 s72, s51, {112*4096}
    s_mul_i32 s73, s48, {(28+3*P['bal'])*2*4096}
    s_add_u32 s72, s72, s73
    s_lshl_b32 s74, s48, 22
    s_lshl_b32 s75, s51, 19
    s_lshl_b32 s73, s48, 18
    s_add_u32 s75, s75, s73
    s_and_b32 s73, s33, 1
    s_lshl_b32 s73, s73, 11
    v_add_u32 v26, s73, v25
    v_add_u32 v27, 0x1000, v26
    s_mov_b64 s[8:9], s[80:81]
    s_mov_b32 s10, s82
    s_mov_b64 s[12:13], s[44:45]
    s_mov_b32 s14, s46
    s_mov_b32 s88, 3
    s_mov_b32 s91, 4
    """) + wdma_addr(7, 2048, "0", t0=120, st=63)
    if P.get("perm"):
        late2 += L("s_lshr_b32 s63, s33, 1\ns_lshl_b32 s63, s63, 7\ns_and_b32 s73, s49, 0x100\ns_lshr_b32 s73, s73, 1\ns_and_b32 s49, s49, 0x600\ns_add_u32 s49, s49, s73")
        for z in range(4): late2 += L(f"v_add_u32 v{7+z}, s63, v{7+z}")
        late2 += L("s_lshl_b32 s63, s48, 8\ns_xor_b32 s63, s63, 256")
    else: late2 += L("s_lshl_b32 s63, s48, 7\ns_xor_b32 s63, s63, 128")
    for z in range(4): late2 += L(f"v_xor_b32 v{7+z}, s63, v{7+z}\nv_add_u32 v{7+z}, s49, v{7+z}")
    at = Sched(2)
    qk0 = {}; pv0 = {}
    KR = 11; VR = 15
    def sbl(u, qb, kb): return 144 + 64 * (u % 2) + 32 * kb + 4 * qb
    def kfb(u, kb, be):
        f = (144 if u % 2 else 64) + (kb * 4 + be) * 4
        return f"{'a' if u % 2 else 'v'}[{f}:{f+3}]"
    def qk_list(u, first, kf):
        r = []
        for qb in range(4):
            for kb in range(2):
                d = sbl(u, qb, kb)
                for be in range(4):
                    c = f"v[{d}:{d+3}]" if be else ("0" if first else f"v[{96+qb*4}:{99+qb*4}]")
                    q = qfr(qb, be)
                    r.append(f"{MF} v[{d}:{d+3}], {kf(kb, be)}, v[{q}:{q+3}], {c}")
        return r
    def dborder(u): return [8, 0, 1, 2, 3, 4, 5, 6, 7] if u == 15 else list(range(9))
    def pv_list(u, vf, first=False):
        r = []
        for db in dborder(u):
            for qb in range(4):
                ac = (db * 4 + qb) * 4; pf = sbl(u, qb, 0)
                a = vf(db) if db < 8 else "v[112:115]"
                r.append(f"{MF} a[{ac}:{ac+3}], {a}, v[{pf}:{pf+3}], {'0' if first else f'a[{ac}:{ac+3}]'}")
        return r
    def QK(u):
        qk0[u] = len(at.mf)
        for m in qk_list(u, u == 0, lambda kb, be: kfb(u, kb, be)): at.mfma(m)
    def PV(u):
        pv0[u] = len(at.mf)
        for m in pv_list(u, lambda db: f"v[{32+db*4}:{35+db*4}]", u == 0): at.mfma(m)
    QK(0); QK(1)
    for u in range(14): PV(u); QK(u + 2)
    PV(14); PV(15)
    NU = 16
    def pvpos(u, db): return pv0[u] + dborder(u).index(db) * 4
    kb0 = len(at.mf)
    BAL = P['bal']; NT = 60 + 3 * BAL; R2 = 6; NN = NT - 6; PD = 5; NB0 = 28 + 3 * BAL; NL = 54
    grp = [(n, nb) for n in range(NN) for nb in range(8)] + [(n, nb) for n in range(NN, NT - 2) for nb in range(4)] + [(n, nb) for nb in range(4) for n in (NT - 2, NT - 1)] + [(n, nb) for n in range(NN, NT) for nb in range(4, 8)]
    g2 = {k: i for i, k in enumerate(grp)}
    for G, (n, nb) in enumerate(grp):
        fb = AFR[G % 8]
        for mb in range(2):
            for s in range(2):
                r = 128 + (nb * 2 + mb) * 4; ac = f"v[{r}:{r+3}]"
                at.mfma(f"{MF} {ac}, v[{fb+s*4}:{fb+s*4+3}], {b2reg(n, s, mb)}, {'0' if (n == 0 and s == 0) else ac}")
    def gp(G): return kb0 + 4 * G
    def t0(n): return gp(g2[(n, 0)])
    VLA = 12; ALB = 4
    CHK = pv0[15] + 12
    for it in range(1, 7):
        g = pv0[2 * it] + ALB
        if it == 1: at.used[g] += 2
        else: at.fixed_front(g, L("s_sub_u32 s91, s91, 1\ns_cbranch_scc0 L_A"))
        at.fixed_front(g, Ins("; @IT A" if it < 6 else "; @ENDIT A"))
    at.fixed_front(-10, [W(vm=("KV", 0)), Ins("s_barrier")])
    bpos = {}
    for tau in range(8):
        bpos[tau] = pv0[2 * tau] - VLA - 1
        at.fixed_front(bpos[tau], [W(vm=("KV", min(2 * tau + 2, 15))), Ins("s_barrier")])
    SAVE = [208 + 2 * i for i in range(8)] + [240 + 2 * i for i in range(8)]
    def exch(br, store, base, tag):
        so = "s58" if br else "0"
        return [Ins(f"buffer_store_dwordx4 v[{base+4*i}:{base+4*i+3}], v17, s[64:67], {so} offen offset:{i*1024}{SC}" if store else f"buffer_load_dwordx4 v[{base+4*i}:{base+4*i+3}], v18, s[64:67], {so} offen offset:{i*1024}{SC}", tag=tag) for i in range(4)]
    def packs(dst): return [Ins(f"v_cvt_pk_bf16_f32 v{dst+i}, v{128+2*i}, v{129+2*i}") for i in range(16)]
    sw = once(L("L_K_sw:\ns_nop 7") + packs(96) + exch(0, True, 96, "Bst") +
              sum([L(f"v_mov_b64 v[{SAVE[i]}:{SAVE[i]+1}], v[{160+2*i}:{161+2*i}]") for i in range(16)], []) +
              sum([L(f"v_mov_b64 v[{r}:{r+1}], 0") for r in range(128, 192, 2)], []) +
              L("s_nop 1\ns_branch L_K_sw_ret"))
    ksw, psw = divmod(NB0, R2)
    for k in range(1, 10):
        g = t0(R2 * k)
        if k == 1: at.used[g] += 2
        else: at.fixed_front(g, L("s_sub_u32 s91, s91, 1\ns_cbranch_scc0 L_K"))
        at.fixed_front(g, Ins("; @IT K" if k < 9 else "; @ENDIT K"))
        if k < 9:
            g = t0(R2 * k + psw)
            at.fixed_front(g, L(f"s_cmp_eq_u32 s91, {8-ksw}\ns_cbranch_scc1 L_K_sw"))
            if k == ksw: at.front[g] += sw
            at.fixed_front(g, Ins("L_K_sw_ret:"))
    b2 = {}
    for n in range(NT):
        b2[n] = t0(n) - 4 * LA2
        if n in (NN + 2, NN + 3, NT - 1): continue
        at.fixed_front(b2[n], [W(vm=("T", {NN + 1: NN + 3, NT - 2: NT - 1}.get(n, n))), Ins("s_barrier")])
    for G in range(0, len(grp), 2): at.fixed_back(gp(G), W(lg=("P2", G + 1)))
    assert b2[0] > CHK
    for u in range(NU):
        at.fixed_back(qk0[u], W(lg=("K", u, 0)))
        at.fixed_back(qk0[u] + 4, W(lg=("K", u, 1)))
        for db in range(0, 8, 2): at.fixed_back(pvpos(u, db), W(lg=("V", u, db + 1)))
    chk = []
    for qb in range(4): chk += L(f"v_accvgpr_read_b32 v{116+qb}, a{128+qb*4}")
    chk += L(f"""
    v_max3_f32 v124, v116, v117, v118
    s_mov_b32 s62, {P['thr']:#x}
    v_max_f32 v124, v124, v119
    v_cmp_nge_f32 vcc, s62, v124
    s_cbranch_vccnz L_fallback
    L_fb_ret:
    """)
    for qb in range(4): chk += L(f"v_rcp_f32 v{120+qb}, v{116+qb}")
    at.fixed_front(CHK, chk)
    for x in late: at.flow("late", -8, x, deadline=20)
    ev = []; evk = []
    def kreads(u):
        tau = u // 2; sb = PAIR[tau % 5]; r = []
        if u % 2 == 0 and u > 0:
            r.append(L("s_cmp_eq_u32 s88, 2\ns_cselect_b32 s90, s101, s100") if 4 <= u <= 12 else L("s_mov_b32 s90, s100"))
            r += [Ins(f"v_add_u32 v{x}, s90, v{x}") for x in range(KR, KR + 4)]
        for kb in range(2):
            for be in range(4):
                r.append(Ins(f"ds_read_b128 {kfb(u, kb, be)}, v{KR+be} offset:{((u%2)*2+kb)*4096}", tag=("K", u, kb), rd=(sb, sb + 16384, ("KV", 2 * tau))))
        return r
    def vreads(u, db):
        tau = u // 2; sb = PAIR[tau % 5] + 16384; r = []
        if u % 2 == 0 and db == 0:
            r.append(L("s_cmp_eq_u32 s88, 2\ns_cselect_b32 s59, s101, s100") if 4 <= u <= 12 else L("s_mov_b32 s59, s100"))
            r += [Ins(f"v_add_u32 v{x}, s59, v{x}") for x in (VR, VR + 1)]
        b32, e = db >> 1, db & 1; f = 32 + db * 4
        for rr in range(2):
            r.append(Ins(f"ds_read_b64_tr_b16 v[{f+rr*2}:{f+rr*2+1}], v{VR+e} offset:{(b32>>1)*8192+(b32&1)*512+(u%2)*4096+rr*2048}", tag=("V", u, db), rd=(sb, sb + 16384, ("KV", 2 * tau + 1))))
        return r
    for i, x in enumerate(kreads(0)): evk.append((-9 + i // 2, 0, x))
    for i, x in enumerate(kreads(1)): evk.append((4 + 2 * (i // 2 * 2), qk0[1] - 4, x))
    for u in range(NU):
        for db in range(8):
            lo = pvpos(u, db) - VLA
            if u >= 1: lo = max(lo, pvpos(u - 1, db) + 4)
            for x in vreads(u, db): ev.append((lo, pvpos(u, db & ~1) - 4, x))
        if u + 2 < NU:
            kr = kreads(u + 2); off = 1 if len(kr) > 8 else 0
            for i, x in enumerate(kr): evk.append((pv0[u] + ALB + 3 + (4 if u % 2 else 3) * ((i + off) // 2), qk0[u + 2] - 4, x))
    def rd2(G):
        n, nb = grp[G]; sb = K2SLOT[n % R2]; fb = AFR[G % 8]
        b32, e = nb >> 1, nb & 1
        va = [(2, 3), (4, 5), (6, 30)][sb >> 16][e]
        return [Ins(f"ds_read_b64_tr_b16 v[{fb+s*4+rr*2}:{fb+s*4+rr*2+1}], v{va} offset:{(sb & 0xffff)+(b32>>1)*8192+(b32&1)*512+s*4096+rr*2048}", tag=("P2", G), rd=(sb, sb + 16384, ("T", n))) for s in range(2) for rr in range(2)]
    for G in range(len(grp)):
        for i, x in enumerate(rd2(G)): ev.append((gp(G - LA2) + i, gp(G - 2), x))
    ev.sort(key=lambda e: e[0])
    for it in range(1, 6):
        at.fixed_front(pv0[2 * it] + ALB + 1, L("s_add_u32 s88, s88, 1\ns_cmp_eq_u32 s88, 5\ns_cselect_b32 s88, 0, s88"))
        at.fixed_front(pv0[2 * it] + ALB + 2, L("s_lshl_b32 s89, s88, 15\ns_sub_u32 s89, s4, s89"))
    def maxseq(a, b, t0):
        return [f"v_max3_f32 v{t0}, v{a}, v{a+1}, v{a+2}", f"v_max3_f32 v{t0+1}, v{a+3}, v{b}, v{b+1}", f"v_max3_f32 v{t0}, v{t0}, v{b+2}, v{b+3}", f"v_max_f32 v{t0}, v{t0}, v{t0+1}"]
    def xlane(t0, t1):
        return [f"v_mov_b32 v{t1}, v{t0}", "s_nop 1", f"v_permlane16_swap_b32 v{t0}, v{t1}", f"v_max_f32 v{t0}, v{t0}, v{t1}",
                f"v_mov_b32 v{t1}, v{t0}", "s_nop 1", f"v_permlane32_swap_b32 v{t0}, v{t1}", f"v_max_f32 v{t0}, v{t0}, v{t1}"]
    for q_, lst in (("lds", ev), ("ldsk", evk)):
        for g, dl, x in lst:
            if isinstance(x, list): at.flowg(q_, g, x, deadline=dl, strict=True)
            else: at.flow(q_, g, x, deadline=dl)
    nspin = [0]
    def flagload(tag, so="0"): return Ins(f"buffer_load_ubyte v125, v28, s[64:67], {so} offen{SC}", tag=tag)
    def check_(tag, test):
        k = nspin[0]; nspin[0] += 1
        ool.extend(L(f"L_spin{k}:\ns_mov_b32 s70, 0x40000\nL_spin{k}_l:\n{flagload(0).text}\ns_waitcnt vmcnt(0)\ns_sub_u32 s70, s70, 1\ns_cbranch_scc1 L_spin{k}_ret\n{test}\ns_cbranch_scc0 L_spin{k}_ret\ns_sleep 1\ns_branch L_spin{k}_l"))
        return [W(vm=tag)] + L(f"{test}\ns_cbranch_scc1 L_spin{k}\nL_spin{k}_ret:")
    def flagcheck(tag, need): return check_(tag, f"v_cmp_gt_u32 vcc, {need}, v125\ns_and_b32 s62, vcc_lo, -1")
    def finecheck(tag, need): return check_(tag, f"v_cmp_gt_u32 vcc, {need}, v125\ns_and_b64 s[62:63], vcc, s[68:69]")
    def pubstore(): return Ins(f"buffer_store_byte v126, v29, s[64:67], 0 offen{SC}", tag="flag")
    def finepub(so): return Ins(f"buffer_store_byte v126, v23, s[64:67], {so} offen{SC}", tag="flag")
    def loads2(n, part=3):
        sb = K2SLOT[n % R2]
        d = [Ins(f"buffer_load_dwordx4 v{7+z}, s[8:11], s71 offen offset:{z*1024} lds", tag=("T", n), wr=(sb, sb + 16384, ("T", n))) for z in range(4)]
        b = [Ins(f"buffer_load_dwordx4 {b2reg(n, s, mb)}, v{26+s}, s[12:15], s72 offen offset:{mb*1024}{SC}", tag=("T", n)) for s in range(2) for mb in range(2)]
        r = [Ins(f"s_add_u32 m0, s5, {sb:#x}")] * (part & 1)
        for z in range(4): r += [d[z]] * (part & 1) + [b[z]] * (part >> 1)
        r += L("s_add_u32 s71, s71, 0x20000") * (part & 1) + L("s_add_u32 s72, s72, 0x2000") * (part >> 1)
        return r
    vq = []
    vq.append((-9, kvloads(2, False), 3, 48))
    at.front[bpos[0]].insert(0, W(vm="Hst")); at.used[bpos[0]] += 1
    vq.append((bpos[0] + 1, [ASSERT("Hst"), Ins("v_mov_b32 v126, 2"), pubstore()], 0, bpos[0] + 6))
    tk = []
    def touch2(sr, off): return [Ins(f"s_mov_b32 s19, {off:#x}"), Ins(f"buffer_load_dword v127, v31, s[{sr}:{sr+3}], s19 offen", tag="touch")]
    if P["touch"] == 2: tk = touch2(80, 0) + touch2(80, 3 << 20) + touch2(76, 0) + touch2(76, 4 << 20)
    if P["touch"] == 3: tk = L("v_lshlrev_b32 v31, 1, v31") + touch2(80, 0) + touch2(76, 0)
    vq.append((pv0[0] + ALB + 3, kvloads(3, False) + tk, 8 if tk else 13, pv0[0] + ALB + 125))
    for it in range(1, 6): vq.append((pv0[2 * it] + ALB + 3, kvloads(it + 3, True), 13, pv0[2 * it] + ALB + 125))
    e0 = pv0[12] + ALB
    if P["pre"]:
        vq.append((e0 + 1, [flagload("fH")] + loads2(0, 1) + loads2(1, 1), 2, e0 + 35))
        vq.append((e0 + 36, [flagcheck("fH", 2)] + loads2(0, 2) + loads2(1, 2), 2, e0 + 70))
        for n in range(2, 5): vq.append((e0 + 71 + (n - 2) * 28, loads2(n), 2, e0 + 71 + (n - 2) * 28 + 27))
        vq.append((e0 + 155, loads2(5, 1), 2, CHK - 2))
        vq.append((CHK + 1, loads2(5, 2), 0, CHK + 8))
    else:
        vq.append((e0 + 1, [flagload("fH")], 0, e0 + 6))
        vq.append((e0 + 40, [flagcheck("fH", 2)], 0, e0 + 40))
        for n in range(4): vq.append((e0 + 41 + n * 30, loads2(n), 2, e0 + 41 + n * 30 + 29))
        vq.append((CHK + 1, loads2(4), 0, CHK + 12))
    for g in range(CHK + 2, b2[R2]): at.capo[g] = P["ocap"]
    hook = once(L("L_K_hook:") + flagcheck("flO", 3) + L("s_mov_b64 s[8:9], s[76:77]\ns_mov_b32 s10, s78\ns_mov_b64 s[12:13], s[40:41]\ns_mov_b32 s14, s42\ns_mov_b32 s71, s74\ns_mov_b32 s72, s75\ns_branch L_K_hook_ret"))
    khk = (NB0 - PD) // R2
    for n in range(PD + (1 if P['pre'] else 0), NT):
        its = loads2(n); m = n - PD + 1
        if m > NN: vq.append((b2[NN + 1] + 1, its, 1)); continue
        g = b2[m] + 1
        if n % R2 == NB0 % R2 and t0(R2) <= g < t0(NL):
            its = [L(f"s_cmp_eq_u32 s91, {8-khk}\ns_cbranch_scc1 L_K_hook") + (hook if n == NB0 else []) + L("L_K_hook_ret:")] + its
        elif n % R2 == NB0 % R2 and m == R2: its = [L("s_nop 0\ns_nop 0")] + its
        vq.append((g, its, 2))
    FLT = P["flt"] if BAL else 2
    kfl = khk if R2 * khk + FLT < NB0 - PD else khk - 1
    for k in range(1, 9):
        n = R2 * k + FLT
        a = [ASSERTD("Bst")] if k == 7 else []
        vq.append((t0(n) + 2, a + [L("s_cmp_eq_u32 s91, 1\ns_cselect_b32 s17, s16, s18"), finepub("s17"), L(f"s_cmp_eq_u32 s91, {8-kfl}\ns_cselect_b32 s17, 0, s18"), flagload({kfl: "flO"}.get(k, "flx"), "s17")], 1))
    vq.append((t0(NL) + 4, [flagload("fB")], 0))
    g = t0(NN + 2)
    vq.append((g, [finecheck("fB", 1)] + [Ins(f"buffer_load_dwordx4 v[{96+(mb*2+b)*4}:{99+(mb*2+b)*4}], v21, s[92:95], {'s53' if mb else '0'} offen offset:{b*64}", tag="xld") for mb in range(2) for b in range(2)] + exch(0, False, 32, "Bld"), 1))
    for nb in range(4):
        g = gp(g2[(NT - 1, nb)]) + 4 + 5
        vq.append((g, packs(48)[4 * nb:4 * nb + 4] + exch(1, True, 48, "Sst")[nb:nb + 1], 0))
    gk = gp(g2[(NN, 4)])
    vq.append((gk + P["pub5"], [[Ins("v_mov_b32 v126, 2"), W(vm="Sst"), finepub("s16")]], 0))
    vq.append((len(at.mf) - P["fl5"], [flagload("f5")], 0))
    vq.sort(key=lambda e: e[0])
    for g, its, sp, *dl in vq:
        dl = dl[0] if dl else None
        for x in its:
            if dl is not None: g = min(g, dl)
            if isinstance(x, list):
                g = at.flowg("vm", g, x, deadline=dl); at.used[g] -= sum(y.cost for y in x if y.once)
            elif x.kind == "comment":
                g = max(g, at.qpos.get("vm", g)); at.mid[g].append(x); at.qpos["vm"] = g
            elif g < CHK: g = vflow(at, g, [x], sp, dl)
            else: g = at.flow("vm", g, x, mingap=(1 if (" lds" in x.text and at.qpos.get("vm") != dl) else 0), deadline=dl) + (sp if x.kind == "vmem" else 0)
    rdy0 = {}
    for qb in range(4):
        a, b = sbl(0, qb, 0), sbl(0, qb, 1); t0_ = 116 + (qb % 2) * 2; g = qb * 8 + 7 + 6
        seq = maxseq(a, b, t0_) + xlane(t0_, t0_ + 1) + [f"v_sub_f32 v{96+qb*4+i}, 0, v{t0_}" for i in range(4)] + [f"v_sub_f32 v{r}, v{r}, v{t0_}" for r in list(range(a, a + 4)) + list(range(b, b + 4))]
        for i, s_ in enumerate(seq): at.flow("mx", g, Ins(s_), deadline=(qk0[1] + qb * 8 - 2 if i < 16 else pv0[0] - 6))
        rdy0[qb] = at.qpos["mx"] + 1
    exps = []
    for u in range(NU):
        w0 = pv0[u - 1] + ALB if 1 <= u <= 14 else 0
        for i in range(32):
            qb, rem = divmod(i, 8)
            ready = qk0[u] + qb * 8 + (rem // 4) * 4 + 3 + 6
            if u == 0: ready = max(ready, rdy0[qb])
            exps.append((max(ready, w0), u, i))
    ei = 0; pend = []
    def put(g, x): at.mid[g].append(x); at.used[g] += x.cost
    for g in range(0, kb0):
        def do_exp():
            nonlocal ei
            _, u, i = exps[ei]; ei += 1
            qb, rem = divmod(i, 8); r = sbl(u, qb, rem // 4) + rem % 4
            put(g, Ins(f"v_exp_f32 v{r}, v{r}"))
            if i % 2: pend.append((g + 1, u, Ins(f"v_cvt_pk_bf16_f32 v{sbl(u, qb, 0)+rem//2}, v{r-1}, v{r}")))
        while ei < len(exps) and pv0[exps[ei][1]] - 2 <= g: do_exp()
        while pend and pv0[pend[0][1]] - 1 <= g: put(g, pend.pop(0)[2])
        nr = sum(1 for p_ in pend if p_[0] <= g)
        if at.used[g] == 0 and ei < len(exps) and exps[ei][0] <= g and nr < 4: do_exp()
        while at.used[g] < 2 and pend and pend[0][0] <= g: put(g, pend.pop(0)[2])
    assert ei == len(exps) and not pend
    for x in late2: at.flow("late", pv0[0] + 1, x, deadline=pv0[2] + ALB - 1)
    if tk: assert True
    for g in range(CHK + 2, t0(R2)): at.capo[g] = P["ocap2"]
    for x in L("s_add_u32 s54, s53, 4096\ns_add_u32 s55, s53, 8192\ns_add_u32 s3, s53, 12288"): at.flow("od", CHK + 1, x)
    k = 0
    for b32 in range(4):
        for qb in range(4):
            tb_ = 96 + (k % 2) * 8; ob = 112 + (k % 2) * 4; k += 1
            g = pvpos(15, 2 * b32 + 1) + 4 + 8
            for e in range(2):
                for i in range(4): at.flow("od", g, Ins(f"v_accvgpr_read_b32 v{tb_+e*4+i}, a{((b32*2+e)*4+qb)*4+i}"))
            for q in range(8): at.flow("od", g, Ins(f"v_mul_f32 v{tb_+q}, v{tb_+q}, v{120+qb}"))
            for q in range(4): gq = at.flow("od", g, Ins(f"v_cvt_pk_bf16_f32 v{ob+q}, v{tb_+2*q}, v{tb_+2*q+1}"))
            at.flow("od", gq, Ins(f"buffer_store_dwordx4 v[{ob}:{ob+3}], v25, s[40:43], {['s53','s54','s55','s3'][b32]} offen offset:{qb*1024}{SC}", tag="Ost"))
    for g_ in range(CHK + 1, t0(R2)):
        for x in at.mid[g_]:
            if x.kind == "valu" and x.text.startswith(("v_accvgpr_read", "v_mul_f32", "v_cvt_pk")): x.tag = "odv"
    npub = [n for n in range(NN) if b2[n] > at.qpos["od"] + 24][0]
    print("O drain ends at K2 tile", (at.qpos["od"] - kb0) / 32, "publish at b2", npub); assert npub <= R2
    at.front[b2[npub]].insert(0, W(vm="Ost")); at.used[b2[npub]] += 1
    for x in [ASSERT("Ost"), Ins("v_mov_b32 v126, 3"), pubstore()]: at.flow("od", b2[npub] + 1, x)
    at.flow("od", b2[npub] + 2, Ins("v_mov_b32 v126, 1"), deadline=t0(R2) - 1)
    xa = L(f"""
    s_lshl_b32 s62, s32, 5
    s_add_u32 s62, s62, s34           ; gid
    s_lshl_b32 s63, s62, 14
    s_lshl_b32 s4, s33, 12
    s_add_u32 s63, s63, s4
    v_add_u32 v17, s63, v25
    v_xor_b32 v18, {16<<14:#x}, v17
    s_mov_b32 s58, 0x800000
    s_lshl_b32 s62, s62, 7
    s_add_u32 s62, s62, s33
    s_add_u32 s62, s62, {MB_REL+32:#x}
    s_xor_b32 s16, s62, {16<<7:#x}
    s_add_u32 s4, s33, 32
    s_lshl_b64 s[68:69], 1, s4
    v_cmp_eq_u32 vcc, 0, v1
    v_mov_b32 v23, 0x3ff00000
    v_and_b32 v21, 15, v1
    v_cndmask_b32 v23, v23, 0, vcc
    s_lshl_b32 s62, s50, 7
    s_lshl_b32 s63, s33, 5
    s_add_u32 s62, s62, s63
    v_add_u32 v21, s62, v21
    v_lshlrev_b32 v21, 11, v21
    v_lshrrev_b32 v24, 4, v1
    v_lshl_add_u32 v21, v24, 4, v21
    s_lshl_b32 s62, s48, {8 if P.get("perm") else 7}
    s_add_u32 s62, s62, s49
    v_add_u32 v21, s62, v21
    s_sub_u32 s91, 7, {'s48' if BAL else '0'}
    s_mov_b32 s18, 0x40000000
    """)
    for x in xa: at.flow("xa", kb0, x, deadline=t0(R2) - 1)
    at.flow("od", t0(NN) + 1, Ins("s_mov_b32 s53, 0x8000"))
    print("attn+k2", at.stats()[:300])
    A_ = at.emit()
    if STAMP and P.get("ast"):
        i = [k for k, x in enumerate(A_) if x.text == "; @IT A"][0]
        A_ = A_[:i] + stamp() + A_[i:]
        i = [k for k, x in enumerate(A_) if x.text == "; @ENDIT A"][0] + 1
        A_ = A_[:i] + stamp() + A_[i:]
    if STAMP:
        i = [k for k, x in enumerate(A_) if x is at.mf[kb0]][0]
        A_ = A_[:i] + stamp() + A_[i:]
        i = [k for k, x in enumerate(A_) if x.text == "; @IT K"][0]
        A_ = A_[:i] + stamp() + A_[i:]
        i = [k for k, x in enumerate(A_) if x.text == "; @ENDIT K"][0] + 1
        A_ = A_[:i] + stamp() + A_[i:]
    epi = stamp() + finecheck("f5", 2) + exch(1, False, 48, "Sld") + stamp()
    epi += [W(vm="Bld")] + L("s_mov_b32 s62, 0xbfb8aa3b\ns_mov_b32 s63, s62\ns_mov_b32 s69, 0xffff0000")
    def unp(d, src, i): return L(f"v_lshlrev_b32 v{d}, 16, v{src+i//2}" if i % 2 == 0 else f"v_and_b32 v{d}, s69, v{src+i//2}")
    for i0 in range(0, 32, 4):
        tmp = 112 + (i0 // 4 % 2) * 4; r = 128 + i0
        for i in range(4): epi += unp(r + i, 32, i0 + i)
        for i in (0, 2): epi += L(f"v_pk_add_f32 v[{r+i}:{r+i+1}], v[{r+i}:{r+i+1}], v[{SAVE[(i0+i)//2]}:{SAVE[(i0+i)//2]+1}]")
        for i in (0, 2): epi += L(f"v_pk_mul_f32 v[{tmp+i}:{tmp+i+1}], v[{r+i}:{r+i+1}], s[62:63]")
        for i in range(4): epi += L(f"v_exp_f32 v{tmp+i}, v{tmp+i}")
        for i in range(4): epi += L(f"v_add_f32 v{tmp+i}, 1.0, v{tmp+i}")
        for i in range(4): epi += L(f"v_rcp_f32 v{tmp+i}, v{tmp+i}")
        epi += L("s_nop 0")
        for i in (0, 2): epi += L(f"v_pk_mul_f32 v[{r+i}:{r+i+1}], v[{r+i}:{r+i+1}], v[{tmp+i}:{tmp+i+1}]")
    epi += L("s_mov_b64 exec, s[56:57]")
    for f in range(4): epi += L(f"v_swap_b32 v{96+f*4}, v{98+f*4}\nv_swap_b32 v{97+f*4}, v{99+f*4}")
    epi += L("s_mov_b64 exec, -1")
    def ix(mb, b, q): return ((b * 2 + q // 4) * 2 + mb) * 4 + q % 4
    for mb in range(2):
        for b in range(2):
            for q in range(8): epi += unp(64 + ix(mb, b, q), 96 + (mb * 2 + b) * 4, q)
    for i in range(0, 32, 2): epi += L(f"v_pk_fma_f32 v[{64+i}:{65+i}], v[{160+i}:{161+i}], v[{128+i}:{129+i}], v[{64+i}:{65+i}]")
    epi += stamp() + [W(vm="Sld")]
    for mb in range(2):
        for b in range(2):
            for q in range(8): epi += unp(160 + ix(mb, b, q), 48, ix(mb, b, q))
            for q in range(0, 8, 2):
                i = ix(mb, b, q)
                epi += L(f"v_pk_fma_f32 v[{64+i}:{65+i}], v[{160+i}:{161+i}], v[{128+i}:{129+i}], v[{64+i}:{65+i}]")
            r = 96 + (mb * 2 + b) * 4
            for q in range(0, 8, 2): epi += L(f"v_cvt_pk_bf16_f32 v{r+q//2}, v{64+ix(mb, b, q)}, v{65+ix(mb, b, q)}")
            epi += L(f"s_mov_b64 exec, s[56:57]\nv_swap_b32 v{r}, v{r+2}\nv_swap_b32 v{r+1}, v{r+3}\ns_mov_b64 exec, -1")
            epi += L(f"buffer_store_dwordx4 v[{r}:{r+3}], v21, s[96:99], {'s53' if mb else '0'} offen offset:{b*64}")
    epi += L("s_waitcnt vmcnt(0)") * STAMP + stamp() + stamp_store()
    epi += L("L_end:\ns_endpgm")
    vcur = PAIR[7 % 5] + 16384; kcur = PAIR[7 % 5]
    fbk = L(f"""
    L_fallback:
    s_waitcnt vmcnt(0) lgkmcnt(0)
    s_nop 7
    s_lshl_b32 s62, s33, 13
    s_add_u32 s88, s62, {FBSLOT0:#x}
    s_and_b32 s62, s33, 1
    s_lshl_b32 s62, s62, 13
    s_lshr_b32 s63, s33, 1
    s_lshl_b32 s63, s63, 7
    s_add_u32 s62, s62, s63
    """)
    for z in range(4): fbk += L(f"v_subrev_u32 v{17+z}, s5, v{17+z}\nv_subrev_u32 v{21+z}, s62, v{21+z}")
    fbk += L(f"s_sub_u32 s62, s88, {kcur:#x}")
    for b in range(4): fbk += L(f"v_add_u32 v{KR+b}, s62, v{KR+b}")
    fbk += L(f"s_sub_u32 s62, s88, {vcur:#x}\nv_add_u32 v116, s62, v{VR}\nv_add_u32 v117, s62, v{VR+1}")
    for qb in range(4): fbk += L(f"v_mov_b32 v{120+qb}, 0xff800000")
    def fb_k(first):
        o = []
        for kb in range(2):
            o += L(f"s_add_u32 m0, s88, {kb*4096}\ns_add_u32 s89, s55, {kb*4096}")
            for z in range(4): o += L(f"buffer_load_dwordx4 v{17+z}, s[28:31], s89 offen offset:{z*1024} lds")
        o += L("s_waitcnt vmcnt(0)")
        for kb in range(2):
            for be in range(4): o += L(f"ds_read_b128 {kfb(0, kb, be)}, v{KR+be} offset:{kb*4096}")
        o += L("s_waitcnt lgkmcnt(0)")
        o += L("\n".join(qk_list(1, first, lambda kb, be: kfb(0, kb, be)))) + L("s_nop 7")
        return o
    fbk += L("s_mov_b32 s55, 0\nL_fb1:") + fb_k(True)
    for qb in range(4):
        fbk += L("\n".join(maxseq(sbl(1, qb, 0), sbl(1, qb, 1), 118))) + L(f"v_max_f32 v{120+qb}, v{120+qb}, v118")
    fbk += L("s_add_u32 s55, s55, 0x2000\ns_cmp_lt_u32 s55, 0x20000\ns_cbranch_scc1 L_fb1")
    for qb in range(4):
        fbk += L("\n".join(xlane(120 + qb, 118)))
        for i in range(4): fbk += L(f"v_sub_f32 v{96+qb*4+i}, 0, v{120+qb}")
    for i in range(144): fbk += L(f"v_accvgpr_write_b32 a{i}, 0")
    fbk += L("s_mov_b32 s55, 0\nL_fb2:")
    fbk += fb_k(False)
    for bp in range(2):
        fbk += L(f"s_add_u32 m0, s88, {bp*4096}\ns_add_u32 s89, s55, {bp*128}")
        for z in range(4): fbk += L(f"buffer_load_dwordx4 v{21+z}, s[36:39], s89 offen offset:{z*1024} lds")
    fbk += L("s_waitcnt vmcnt(0)")
    for db in range(8):
        b32, e = db >> 1, db & 1
        for rr in range(2): fbk += L(f"ds_read_b64_tr_b16 a[{144+db*4+rr*2}:{145+db*4+rr*2}], v{116+e} offset:{(b32>>1)*4096+(b32&1)*512+rr*2048}")
    for qb in range(4):
        for kb in range(2):
            for i in range(4): fbk += L(f"v_exp_f32 v{sbl(1, qb, kb)+i}, v{sbl(1, qb, kb)+i}")
    for qb in range(4):
        for h in range(4): fbk += L(f"v_cvt_pk_bf16_f32 v{sbl(1, qb, 0)+h}, v{sbl(1, qb, h//2)+(h%2)*2}, v{sbl(1, qb, h//2)+(h%2)*2+1}")
    pl = pv_list(15, lambda db: f"a[{144+db*4}:{147+db*4}]")
    nfirst = CHK - pv0[15]
    fbk += L("s_waitcnt lgkmcnt(0)") + L("\n".join(pl[:nfirst]))
    fbk += L("s_add_u32 s55, s55, 0x2000\ns_cmp_lt_u32 s55, 0x20000\ns_cbranch_scc0 L_fb_done") + L("\n".join(pl[nfirst:])) + L("s_branch L_fb2\nL_fb_done:\ns_nop 7")
    for qb in range(4): fbk += L(f"v_accvgpr_read_b32 v{116+qb}, a{128+qb*4}")
    fbk += L("s_branch L_fb_ret")
    errs = check(fbk, "fb")
    assert not errs, "\n".join(errs[:30])
    full = resolve_waits(fix_m0(pro + G_ + mid + A_ + epi))
    if P.get("unrollK"):
        full = [x for x in full if not ("L_K" in x.text or x.text in ("; @IT K", "; @ENDIT K"))]
        for x in full: x.once = False
    full, prog = collapse(full)
    errs = check([x for x in full if "; optA" not in x.text], "fusedB") + check([x for x in full if "; optB" not in x.text], "fusedA")
    assert not errs, "\n".join(errs[:30])
    def keep(x):
        t = x.tag
        if isinstance(t, tuple):
            if P.get("ablX") and t[0] == "X" and t[1] >= 2: return False
            if P.get("ablW") and t[0] == "W" and t[1] >= 2: return False
            if P.get("ablR") and t[0] == "P": return False
        if P.get("ablH") and t == "Hst": return False
        if P.get("abltouch") and t == "touch": return False
        if P.get("noOst") and t == "Ost": return False
        if P.get("noOv") and t == "odv": return False
        if P.get("nofb") and "; FB" in x.text: return False
        if P.get("ablKV") and isinstance(t, tuple) and t[0] == "KV" and t[1] >= 8: return False
        if isinstance(t, tuple):
            if P.get("ablT") and t[0] == "T" and t[1] >= 6: return False
        return True
    prog = [x for x in prog if keep(x)]
    rest = [x for x in full if x.once] + ool + fbk + L("L_code_end:")
    if P["pad"]:
        def idx(pred): return [i for i, x in enumerate(prog) if pred(x)][0]
        iK = idx(lambda x: x.text == "L_K:"); ikb = idx(lambda x: x.text == "L_fb_ret:")
        iKe = idx(lambda x: x.text == "s_cbranch_scc0 L_K") + 1
        iGe = idx(lambda x: x.text == "s_cbranch_scc0 L_G") + 1
        iA = idx(lambda x: x.text == "L_A:"); iAe = idx(lambda x: x.text == "s_cbranch_scc0 L_A") + 1
        npd = P.get("padn", 550)
        regs_ = {1: (ikb + 1, min(iK, ikb + npd)), 2: (max(iGe, iA - 330 - npd), iA - 330), 3: (min(iK, ikb + npd), iK) if P.get("pad3", 0) == 0 else (iAe, min(ikb - 12, iAe + npd))}
        for k_, (a, b) in sorted(regs_.items(), key=lambda e: -e[1][0]):
            prog = prog[:a] + [Ins(f"; @PAD {k_}")] + prog[a:b] + [Ins("; @ENDPAD")] + prog[b:]
        allp = add_pads(prog + rest + L("L_pad1_0:\nL_pad2_0:\nL_pad3_0:") * 0, NAME + "_kernel", P["pad"]) if False else None
        tmp = [x for x in prog]
        prog = add_pads(tmp + rest + [Ins("L_padd:")], NAME + "_kernel_x", P["pad"]) if False else prog
    return_prog = prog
    allp = prog + rest
    if P["pad"]:
        for x in allp: x.text = x.text.replace("L_pad1_0", "L_scout_ret").replace("L_pad2_0", "L_scout_ret").replace("L_pad3_0", "L_scout_ret") if x.text.startswith(("s_cbranch_scc1 L_pad", "s_branch L_pad")) else x.text
        marks = [x for x in allp if x.text in ("s_cbranch_scc1 L_scout_ret", "s_branch L_scout_ret")]
        allp = add_pads(allp, NAME + "_kernel", P["pad"])
        marks[1].text = "s_cbranch_scc1 L_pad1_0"; marks[2].text = "s_cbranch_scc1 L_pad2_0"; marks[3].text = "s_branch L_pad3_0"
    return dict(name=NAME + "_kernel", body=text(allp), grid=256, block=256, lds=163840, vgpr=512, accum=256, sgpr=102)

if __name__ == "__main__":
    STAMP = "stamp" in sys.argv; DBGST = "dbgst" in sys.argv
    sys.argv = [a for a in sys.argv if a != "dbgst"]
    open("t_l.s", "w").write(build_file([gen_fused()]))
    for v in sys.argv[1:]:
        if v == "stamp": continue
        P = {}
        for kv in v.split(","):
            k, _, val = kv.partition("="); P[k] = int(val, 0) if val else 1
        open("t_l_" + v.replace(",", "_").replace("=", "") + ".s", "w").write(build_file([gen_fused(P)]))
```

```python
import sys, struct, math
from gen_core import *
from asmlib import build_file, NAME
from gen import srd, tr_addr, wdma_addr, lane_consts, MF
XN_OFF = 0; O_OFF = 4 << 20; H_OFF = 20 << 20; EX_OFF = 36 << 20; MB_REL = 32 << 20; TS_OFF = 104 << 20
STG = 45056
GST = [0, 90112, 45056]
PAIR = [131072, 98304, 65536, 32768, 0]
K2SLOT = [0, 16384, 32768, 49152, 131072, 147456, 98304, 114688, 65536, 81920]
FBSLOT0 = 98304
BRING = [[('a', 176 + 4 * i) for i in range(8)], [('a', 208 + 4 * i) for i in range(8)], [('a', 144 + 4 * i) for i in range(8)],
         [('a', 240 + 4 * i) for i in range(4)] + [('a', 128 + 4 * i) for i in range(4)], [('v', 32 + 4 * i) for i in range(8)]]
def b2reg(n, s, mb):
    k, b = BRING[n % 5][s * 4 + mb]
    return f'{k}[{b}:{b+3}]'
f2u = lambda f: struct.unpack("<I", struct.pack("<f", f))[0]
QSCALE = f2u(math.log2(math.e) / math.sqrt(128.0))
LNLDS = 163840 - 512
STAMP = False
SC = " sc1"
NST = [0]
def stamp():
    if not STAMP: return []
    k = NST[0]; NST[0] += 1
    return L(f"s_memtime s[84:85]\ns_memrealtime s[86:87]\ns_waitcnt lgkmcnt(0)\nv_writelane_b32 v0, s84, {2*k}\nv_writelane_b32 v0, s86, {2*k+1}")
def stamp_store():
    if not STAMP: return []
    t = srd(8, 60, 61, 1 << 20, TS_OFF)
    t += L("s_lshl_b32 s62, s2, 10\ns_lshl_b32 s63, s33, 8\ns_add_u32 s62, s62, s63\nv_lshlrev_b32 v1, 2, v1\nv_add_u32 v1, s62, v1\nbuffer_store_dword v0, v1, s[8:11], 0 offen")
    return t
def once(lst):
    for x in lst: x.once = True
    return lst
def ASSERTD(tag):
    x = Ins("; @ASSERTD"); x.vm = tag; return x
def ASSERT(tag):
    x = Ins("; @ASSERT"); x.vm = tag; return x

def gen_fused(P=None):
    P = dict(dict(LA=2, LA2=4, thr=f2u(2.0 ** 24), touch0=0, touch=4, ocap=3, slp0=0, slp=2, xsp=3, wsp=5, lb=56, ctouch=4, order=2, sync=1, pre=1, tg=0, tkv=0, pad=0, ectouch=0, ochk=11, tsp=3, pub5=78, bpub=6, fsplit=200, npw=6, ct2=1, wd=4, bd=4, fl5=12, osp=16), **(P or {}))
    NST[0] = 0
    LA = P["LA"]; LA2 = P["LA2"]
    ool = []
    pro = L("""
    s_cmp_ge_u32 s2, 256
    s_cbranch_scc1 L_end
    s_load_dwordx2 s[92:93], s[0:1], 0      ; x
    s_load_dwordx4 s[48:51], s[0:1], 8      ; K, V
    s_load_dwordx4 s[52:55], s[0:1], 24
    s_load_dwordx4 s[56:59], s[0:1], 48
    s_load_dwordx4 s[72:75], s[0:1], 64
    s_load_dwordx4 s[60:63], s[0:1], 80
    """)
    pro += lane_consts()
    pro += L("""
    s_lshr_b32 s34, s2, 3
    s_and_b32 s35, s2, 1
    s_lshl_b32 s35, s35, 2
    s_and_b32 s32, s34, 3
    s_add_u32 s32, s32, s35           ; rb
    s_bfe_u32 s35, s2, 0x20001
    s_lshr_b32 s34, s34, 2
    s_lshl_b32 s3, s35, 3
    s_add_u32 s34, s34, s3            ; j
    s_lshl_b32 s3, s32, 5
    s_add_u32 s3, s3, s34
    s_lshl_b32 s4, s3, 3
    v_and_b32 v32, 7, v1
    v_add_u32 v33, s4, v32            ; row
    v_lshlrev_b32 v34, 11, v33
    v_lshrrev_b32 v35, 3, v1
    s_lshl_b32 s4, s33, 3
    v_add_u32 v35, s4, v35            ; kstep s
    v_lshl_add_u32 v34, v35, 6, v34
    s_mov_b32 s94, 0x400000
    s_mov_b32 s95, 0x20000
    s_waitcnt lgkmcnt(0)
    """)
    for i in range(4): pro += [Ins(f"buffer_load_dwordx4 v[{64+4*i}:{67+4*i}], v34, s[92:95], 0 offen offset:{16*i}", tag="x")]
    pro += stamp()
    defer = []
    dst = (lambda: pro) if P["ectouch"] else (lambda: defer)
    if P["ctouch"]:
        pro += L(f"""
        s_getpc_b64 s[72:73]
        """) * 0
        dst().extend(L(f"""
        s_getpc_b64 s[84:85]
        L_pc:
        s_sub_u32 s84, s84, L_pc-{NAME}_kernel
        s_subb_u32 s85, s85, 0
        s_lshr_b32 s86, s2, 3
        s_lshl_b32 s86, s86, 2
        s_add_u32 s86, s86, s33
        s_and_b32 s86, s86, 31
        s_lshl_b32 s86, s86, 12
        v_lshl_add_u32 v124, v1, 6, s86
        s_mov_b32 s87, L_code_end-{NAME}_kernel-4
        v_min_u32 v124, s87, v124
        """) + [Ins("global_load_dword v124, v124, s[84:85]", tag="touch")])
    pro += L("s_mov_b32 s44, s60\ns_mov_b32 s45, s61\ns_mov_b32 s46, 256\ns_mov_b32 s47, 0x20000\ns_mov_b32 s60, s62\ns_mov_b32 s61, s63")
    pro += L("s_lshl_b32 s62, s34, 8")
    pro += wdma_addr(7, 8192, "s62", t0=36, st=63)
    pro += L(f"""
    s_lshr_b32 s62, s34, 1
    s_mul_i32 s62, s62, 448
    s_and_b32 s63, s34, 1
    s_lshl_b32 s70, s63, 8
    s_add_u32 s70, s70, s62           ; colP
    s_lshl_b32 s71, s63, 5
    s_add_u32 s71, s71, s62
    s_add_u32 s71, s71, 192           ; colX
    v_lshrrev_b32 v36, 5, v1
    v_lshlrev_b32 v36, 3, v36
    v_bfe_u32 v37, v1, 2, 3
    v_add_u32 v36, v36, v37
    s_lshl_b32 s62, s33, 4
    v_add_u32 v36, s62, v36
    s_movk_i32 s62, 7168
    v_mul_lo_u32 v11, v36, s62
    v_bfe_u32 v36, v1, 4, 1
    v_lshlrev_b32 v36, 1, v36
    v_and_b32 v37, 3, v1
    v_xor_b32 v36, v36, v37
    v_lshl_add_u32 v11, v36, 4, v11
    s_add_u32 s70, s70, 4096
    v_add_u32 v11, s70, v11
    v_subrev_u32 v12, 960, v11
    v_subrev_u32 v13, 1920, v11
    v_lshrrev_b32 v36, 1, v1
    s_and_b32 s63, s33, 1
    s_lshl_b32 s63, s63, 5
    v_add_u32 v36, s63, v36
    v_mul_lo_u32 v14, v36, s62
    v_and_b32 v37, 1, v1
    v_lshl_add_u32 v14, v37, 4, v14
    s_add_u32 s71, s71, 4096
    v_add_u32 v14, s71, v14
    s_lshl_b32 s5, s33, 12
    s_mul_i32 s6, s33, 3072
    s_lshl_b32 s7, s33, 10
    """)
    pro += srd(8, 52, 53, 8 << 20) + srd(12, 56, 57, (7 << 20) + 4096, -4096) + srd(16, 58, 59, (7 << 20) + 4096, -4096)
    pro += L("s_cmp_lt_u32 s33, 2\ns_cselect_b32 s20, s12, s16\ns_cselect_b32 s21, s13, s17") + L(f"s_mov_b32 s22, {(7<<20)+4096:#x}\ns_mov_b32 s23, 0x20000")
    pro += srd(76, 54, 55, 8 << 20) + srd(80, 72, 73, 7 << 20) + srd(96, 74, 75, 4 << 20)
    pro += L("s_mov_b32 s52, 0\ns_mov_b32 s53, 0\ns_mov_b32 s54, 0")
    pro += L(f"s_mov_b32 s90, {GST[0]}\ns_mov_b32 s88, {GST[1]}\ns_mov_b32 s89, {GST[2]}")
    def wloads(t):
        sb = GST[t % 3]
        reg = (sb, sb + STG, ("G", t)); tag = ("W", t)
        r = [Ins("s_add_u32 m0, s5, s90")]
        r += [Ins(f"buffer_load_dwordx4 v{7+z}, s[8:11], s52 offen offset:{z*1024} lds", tag=tag, wr=reg) for z in range(4)]
        r += [Ins("s_add_u32 s100, s6, s90"), Ins("s_add_u32 m0, s100, 16384")]
        r += [Ins(f"buffer_load_dwordx4 v{11+z}, s[12:15], s53 offen offset:{z*1024} lds", tag=tag, wr=reg) for z in range(3)]
        r += [Ins("s_add_u32 m0, s100, 28672")]
        r += [Ins(f"buffer_load_dwordx4 v{11+z}, s[16:19], s53 offen offset:{z*1024} lds", tag=tag, wr=reg) for z in range(3)]
        r += [Ins("s_add_u32 s100, s7, s90"), Ins("s_add_u32 m0, s100, 40960")]
        r += [Ins(f"buffer_load_dwordx4 v14, s[20:23], s53 offen lds", tag=tag, wr=reg)]
        r += [Ins("s_add_u32 s52, s52, 0x80000"), Ins("s_add_u32 s53, s53, 0x70000")]
        r += L("s_mov_b32 s100, s90\ns_mov_b32 s90, s88\ns_mov_b32 s88, s89\ns_mov_b32 s89, s100")
        return r
    def breg(t, s, mb):
        k = (s * 4 + mb) * 4
        return f"v[{64+k}:{67+k}]" if t % 2 == 0 else f"a[{224+k}:{227+k}]"
    def xloads(t):
        r = [Ins(f"buffer_load_dwordx4 {breg(t, s, mb)}, v{15+s}, s[24:27], s54 offen offset:{mb*1024}{SC}", tag=("X", t)) for s in range(2) for mb in range(4)]
        r += [Ins("s_add_u32 s54, s54, 0x2000")]
        return r
    wl0 = wloads(0); wl1 = wloads(1); late_w1 = []
    if P['order'] == 1: defer[:0] = wl0 + wl1
    elif P['order'] == 2: pro += wl0; defer[:0] = wl1
    elif P['order'] == 3: defer[:0] = wl0; late_w1 = wl1
    elif P['order'] == 4: pro += wl0; late_w1 = wl1
    elif P['order'] == 5: pro += wl0; defer[:0] = wl1
    else: pro += wl0 + wl1
    pro += L("""
    s_lshl_b32 s62, s2, 2
    s_add_u32 s62, s62, s33
    s_lshl_b32 s63, s62, 12
    v_lshlrev_b32 v31, 6, v1
    v_add_u32 v31, s63, v31
    s_lshl_b32 s63, s62, 10
    v_and_b32 v30, 15, v1
    v_lshlrev_b32 v30, 6, v30
    v_add_u32 v30, s63, v30
    """)
    if P["touch"] == 4:
        pro += L("s_mul_i32 s63, s62, 1280\nv_min_u32 v31, 9, v1\nv_lshlrev_b32 v31, 7, v31\nv_add_u32 v31, s63, v31")
    def touch(v, sr, off):
        return [Ins(f"s_mov_b32 s62, {off:#x}"), Ins(f"buffer_load_dword v127, v{v}, s[{sr}:{sr+3}], s62 offen", tag="touch")]
    if P["touch0"]:
        defer.extend(touch(30, 8, 128 * 8192) + touch(30, 12, 4096 + 128 * 7168) + touch(30, 16, 4096 + 128 * 7168))
    pro += srd(64, 60, 61, MB_REL + 32768, EX_OFF)
    pro += L(f"""
    s_lshl_b32 s62, s3, 7
    s_add_u32 s62, s62, {MB_REL:#x}
    v_and_b32 v36, 31, v1
    v_add_u32 v28, s62, v1
    s_lshl_b32 s62, s32, 12
    s_add_u32 s62, s62, s34
    s_add_u32 s62, s62, {MB_REL:#x}
    v_lshl_add_u32 v29, v36, 7, s62
    v_mov_b32 v37, 0x7fff0000
    v_lshrrev_b32 v38, 5, v1
    v_or_b32 v38, s33, v38
    v_cmp_eq_u32 vcc, 0, v38
    v_mov_b32 v126, 0
    s_nop 0
    v_cndmask_b32 v29, v37, v29, vcc
    s_cmp_eq_u32 s33, 0
    s_cselect_b32 s70, 0, 0x40000000
    v_or_b32 v38, s33, v1
    v_cmp_eq_u32 vcc, 0, v38
    v_mov_b32 v36, s3
    s_lshl_b32 s62, s32, 5
    v_cndmask_b32 v27, v37, v36, vcc
    v_and_b32 v26, 31, v1
    v_add_u32 v26, s62, v26
    """)
    if P.get("lnst"): pro += stamp()
    pro += L(f"s_mov_b32 s62, 0xffff0000") + [W(vm="x")]
    if P.get("lnst"): pro += stamp()
    for e in range(32):
        pro += L(f"v_lshlrev_b32 v{80+e}, 16, v{64+e//2}" if e % 2 == 0 else f"v_and_b32 v{80+e}, s62, v{64+e//2}")
    def red8(v):
        return L(f"""
        s_nop 1
        v_add_f32_dpp v{v}, v{v}, v{v} row_ror:8 row_mask:0xf bank_mask:0xf
        v_mov_b32 v40, v{v}
        s_nop 1
        v_permlane16_swap_b32 v{v}, v40
        v_add_f32 v{v}, v{v}, v40
        v_mov_b32 v40, v{v}
        s_nop 1
        v_permlane32_swap_b32 v{v}, v40
        v_add_f32 v{v}, v{v}, v40
        """)
    pro += L("v_add_f32 v36, v80, v81\nv_add_f32 v37, v82, v83")
    for e in range(4, 32, 2): pro += L(f"v_add_f32 v36, v36, v{80+e}\nv_add_f32 v37, v37, v{81+e}")
    pro += L("v_add_f32 v36, v36, v37") + red8(36) + L("v_mul_f32 v36, 0x3b800000, v36")
    pro += L("v_sub_f32 v38, v80, v36\nv_sub_f32 v39, v81, v36\nv_mul_f32 v37, v38, v38\nv_mul_f32 v41, v39, v39")
    for e in range(2, 32, 2): pro += L(f"v_sub_f32 v38, v{80+e}, v36\nv_sub_f32 v39, v{81+e}, v36\nv_fmac_f32 v37, v38, v38\nv_fmac_f32 v41, v39, v39")
    pro += L("v_add_f32 v37, v37, v41") + red8(37)
    pro += L(f"""
    v_lshlrev_b32 v38, 5, v32
    v_add_u32 v38, {LNLDS:#x}, v38
    s_lshl_b32 s63, s33, 3
    v_add_u32 v39, s63, v38
    ds_write_b64 v39, v[36:37]
    s_waitcnt lgkmcnt(0)
    s_barrier
    ds_read_b128 v[44:47], v38
    ds_read_b128 v[48:51], v38 offset:16
    v_lshrrev_b32 v42, 6, v33
    v_lshlrev_b32 v42, 17, v42
    v_lshl_add_u32 v42, v35, 12, v42
    v_bfe_u32 v43, v33, 4, 2
    v_lshl_add_u32 v42, v43, 10, v42
    v_and_b32 v43, 15, v33
    v_lshl_add_u32 v42, v43, 4, v42
    """)
    pro += srd(24, 60, 61, 4 << 20, XN_OFF)
    pro += L("""
    s_waitcnt lgkmcnt(0)
    v_add_f32 v36, v44, v46
    v_add_f32 v37, v48, v50
    v_add_f32 v36, v36, v37
    v_mul_f32 v36, 0.25, v36
    v_add_f32 v37, v45, v47
    v_add_f32 v38, v49, v51
    v_add_f32 v37, v37, v38
    v_sub_f32 v44, v44, v36
    v_sub_f32 v46, v46, v36
    v_sub_f32 v48, v48, v36
    v_sub_f32 v50, v50, v36
    v_mul_f32 v38, v44, v44
    v_fmac_f32 v38, v46, v46
    v_fmac_f32 v38, v48, v48
    v_fmac_f32 v38, v50, v50
    v_fmac_f32 v37, 0x43800000, v38
    v_mul_f32 v37, 0x3a800000, v37
    v_cvt_pk_bf16_f32 v38, v36, v37
    v_lshlrev_b32 v36, 16, v38
    v_and_b32 v37, s62, v38
    v_add_f32 v37, 0x3727c5ac, v37
    v_cvt_pk_bf16_f32 v37, v37, v37
    v_and_b32 v37, s62, v37
    v_sqrt_f32 v37, v37
    s_nop 0
    v_cvt_pk_bf16_f32 v37, v37, v37
    v_and_b32 v37, s62, v37
    v_rcp_f32 v37, v37
    """)
    for e in range(32): pro += L(f"v_sub_f32 v{80+e}, v{80+e}, v36")
    for q in range(16): pro += L(f"v_cvt_pk_bf16_f32 v{64+q}, v{80+2*q}, v{81+2*q}")
    for e in range(32):
        pro += L(f"v_lshlrev_b32 v{80+e}, 16, v{64+e//2}" if e % 2 == 0 else f"v_and_b32 v{80+e}, s62, v{64+e//2}")
    for e in range(32): pro += L(f"v_mul_f32 v{80+e}, v{80+e}, v37")
    for g in range(4):
        for h, q in enumerate((2 * g, 2 * g + 1, 8 + 2 * g, 9 + 2 * g)):
            pro += L(f"v_cvt_pk_bf16_f32 v{64+g*4+h}, v{80+2*q}, v{81+2*q}")
        pro += [Ins(f"buffer_store_dwordx4 v[{64+g*4}:{67+g*4}], v42, s[24:27], 0 offen offset:{g*256}{SC}", tag="xn")]
    pro += L(f"buffer_store_byte v126, v28, s[64:67], s70 offen{SC}")
    if P.get("lnst"): pro += stamp()
    pro += L("s_nop 0\nv_mov_b32 v126, 1")
    pro += tr_addr(96, 0, True, 1024, 36) + tr_addr(97, 1, True, 1024, 36) + tr_addr(98, 0, False, 512, 36) + tr_addr(99, 1, False, 512, 36)
    pro += L("v_lshlrev_b32 v100, 3, v1")
    for i in range(5): pro += L(f"v_mov_b32 v{2+i}, v{96+i}")
    if P.get("lnst"): pro += [W(vm="all")] + stamp()
    if P["sync"] == 0:
        pro += [W(vm="all"), Ins("s_barrier"), Ins(f"buffer_store_byte v126, v27, s[44:47], 0 offen{SC}", tag="flag")]
    else:
        pro += L("v_and_b32 v27, 0xffffffe0, v27\nv_mov_b32 v125, 1")
        pro += [W(vm="all"), Ins("s_barrier"), Ins(f"buffer_atomic_add v125, v27, s[44:47], 0 offen sc0 sc1", tag="flag")]
    pro += stamp()
    if P["sync"]:
        pro += [W(vm="flag")] + L(f"""
        v_readfirstlane_b32 s70, v125
        s_sub_u32 s63, 48, s34
        s_and_b32 s70, s70, 31
        s_cmp_eq_u32 s70, 31
        s_cselect_b32 s62, s63, 0x40000000
        buffer_store_byte v126, v29, s[64:67], s62 offen{SC}
        """)
    if P["order"] == 5:
        def cp(lst, m):
            o = []
            for x in fix_m0(lst):
                y = x.copy(); y.text = y.text.replace("L_pc", "L_pc" + m) + ("" if y.label else " ; opt" + m); o.append(y)
            return o
        pro += L("s_cmp_eq_u32 s33, 0\ns_cbranch_scc1 L_skipA") + cp(defer, "A") + L("L_skipA:")
        late_w1 = L("s_cmp_lg_u32 s33, 0\ns_cbranch_scc1 L_skipB") + cp(defer, "B") + L("L_skipB:")
    else: pro += defer
    pro += L(f"""
    s_lshl_b32 s62, s32, 2
    s_add_u32 s62, s62, s33
    s_lshl_b32 s63, s62, 17
    v_lshlrev_b32 v25, 4, v1
    v_add_u32 v15, s63, v25
    v_add_u32 v16, 0x1000, v15
    s_lshl_b32 s62, s35, 19
    s_add_u32 s62, s62, {1536*256:#x}
    s_add_u32 s28, s48, s62
    s_addc_u32 s29, s49, 0
    s_mov_b32 s30, 0x20000
    s_mov_b32 s31, 0x20000
    s_add_u32 s36, s50, s62
    s_addc_u32 s37, s51, 0
    s_mov_b32 s38, 0x20000
    s_mov_b32 s39, 0x20000
    v_lshrrev_b32 v36, 4, v1
    v_and_b32 v37, 15, v1
    v_lshl_add_u32 v38, v36, 8, s5
    """)
    pro += srd(40, 60, 61, 16 << 20, O_OFF)
    for z in range(4):
        pro += L(f"v_add_u32 v39, {4*z}, v36\nv_xor_b32 v39, v39, v37\nv_lshl_add_u32 v{17+z}, v39, 4, v38")
    pro += wdma_addr(21, 256, "0", t0=40, st=63)
    pro += L("s_mov_b32 s55, 0\ns_mov_b32 s56, 0\ns_mov_b32 s57, -1\ns_mov_b32 s91, 6\ns_mov_b32 s58, 0")
    for i in range(224): pro += L(f"v_accvgpr_write_b32 a{i}, 0")
    for i in range(128, 256, 2): pro += L(f"v_mov_b64 v[{i}:{i+1}], 0")
    if P["sync"] == 0:
        pro += [W(vm=("W", 0))]
        pro += L(f"""
        s_cmp_lg_u32 s33, 0
        s_cbranch_scc1 L_x_go
        s_mov_b32 s70, 0x40000
        s_sleep {P['slp0']}
        L_x_poll:
        buffer_load_ubyte v125, v26, s[44:47], 0 offen{SC} ; w0only
        s_waitcnt vmcnt(0) ; w0only
        v_cmp_gt_u32 vcc, 1, v125
        s_sub_u32 s70, s70, 1
        s_cbranch_scc1 L_x_go
        s_cbranch_vccz L_x_go
        s_sleep {P['slp']}
        s_branch L_x_poll
        L_x_go:
        s_barrier
        """)
    else:
        if P["pad"]:
            pro += L("""
            s_cmp_eq_u32 s33, 0
            s_cbranch_scc1 L_scout_ret
            s_mov_b64 exec, 0
            s_cmp_eq_u32 s33, 1
            s_cbranch_scc1 L_pad1_0
            s_cmp_eq_u32 s33, 2
            s_cbranch_scc1 L_pad2_0
            s_branch L_pad3_0
            L_scout_ret:
            s_mov_b64 exec, -1
            """)
        pro += [W(vm=("W", 0))]
        pro += L(f"""
        s_cmp_lg_u32 s33, 0
        s_cbranch_scc1 L_x_go
        s_mov_b32 s70, 0x40000
        L_x_poll:
        buffer_load_ubyte v125, v28, s[64:67], 0 offen{SC} ; w0only
        s_waitcnt vmcnt(0) ; w0only
        v_readlane_b32 s62, v125, 48
        s_sub_u32 s70, s70, 1
        s_cbranch_scc1 L_x_go
        s_cmp_eq_u32 s62, 0
        s_cbranch_scc1 L_x_poll
        L_x_go:
        s_barrier
        """)
    pro += stamp() + (xloads(0) + late_w1 + xloads(1) if not P.get('o6') else xloads(0) + xloads(1) + [W(vm=('X', 0))] + late_w1)
    pro += srd(44, 60, 61, 14 << 20, H_OFF)
    pro += stamp()
    def kvloads(tau, dyn):
        r = []
        for v in range(2):
            sb = PAIR[tau % 5] + v * 16384; i = 2 * tau + v; reg = (sb, sb + 16384, ("KV", i)); tag = ("KV", i)
            r.append(Ins(f"s_add_u32 m0, s89, {v*16384}" if dyn else f"s_add_u32 m0, s5, {sb:#x}"))
            for z in range(4):
                r.append(Ins(f"buffer_load_dwordx4 v{(21 if v else 17)+z}, s[{36 if v else 28}:{39 if v else 31}], s55 offen offset:{z*1024} lds", tag=tag, wr=reg))
        r.append(Ins("s_add_u32 s55, s55, 0x4000"))
        return r
    blocks = []
    for p in range(3):
        for e in range(2):
            for m in range(2):
                bi = (p * 2 + e) * 2 + m
                blocks.append((4 + e, (lambda s, r, p=p, m=m: 16384 + m * 12288 + (2 * s + r) * 3072 + p * 1024), "a", bi * 16))
    for m in range(2):
        blocks.append((6, (lambda s, r, m=m: 40960 + m * 2048 + s * 1024 + r * 512), "a", (12 + m) * 16))
    for nb in range(8):
        b32, e = nb >> 1, nb & 1
        blocks.append((2 + e, (lambda s, r, b32=b32: (b32 >> 1) * 8192 + (b32 & 1) * 512 + s * 4096 + r * 2048), "v", 128 + nb * 16))
    NB = len(blocks); T = 16; TM = NB * 8
    gg = [(t, nb) for t in range(14) for nb in range(NB)] + [(14, nb) for nb in range(14)] + [(15, nb) for nb in range(14)] + [(14, nb) for nb in range(14, 22)] + [(15, nb) for nb in range(14, 22)]
    gidx = {k: i for i, k in enumerate(gg)}
    sc = Sched(2)
    for G, (t, nb) in enumerate(gg):
        va, imm, ak, ab = blocks[nb]; fb = 32 + (G % 4) * 8
        for mb in range(4):
            for s in range(2):
                ac = f"{ak}[{ab+mb*4}:{ab+mb*4+3}]"
                sc.mfma(f"{MF} {ac}, v[{fb+s*4}:{fb+s*4+3}], {breg(t, s, mb)}, {ac}")
    def rd(G):
        t, nb = gg[G]; va, imm, _, _ = blocks[nb]; fb = 32 + (G % 4) * 8; sb = GST[t % 3]
        return [Ins(f"ds_read_b64_tr_b16 v[{fb+s*4+r*2}:{fb+s*4+r*2+1}], v{va} offset:{imm(s, r)}", tag=("P", G), rd=(sb, sb + STG, ("G", t))) for s in range(2) for r in range(2)]
    LB = P['lb']
    for it in range(8):
        g = 2 * it * TM + LB
        if it == 0: sc.used[g] += 2
        else: sc.fixed_front(g, L("s_sub_u32 s91, s91, 1\ns_cbranch_scc0 L_G"))
        sc.fixed_front(g, Ins("; @IT G" if it < 7 else "; @ENDIT G"))
    for t in range(0, T):
        g0 = gidx[(t, 0)] * 8
        if t >= 1: sc.fixed_front(g0 - 8 * LA, [W(vm=("W", t)), Ins("s_barrier")])
        sc.fixed_back(g0, W(vm=("X", t)))
    for G in range(len(gg)): sc.fixed_back(G * 8, W(lg=("P", G)))
    d15 = GST[0] - GST[2]
    for G, (t, nb) in enumerate(gg):
        upd = []
        if nb == 0 and 0 < t < 15: upd = [f"v_add_u32 v{va}, s88, v{94+va}" for va in range(2, 7)]
        if (t, nb) == (15, 0): upd = [f"v_subrev_u32 v{va}, {-d15:#x}, v{va}" for va in (4, 5, 6)]
        if (t, nb) == (15, 14): upd = [f"v_subrev_u32 v{va}, {-d15:#x}, v{va}" for va in (2, 3)]
        for u_ in upd: sc.flow("lds", 8 * (G - LA) - 3, Ins(u_), deadline=8 * (G - LA))
        for i, x in enumerate(rd(G)): sc.flow("lds", 8 * (G - LA) + i, x, deadline=8 * (G - 1) + 2)
    for t in range(1, 15): sc.fixed_front(t * TM + 2, Ins("s_barrier ; FB"))
    def vflow(S, g, its, sp, dl=None):
        for x in its:
            if x.kind == "vmem": x.cost = 2
            g = S.flow("vm", g if dl is None else min(g, dl), x, mingap=(1 if x.kind == "vmem" and S.qpos.get("vm") != dl else 0), deadline=dl) + (sp if x.kind == "vmem" else 0)
        return g
    for t in range(0, 15):
        g = t * TM + 1
        if t == 0:
            its = []
            if P["tkv"]: its += touch(30, 28, 0) + touch(30, 36, 0)
            if P["tg"]:
                its += touch(31, 8, 256 * 8192) + touch(31, 12, 4096 + 256 * 7168) + touch(31, 16, 4096 + 256 * 7168)
                its += touch(31, 8, 512 * 8192) + touch(31, 12, 4096 + (3 << 20)) + touch(31, 16, 4096 + (3 << 20))
            g = vflow(sc, g, its, P["xsp"] - 1)
        else:
            ex = []
            if P["touch"] == 4 and t % 2 == 1:
                ex = [Ins("buffer_load_dword v127, v31, s[80:83], s58 offen", tag="touch"), Ins("buffer_load_dword v127, v31, s[76:79], s58 offen", tag="touch"), Ins(f"s_add_u32 s58, s58, {1024*1280:#x}")]
            g = vflow(sc, g, xloads(t + 1) + ex, P["xsp"])
        assert g < t * TM + LB + P["xsp"] or t % 2 == 1, g - t * TM
        g = max(g, t * TM + LB + 1)
        items = wloads(t + 2) if t + 2 < T else []
        if t == 14:
            items += kvloads(0, False) + kvloads(1, False)
            if P["touch"] == 1: items += touch(31, 80, 0) + touch(31, 80, 3 << 20) + touch(31, 76, 0) + touch(31, 76, 4 << 20)
        g = vflow(sc, g, items, P["wsp"] if t < 14 else 3)
        assert g < (t + 1) * TM - 8 * LA - 4 + P["wsp"] or t >= 14, g - t * TM
    g0 = 14 * TM + LB + 1
    hs = L(f"""
    s_lshl_b32 s62, s32, 2
    s_add_u32 s62, s62, s33           ; mb64
    s_mul_i32 s63, s62, {112*4096}
    s_lshr_b32 s3, s34, 1
    s_mul_i32 s3, s3, 7
    s_and_b32 s4, s34, 1
    s_lshl_b32 s52, s4, 2
    s_add_u32 s52, s52, s3
    s_lshl_b32 s52, s52, 12
    s_add_u32 s52, s52, s63           ; P base
    s_add_u32 s3, s3, 3
    s_lshl_b32 s3, s3, 12
    s_add_u32 s3, s3, s63
    s_lshl_b32 s4, s4, 3
    s_add_u32 s3, s3, s4
    s_add_u32 s53, s52, 4096
    s_add_u32 s54, s52, 8192
    s_mov_b32 s72, s63
    s_lshl_b32 s75, s62, 19
    s_mov_b32 s70, {QSCALE:#x}
    s_mov_b32 s71, s70
    """)
    for x in hs: sc.flow("hd", sc.qpos["vm"] + 1, x)
    k = 0
    for p in range(4):
        ne = 2 if p < 3 else 1
        for mb in range(4):
            tb = 96; ob = 112 + (k % 3) * 4; k += 1
            last = gidx[(15, 4 * p + 3 if p < 3 else 13)] * 8 + mb * 2 + 1
            g = last + 6
            for e in range(ne):
                bi = (p * 2 + e) * 2 if p < 3 else 12
                for i in range(4):
                    sc.flow("hd", g, Ins(f"v_accvgpr_read_b32 v{tb+e*4+i}, a{bi*16+mb*4+i}")); sc.flow("hd", g, Ins(f"v_accvgpr_read_b32 v{tb+8+e*4+i}, a{(bi+1)*16+mb*4+i}"))
            for q in range(4 * ne): sc.flow("hd", g, Ins(f"v_mul_f32 v{tb+q}, v{tb+q}, v{tb+8+q}"))
            for q in range(2 * ne): sc.flow("hd", g, Ins(f"v_cvt_pk_bf16_f32 v{ob+q}, v{tb+2*q}, v{tb+2*q+1}"))
            if p < 3: x = Ins(f"buffer_store_dwordx4 v[{ob}:{ob+3}], v25, s[44:47], s{52+p} offen offset:{mb*1024}{SC}", tag="Hst")
            else: x = Ins(f"buffer_store_dwordx2 v[{ob}:{ob+1}], v25, s[44:47], s3 offen offset:{mb*1024}{SC}", tag="Hst")
            sc.flow("hd", g, x)
    def qfr(qb, be): return 128 + 32 * be + 4 * qb
    for be in range(4):
        g = gidx[(15, 14 + 2 * be + 1)] * 8 + 7 + 6
        for qb in range(4):
            a = qfr(qb, be); b = a + 16
            for r in (a, a + 1, a + 2, a + 3, b, b + 1, b + 2, b + 3): sc.flow("qp", g, Ins(f"v_mul_f32 v{r}, s70, v{r}"))
            for h, r in enumerate((a, a + 2, b, b + 2)): sc.flow("qp", g, Ins(f"v_cvt_pk_bf16_f32 v{a+h}, v{r}, v{r+1}"))
        sw_ = L("s_mov_b64 exec, s[56:57]") + sum([L(f"v_swap_b32 v{qfr(qb, be)}, v{qfr(qb, be)+2}\nv_swap_b32 v{qfr(qb, be)+1}, v{qfr(qb, be)+3}") for qb in range(4)], []) + L("s_mov_b64 exec, -1")
        sc.flowg("qp", len(sc.mf), sw_)
    tail = sc.mid[len(sc.mf)]; nt = []
    i = 0
    while i < len(tail):
        x = tail[i]
        if i + 1 < len(tail) and x.text.startswith("v_mul_f32") and tail[i + 1].text.startswith("v_mul_f32"):
            o1 = [o.strip() for o in x.text[10:].split(",")]; o2 = [o.strip() for o in tail[i + 1].text[10:].split(",")]
            r = int(o1[0][1:])
            if r % 2 == 0 and int(o2[0][1:]) == r + 1:
                if o1[1] == "s70": nt.append(Ins(f"v_pk_mul_f32 v[{r}:{r+1}], v[{r}:{r+1}], s[70:71]"))
                else:
                    q = int(o1[2][1:]); nt.append(Ins(f"v_pk_mul_f32 v[{r}:{r+1}], v[{r}:{r+1}], v[{q}:{q+1}]"))
                i += 2; continue
        nt.append(x); i += 1
    print("G", sc.stats()[:50], "exposed tail instrs", len(nt))
    sc.mid[len(sc.mf)] = stamp() + L("s_nop 7") + nt
    G_ = sc.emit()
    if STAMP and P.get("gst"):
        i = [k for k, x in enumerate(G_) if x.text == "; @IT G"][0]
        G_ = G_[:i] + stamp() + G_[i:]
        i = [k for k, x in enumerate(G_) if x.text == "; @ENDIT G"][0] + 1
        G_ = G_[:i] + stamp() + G_[i:]
    mid = L("""
    v_and_b32 v116, 3, v1
    v_cmp_eq_u32 vcc, 0, v116
    v_mov_b32 v117, 0x3f803f80
    v_lshrrev_b32 v118, 4, v1
    v_cndmask_b32 v112, 0, v117, vcc
    v_cndmask_b32 v113, 0, v117, vcc
    v_cndmask_b32 v114, 0, v117, vcc
    v_cndmask_b32 v115, 0, v117, vcc
    v_and_b32 v119, 15, v1
    """)
    for b in range(4):
        mid += L(f"v_add_u32 v120, {4*b}, v118\nv_xor_b32 v120, v120, v119\nv_lshlrev_b32 v120, 4, v120\nv_lshl_add_u32 v{11+b}, v119, 8, v120\nv_add_u32 v{11+b}, {PAIR[0]:#x}, v{11+b}")
    mid += L(f"s_mov_b32 s100, 0xffff8000\ns_mov_b32 s101, 0x20000\ns_add_u32 s4, s5, {PAIR[0]:#x}")
    mid += stamp()
    late = tr_addr(15, 0, False, 1024, 120) + tr_addr(16, 1, False, 1024, 120)
    late += L(f"v_add_u32 v15, {PAIR[0]+16384+32768:#x}, v15\nv_add_u32 v16, {PAIR[0]+16384+32768:#x}, v16")
    late2 = L(f"""
    v_add_u32 v4, 0x10000, v2
    v_add_u32 v5, 0x10000, v3
    v_add_u32 v6, 0x20000, v2
    v_add_u32 v30, 0x20000, v3
    s_lshr_b32 s48, s34, 3            ; q
    s_and_b32 s49, s34, 7
    s_lshl_b32 s49, s49, 8            ; ct bytes
    s_mul_i32 s71, s48, {896*2048}
    s_mul_i32 s73, s48, {28*4096}
    s_add_u32 s72, s72, s73
    s_lshl_b32 s74, s48, 21
    s_lshl_b32 s73, s34, 14
    s_add_u32 s53, s75, s73           ; O store base
    s_lshl_b32 s73, s48, 17
    s_add_u32 s75, s75, s73
    v_add_u32 v26, 0x1000, v25
    s_mov_b32 s88, 3
    s_mov_b32 s91, 4
    """) + wdma_addr(7, 2048, "0", t0=120, st=63) + L("s_lshl_b32 s63, s48, 6")
    for z in range(4): late2 += L(f"v_xor_b32 v{7+z}, s63, v{7+z}\nv_add_u32 v{7+z}, s49, v{7+z}")
    at = Sched(2)
    qk0 = {}; pv0 = {}
    KR = 11; VR = 15
    def sbl(u, qb, kb): return 144 + 64 * (u % 2) + 32 * kb + 4 * qb
    def kfb(u, kb, be):
        f = (144 if u % 2 else 64) + (kb * 4 + be) * 4
        return f"{'a' if u % 2 else 'v'}[{f}:{f+3}]"
    def qk_list(u, first, kf):
        r = []
        for qb in range(4):
            for kb in range(2):
                d = sbl(u, qb, kb)
                for be in range(4):
                    c = f"v[{d}:{d+3}]" if be else ("0" if first else f"v[{96+qb*4}:{99+qb*4}]")
                    q = qfr(qb, be)
                    r.append(f"{MF} v[{d}:{d+3}], {kf(kb, be)}, v[{q}:{q+3}], {c}")
        return r
    def dborder(u): return [8, 0, 1, 2, 3, 4, 5, 6, 7] if u == 15 else list(range(9))
    def pv_list(u, vf, first=False):
        r = []
        for db in dborder(u):
            for qb in range(4):
                ac = (db * 4 + qb) * 4; pf = sbl(u, qb, 0)
                a = vf(db) if db < 8 else "v[112:115]"
                r.append(f"{MF} a[{ac}:{ac+3}], {a}, v[{pf}:{pf+3}], {'0' if first else f'a[{ac}:{ac+3}]'}")
        return r
    def QK(u):
        qk0[u] = len(at.mf)
        for m in qk_list(u, u == 0, lambda kb, be: kfb(u, kb, be)): at.mfma(m)
    def PV(u):
        pv0[u] = len(at.mf)
        for m in pv_list(u, lambda db: f"v[{32+db*4}:{35+db*4}]", u == 0): at.mfma(m)
    QK(0); QK(1)
    for u in range(14): PV(u); QK(u + 2)
    PV(14); PV(15)
    NU = 16
    def pvpos(u, db): return pv0[u] + dborder(u).index(db) * 4
    kb0 = len(at.mf)
    NT = 30; NN = 25; NBT = 14
    grp = [(n, nb) for n in range(NN) for nb in range(8)] + [(n, nb) for n in range(NN, NT - 2) for nb in range(2, 8)] + [(n, 2 * lam + e) for lam in range(1, 4) for n in (NT - 2, NT - 1) for e in range(2)] + [(n, nb) for n in range(NN, NT) for nb in range(2)]
    g2 = {k: i for i, k in enumerate(grp)}
    def acc2(n, nb, mb):
        r = (nb * 4 + mb) * 4
        return f"v[{128+r}:{131+r}]" if n < NBT else f"a[{r}:{r+3}]"
    for G, (n, nb) in enumerate(grp):
        fb = 64 + (G % 4) * 8
        for mb in range(4):
            for s in range(2):
                ac = acc2(n, nb, mb)
                at.mfma(f"{MF} {ac}, v[{fb+s*4}:{fb+s*4+3}], {b2reg(n, s, mb)}, {'0' if (n in (0, NBT) and s == 0) else ac}")
    def gp(G): return kb0 + 8 * G
    def t0(n): return gp(g2[(n, 0 if n < NN else 2)])
    VLA = 12; ALB = 4
    CHK = pv0[15] + 12
    for it in range(1, 7):
        g = pv0[2 * it] + ALB
        if it == 1: at.used[g] += 2
        else: at.fixed_front(g, L("s_sub_u32 s91, s91, 1\ns_cbranch_scc0 L_A"))
        at.fixed_front(g, Ins("; @IT A" if it < 6 else "; @ENDIT A"))
    at.fixed_front(-10, [W(vm=("KV", 0)), Ins("s_barrier")])
    bpos = {}
    for tau in range(8):
        bpos[tau] = pv0[2 * tau] - VLA - 1
        at.fixed_front(bpos[tau], [W(vm=("KV", min(2 * tau + 2, 15))), Ins("s_barrier")])
    b2 = {}
    for n in range(NT):
        b2[n] = t0(n) - 8 * LA
        at.fixed_front(b2[n], [W(vm=("TW", n)), Ins("s_barrier")])
        at.fixed_back(t0(n), W(vm=("TB", n)))
    for G in range(len(grp)): at.fixed_back(gp(G), W(lg=("P2", G)))
    assert b2[0] > CHK
    for u in range(NU):
        at.fixed_back(qk0[u], W(lg=("K", u, 0)))
        at.fixed_back(qk0[u] + 4, W(lg=("K", u, 1)))
        for db in range(0, 8, 2): at.fixed_back(pvpos(u, db), W(lg=("V", u, db + 1)))
    chk = []
    for qb in range(4): chk += L(f"v_accvgpr_read_b32 v{116+qb}, a{128+qb*4}")
    chk += L(f"""
    v_max3_f32 v124, v116, v117, v118
    s_mov_b32 s62, {P['thr']:#x}
    v_max_f32 v124, v124, v119
    v_cmp_nge_f32 vcc, s62, v124
    s_cbranch_vccnz L_fallback
    L_fb_ret:
    """)
    for qb in range(4): chk += L(f"v_rcp_f32 v{120+qb}, v{116+qb}")
    at.fixed_front(CHK, chk)
    for x in late: at.flow("late", -8, x, deadline=20)
    ev = []; evk = []
    def kreads(u):
        tau = u // 2; sb = PAIR[tau % 5]; r = []
        if u % 2 == 0 and u > 0:
            r.append(L("s_cmp_eq_u32 s88, 2\ns_cselect_b32 s90, s101, s100") if 4 <= u <= 12 else L("s_mov_b32 s90, s100"))
            r += [Ins(f"v_add_u32 v{x}, s90, v{x}") for x in range(KR, KR + 4)]
        for kb in range(2):
            for be in range(4):
                r.append(Ins(f"ds_read_b128 {kfb(u, kb, be)}, v{KR+be} offset:{((u%2)*2+kb)*4096}", tag=("K", u, kb), rd=(sb, sb + 16384, ("KV", 2 * tau))))
        return r
    def vreads(u, db):
        tau = u // 2; sb = PAIR[tau % 5] + 16384; r = []
        if u % 2 == 0 and db == 0:
            r.append(L("s_cmp_eq_u32 s88, 2\ns_cselect_b32 s59, s101, s100") if 4 <= u <= 12 else L("s_mov_b32 s59, s100"))
            r += [Ins(f"v_add_u32 v{x}, s59, v{x}") for x in (VR, VR + 1)]
        b32, e = db >> 1, db & 1; f = 32 + db * 4
        for rr in range(2):
            r.append(Ins(f"ds_read_b64_tr_b16 v[{f+rr*2}:{f+rr*2+1}], v{VR+e} offset:{(b32>>1)*8192+(b32&1)*512+(u%2)*4096+rr*2048}", tag=("V", u, db), rd=(sb, sb + 16384, ("KV", 2 * tau + 1))))
        return r
    for i, x in enumerate(kreads(0)): evk.append((-9 + i // 2, 0, x))
    for i, x in enumerate(kreads(1)): evk.append((4 + 2 * (i // 2 * 2), qk0[1] - 4, x))
    for u in range(NU):
        for db in range(8):
            lo = pvpos(u, db) - VLA
            if u >= 1: lo = max(lo, pvpos(u - 1, db) + 4)
            for x in vreads(u, db): ev.append((lo, pvpos(u, db & ~1) - 4, x))
        if u + 2 < NU:
            kr = kreads(u + 2); off = 1 if len(kr) > 8 else 0
            for i, x in enumerate(kr): evk.append((pv0[u] + ALB + 3 + (4 if u % 2 else 3) * ((i + off) // 2), qk0[u + 2] - 4, x))
    def rd2(G):
        n, nb = grp[G]; sb = K2SLOT[n % 10]; fb = 64 + (G % 4) * 8
        b32, e = nb >> 1, nb & 1
        va = [(2, 3), (4, 5), (6, 30)][sb >> 16][e]
        return [Ins(f"ds_read_b64_tr_b16 v[{fb+s*4+rr*2}:{fb+s*4+rr*2+1}], v{va} offset:{(sb & 0xffff)+(b32>>1)*8192+(b32&1)*512+s*4096+rr*2048}", tag=("P2", G), rd=(sb, sb + 16384, ("T", n))) for s in range(2) for rr in range(2)]
    for G in range(len(grp)):
        for i, x in enumerate(rd2(G)): ev.append((gp(G - LA) + i, gp(G - 1) + 2, x))
    ev.sort(key=lambda e: e[0])
    for it in range(1, 6):
        at.fixed_front(pv0[2 * it] + ALB + 1, L("s_add_u32 s88, s88, 1\ns_cmp_eq_u32 s88, 5\ns_cselect_b32 s88, 0, s88"))
        at.fixed_front(pv0[2 * it] + ALB + 2, L("s_lshl_b32 s89, s88, 15\ns_sub_u32 s89, s4, s89"))
    def maxseq(a, b, t0):
        return [f"v_max3_f32 v{t0}, v{a}, v{a+1}, v{a+2}", f"v_max3_f32 v{t0+1}, v{a+3}, v{b}, v{b+1}", f"v_max3_f32 v{t0}, v{t0}, v{b+2}, v{b+3}", f"v_max_f32 v{t0}, v{t0}, v{t0+1}"]
    def xlane(t0, t1):
        return [f"v_mov_b32 v{t1}, v{t0}", "s_nop 1", f"v_permlane16_swap_b32 v{t0}, v{t1}", f"v_max_f32 v{t0}, v{t0}, v{t1}",
                f"v_mov_b32 v{t1}, v{t0}", "s_nop 1", f"v_permlane32_swap_b32 v{t0}, v{t1}", f"v_max_f32 v{t0}, v{t0}, v{t1}"]
    for q_, lst in (("lds", ev), ("ldsk", evk)):
        for g, dl, x in lst:
            if isinstance(x, list): at.flowg(q_, g, x, deadline=dl, strict=True)
            else: at.flow(q_, g, x, deadline=dl)
    nspin = [0]
    def flagload(tag): return Ins(f"buffer_load_ubyte v125, v28, s[64:67], 0 offen{SC}", tag=tag)
    def fineload(tag): return Ins(f"buffer_load_dword v125, v22, s[64:67], 0 offen{SC}", tag=tag)
    def check_(tag, test, reload):
        k = nspin[0]; nspin[0] += 1
        ool.extend(L(f"L_spin{k}:\ns_mov_b32 s70, 0x40000\nL_spin{k}_l:\n{reload}\ns_waitcnt vmcnt(0)\ns_sub_u32 s70, s70, 1\ns_cbranch_scc1 L_spin{k}_ret\n{test}\ns_cbranch_scc0 L_spin{k}_ret\ns_sleep 1\ns_branch L_spin{k}_l"))
        return [W(vm=tag)] + L(f"{test}\ns_cbranch_scc1 L_spin{k}\nL_spin{k}_ret:")
    def flagcheck(tag, need): return check_(tag, f"v_cmp_gt_u32 vcc, {need}, v125\ns_and_b32 s62, vcc_lo, -1", flagload(0).text)
    def finecheck(tag, mask): return check_(tag, f"v_readfirstlane_b32 s62, v125\ns_and_b32 s62, s62, {mask:#x}\ns_cmp_lg_u32 s62, {mask:#x}", fineload(0).text)
    def pubstore(): return Ins(f"buffer_store_byte v126, v29, s[64:67], 0 offen{SC}", tag="flag")
    def finepub(lam): return Ins(f"buffer_store_byte v126, v23, s[64:67], s{15+lam} offen{SC}", tag="flag")
    def tw(n):
        sb = K2SLOT[n % 10]; sr = 80 if n < NBT else 76
        r = L("s_mov_b32 s71, s74") if n == NBT else []
        r += [Ins(f"s_add_u32 m0, s5, {sb:#x}")]
        r += [Ins(f"buffer_load_dwordx4 v{7+z}, s[{sr}:{sr+3}], s71 offen offset:{z*1024} lds", tag=("TW", n), wr=(sb, sb + 16384, ("T", n))) for z in range(4)]
        return r + L("s_add_u32 s71, s71, 0x20000")
    def tb(n):
        sr = 44 if n < NBT else 40
        r = L("s_mov_b32 s72, s75") if n == NBT else []
        r += [Ins(f"buffer_load_dwordx4 {b2reg(n, s, mb)}, v{25+s}, s[{sr}:{sr+3}], s72 offen offset:{mb*1024}{SC}", tag=("TB", n)) for s in range(2) for mb in range(4)]
        return r + L("s_add_u32 s72, s72, 0x2000")
    def exch(br, lam, store, base, tag):
        r = L(f"s_mov_b32 s58, {br*(16<<20)+lam*16384:#x}")
        for i in range(4):
            rr = f"v[{base+4*i}:{base+4*i+3}]"
            r.append(Ins(f"buffer_store_dwordx4 {rr}, v17, s[64:67], s58 offen offset:{i*1024}{SC}" if store else f"buffer_load_dwordx4 {rr}, v{17+lam}, s[64:67], s58 offen offset:{i*1024}{SC}", tag=tag))
        return r
    vq = []
    vq.append((-9, kvloads(2, False), 3, 48))
    at.front[bpos[0]].insert(0, W(vm="Hst")); at.used[bpos[0]] += 1
    vq.append((bpos[0] + 1, [ASSERT("Hst"), Ins("v_mov_b32 v126, 2"), pubstore()], 0, bpos[0] + 6))
    vq.append((pv0[0] + ALB + 3, kvloads(3, False), 13, pv0[0] + ALB + 125))
    for it in range(1, 6): vq.append((pv0[2 * it] + ALB + 3, kvloads(it + 3, True), 13, pv0[2 * it] + ALB + 125))
    e0 = pv0[12] + ALB
    if P.get("ct2"):
        c2 = L(f"""
        s_getpc_b64 s[84:85]
        L_pc2:
        s_sub_u32 s84, s84, L_pc2-{NAME}_kernel
        s_subb_u32 s85, s85, 0
        """)
        c3 = L(f"""
        s_lshr_b32 s86, s2, 3
        s_lshl_b32 s86, s86, 2
        s_add_u32 s86, s86, s33
        s_and_b32 s86, s86, 31
        s_lshl_b32 s86, s86, 12
        v_lshl_add_u32 v127, v1, 6, s86
        s_mov_b32 s87, L_code_end-{NAME}_kernel-4
        v_min_u32 v127, s87, v127
        """) + [Ins("global_load_dword v127, v127, s[84:85]", tag="touch")]
        gg_ = pv0[0] + ALB + 130 if P["ct2"] == 1 else e0
        vq.append((gg_, [c2] + c3, 0, gg_ + 1))
    vq.append((e0 + 1, [flagload("fH")] + tw(0) + tw(1), 4, e0 + 45))
    vq.append((e0 + 46, [flagcheck("fH", 2)] + tb(0) + tw(2), 3, e0 + 100))
    vq.append((e0 + 101, tb(1) + tw(3), 3, pv0[14] + 20))
    NPW = P["npw"]
    vq.append((pv0[14] + 21, sum([tw(n) for n in range(4, NPW)], []), 2, CHK - 2))
    vq.append((CHK + 1, tb(2) + (tb(3) if P['bd'] > 3 else []), 3 if P['bd'] <= 3 else 1, kb0 + 10))
    OC = P["ochk"]; WD = P["wd"]; BD = P["bd"]
    for m in range(0, NT - 2):
        its = []
        if NPW <= m + WD < NT: its += tw(m + WD)
        n = m + BD
        if m == OC: its += [flagcheck("fO", 3)] + sum([tb(k_) for k_ in range(NBT, n + 1)], [])
        elif n < NT and not (NBT <= n and m < OC): its += tb(n)
        if its: vq.append((t0(m) + (11 if m == 0 else 1), its, P["tsp"] if len(its) < 18 else 1, t0(m + 1) - 1))
    vq.append((t0(OC - 2) + 30, [flagload("fO")], 0))
    nmain = len(vq)
    for lam in range(1, 4):
        b = 128 + 32 * lam
        vq.append((t0(NBT + lam - 1) + 10, [Ins(f"v_cvt_pk_bf16_f32 v{b+i}, v{b+2*i}, v{b+2*i+1}") for i in range(16)] + exch(0, lam, True, b, ("Bst", lam)), 10))
    vq.append((t0(NBT + P['bpub']) + 30, [[Ins("v_mov_b32 v126, 1"), W(vm=("Bst", 3))], finepub(1), finepub(2), finepub(3)], 1))
    vq.append((t0(NBT + P['bpub'] + 2) + 10, [fineload("fB")] + [Ins(f"buffer_load_dwordx4 v[{96+mb*4}:{99+mb*4}], v21, s[92:95], s{52+mb} offen", tag="xld") for mb in range(4)], 4))
    vq.append((t0(NN + 1), [finecheck("fB", 0x01010100)] + sum([exch(0, lam, False, 144 + 32 * lam, ("Bld", lam)) for lam in range(1, 4)], []), 5))
    for lam in range(1, 4):
        g = gp(g2[(NT - 1, 2 * lam + 1)]) + 8 + 5
        its = []
        for i in range(0, 32, 8):
            its += [Ins(f"v_accvgpr_read_b32 v{112+q}, a{32*lam+i+q}") for q in range(8)] + [Ins(f"v_cvt_pk_bf16_f32 v{128+32*lam+i//2+q}, v{112+2*q}, v{113+2*q}") for q in range(4)]
        vq.append((g, its + exch(1, lam, True, 128 + 32 * lam, ("Sst", lam)), 2))
    gk = gp(g2[(NN, 0)])
    vy = []
    for lam in range(1, 4):
        vy.append((gk + P["pub5"] - (3 - lam) * 32, [[Ins("v_mov_b32 v126, 3"), W(vm=("Sst", lam))], finepub(lam)], 0))
    vy.append((gk + P["pub5"] - 1, [fineload("f51")], 0))
    for Q, lst in (("vm", sorted(vq[:nmain], key=lambda e: e[0])), ("vx", sorted(vq[nmain:], key=lambda e: e[0])), ("vy", sorted(vy, key=lambda e: e[0]))):
        if Q == "vx":
            for g in range(t0(NN), len(at.mf)): at.capo[g] = 3
        for g, its, sp, *dl in lst:
            dl = dl[0] if dl else None
            for x in its:
                if dl is not None: g = min(g, dl)
                if isinstance(x, list): g = at.flowg(Q, g, x, deadline=dl)
                elif x.kind == "comment":
                    g = max(g, at.qpos.get(Q, g)); at.mid[g].append(x); at.qpos[Q] = g
                elif Q == "vm": g = vflow(at, g, [x], sp, dl)
                else: g = at.flow(Q, g, x, deadline=dl) + (sp if x.kind == "vmem" else 0)
    rdy0 = {}
    for qb in range(4):
        a, b = sbl(0, qb, 0), sbl(0, qb, 1); t0_ = 116 + (qb % 2) * 2; g = qb * 8 + 7 + 6
        seq = maxseq(a, b, t0_) + xlane(t0_, t0_ + 1) + [f"v_sub_f32 v{96+qb*4+i}, 0, v{t0_}" for i in range(4)] + [f"v_sub_f32 v{r}, v{r}, v{t0_}" for r in list(range(a, a + 4)) + list(range(b, b + 4))]
        for i, s_ in enumerate(seq): at.flow("mx", g, Ins(s_), deadline=(qk0[1] + qb * 8 - 2 if i < 16 else pv0[0] - 6))
        rdy0[qb] = at.qpos["mx"] + 1
    exps = []
    for u in range(NU):
        w0 = pv0[u - 1] + ALB if 1 <= u <= 14 else 0
        for i in range(32):
            qb, rem = divmod(i, 8)
            ready = qk0[u] + qb * 8 + (rem // 4) * 4 + 3 + 6
            if u == 0: ready = max(ready, rdy0[qb])
            exps.append((max(ready, w0), u, i))
    ei = 0; pend = []
    def put(g, x): at.mid[g].append(x); at.used[g] += x.cost
    for g in range(0, kb0):
        def do_exp():
            nonlocal ei
            _, u, i = exps[ei]; ei += 1
            qb, rem = divmod(i, 8); r = sbl(u, qb, rem // 4) + rem % 4
            put(g, Ins(f"v_exp_f32 v{r}, v{r}"))
            if i % 2: pend.append((g + 1, u, Ins(f"v_cvt_pk_bf16_f32 v{sbl(u, qb, 0)+rem//2}, v{r-1}, v{r}")))
        while ei < len(exps) and pv0[exps[ei][1]] - 2 <= g: do_exp()
        while pend and pv0[pend[0][1]] - 1 <= g: put(g, pend.pop(0)[2])
        nr = sum(1 for p_ in pend if p_[0] <= g)
        if at.used[g] == 0 and ei < len(exps) and exps[ei][0] <= g and nr < 4: do_exp()
        while at.used[g] < 2 and pend and pend[0][0] <= g: put(g, pend.pop(0)[2])
    assert ei == len(exps) and not pend
    for x in late2: at.flow("late", pv0[0] + 1, x, deadline=pv0[2] + ALB - 1)
    for g in range(CHK + 2, t0(4)): at.capo[g] = P["ocap"]
    for x in L("s_add_u32 s54, s53, 4096\ns_add_u32 s55, s53, 8192\ns_add_u32 s3, s53, 12288"): at.flow("od", CHK + 1, x)
    k = 0
    for b32 in range(4):
        for qb in range(4):
            tb_ = 96 + (k % 2) * 8; ob = 112 + (k % 2) * 4; k += 1
            g = max(pvpos(15, 2 * b32 + 1) + 4 + 8, kb0 - 8 + (k - 1) * P["osp"])
            for e in range(2):
                for i in range(4): at.flow("od", g, Ins(f"v_accvgpr_read_b32 v{tb_+e*4+i}, a{((b32*2+e)*4+qb)*4+i}"))
            for q in range(8): at.flow("od", g, Ins(f"v_mul_f32 v{tb_+q}, v{tb_+q}, v{120+qb}"))
            for q in range(4): gq = at.flow("od", g, Ins(f"v_cvt_pk_bf16_f32 v{ob+q}, v{tb_+2*q}, v{tb_+2*q+1}"))
            at.flow("od", gq, Ins(f"buffer_store_dwordx4 v[{ob}:{ob+3}], v25, s[40:43], {['s53','s54','s55','s3'][b32]} offen offset:{qb*1024}{SC}", tag="Ost"))
    npub = [n for n in range(NN) if b2[n] > at.qpos["od"] + 40][0]
    print("O drain ends at K2 tile", (at.qpos["od"] - kb0) / 64, "publish at b2", npub)
    at.front[b2[npub]].insert(0, W(vm="Ost")); at.used[b2[npub]] += 1
    for x in [ASSERT("Ost"), Ins("v_mov_b32 v126, 3"), pubstore()]: at.flow("od", b2[npub] + 1, x)
    xa = L(f"""
    s_lshl_b32 s62, s32, 5
    s_add_u32 s62, s62, s34           ; gid
    s_lshl_b32 s63, s62, 16
    s_lshl_b32 s4, s33, 12
    s_add_u32 s63, s63, s4
    v_add_u32 v17, s63, v25
    v_xor_b32 v18, {8<<16:#x}, v17
    v_xor_b32 v19, {16<<16:#x}, v17
    v_xor_b32 v20, {24<<16:#x}, v17
    s_lshl_b32 s62, s62, 7
    s_lshl_b32 s4, s33, 2
    s_add_u32 s62, s62, s4
    s_add_u32 s62, s62, {MB_REL+32:#x}
    v_mov_b32 v22, s62
    s_xor_b32 s16, s62, {(8<<7)+1:#x}
    s_xor_b32 s17, s62, {(16<<7)+2:#x}
    s_xor_b32 s18, s62, {(24<<7)+3:#x}
    v_cmp_eq_u32 vcc, 0, v1
    v_mov_b32 v23, 0x7ff00000
    v_and_b32 v21, 15, v1
    v_cndmask_b32 v23, v23, 0, vcc
    s_lshl_b32 s62, s32, 8
    s_lshl_b32 s63, s33, 6
    s_add_u32 s62, s62, s63
    v_add_u32 v21, s62, v21
    v_lshlrev_b32 v21, 11, v21
    v_lshrrev_b32 v24, 4, v1
    v_lshl_add_u32 v21, v24, 4, v21
    s_lshl_b32 s62, s48, 6
    s_add_u32 s62, s62, s49
    v_add_u32 v21, s62, v21
    s_mov_b32 s52, 0
    s_mov_b32 s53, 0x8000
    s_mov_b32 s54, 0x10000
    s_mov_b32 s55, 0x18000
    s_mov_b32 s68, 0xbfb8aa3b
    s_mov_b32 s69, 0xffff0000
    """)
    assert at.qpos["od"] < t0(OC - 2)
    for x in xa: at.flow("od", at.qpos["od"], x, deadline=t0(OC - 1))
    def unp(d, src, i): return Ins(f"v_lshlrev_b32 v{d}, 16, v{src+i//2}" if i % 2 == 0 else f"v_and_b32 v{d}, s69, v{src+i//2}")
    fin = [W(vm=("Bld", 3)), Ins("s_mov_b32 s16, s68"), Ins("s_mov_b32 s17, s68")]
    for lam in range(1, 4):
        for i in range(32): fin.append(unp(32 + i, 144 + 32 * lam, i))
        for i in range(0, 32, 2): fin += L(f"v_pk_add_f32 v[{128+i}:{129+i}], v[{128+i}:{129+i}], v[{32+i}:{33+i}]")
    for i0 in range(0, 32, 4):
        tmp = 112 + (i0 // 4 % 2) * 4; r = 128 + i0
        for i in (0, 2): fin += L(f"v_pk_mul_f32 v[{tmp+i}:{tmp+i+1}], v[{r+i}:{r+i+1}], s[16:17]")
        for i in range(4): fin += L(f"v_exp_f32 v{tmp+i}, v{tmp+i}")
        for i in range(4): fin += L(f"v_add_f32 v{tmp+i}, 1.0, v{tmp+i}")
        for i in range(4): fin += L(f"v_rcp_f32 v{tmp+i}, v{tmp+i}")
        fin += L("s_nop 0")
        for i in (0, 2): fin += L(f"v_pk_mul_f32 v[{r+i}:{r+i+1}], v[{r+i}:{r+i+1}], v[{tmp+i}:{tmp+i+1}]")
    fin += L("s_mov_b64 exec, s[56:57]") + sum([L(f"v_swap_b32 v{96+mb*4}, v{98+mb*4}\nv_swap_b32 v{97+mb*4}, v{99+mb*4}") for mb in range(4)], []) + L("s_mov_b64 exec, -1")
    for mb in range(4):
        for q in range(8): fin.append(unp(160 + ((q // 4) * 4 + mb) * 4 + q % 4, 96 + mb * 4, q))
    print("attn+k2", at.stats()[:300])
    A_ = at.emit()
    if STAMP and P.get("ast"):
        i = [k for k, x in enumerate(A_) if x.text == "; @IT A"][0]
        A_ = A_[:i] + stamp() + A_[i:]
        i = [k for k, x in enumerate(A_) if x.text == "; @ENDIT A"][0] + 1
        A_ = A_[:i] + stamp() + A_[i:]
    if STAMP:
        for m_ in (kb0, t0(5), t0(NN)) + ((gp(g2[(NT - 2, 2)]), gk) if P.get("tst") else ()):
            i = [k for k, x in enumerate(A_) if x is at.mf[m_]][0]
            A_ = A_[:i] + stamp() + A_[i:]
    nf = P["fsplit"]
    sd = {1: 192, 2: 224, 3: 208}
    nb_ = 3 + 3 * 48
    epi = stamp() + L("s_nop 7") + fin[:100] + finecheck("f51", 0x00020200) + exch(1, 1, False, sd[1], ("Sld", 1)) + exch(1, 2, False, sd[2], ("Sld", 2))
    epi += fin[100:nf] + [fineload("f5")] + fin[nf:] + finecheck("f5", 0x02000000) + exch(1, 3, False, sd[3], ("Sld", 3))
    epi += stamp()
    for i in range(32): epi += L(f"v_accvgpr_read_b32 v{64+i}, a{i}")
    for lam in range(1, 4):
        epi += [W(vm=("Sld", lam))]
        for i in range(32): epi += [unp(32 + i, sd[lam], i)]
        for i in range(0, 32, 2): epi += L(f"v_pk_add_f32 v[{64+i}:{65+i}], v[{64+i}:{65+i}], v[{32+i}:{33+i}]")
    epi += stamp()
    for mb in range(4):
        for e in range(2):
            for h in range(2):
                i = (e * 4 + mb) * 4 + 2 * h
                epi += L(f"v_pk_fma_f32 v[{160+i}:{161+i}], v[{64+i}:{65+i}], v[{128+i}:{129+i}], v[{160+i}:{161+i}]")
        r = 96 + mb * 4
        for e in range(2):
            for h in range(2):
                i = (e * 4 + mb) * 4 + 2 * h
                epi += L(f"v_cvt_pk_bf16_f32 v{r+e*2+h}, v{160+i}, v{161+i}")
        epi += L(f"s_mov_b64 exec, s[56:57]\nv_swap_b32 v{r}, v{r+2}\nv_swap_b32 v{r+1}, v{r+3}\ns_mov_b64 exec, -1")
        epi += L(f"buffer_store_dwordx4 v[{r}:{r+3}], v21, s[96:99], s{52+mb} offen")
    epi += L("s_waitcnt vmcnt(0)") * STAMP + stamp() + stamp_store()
    epi += L("L_end:\ns_endpgm")
    vcur = PAIR[7 % 5] + 16384; kcur = PAIR[7 % 5]
    fbk = L(f"""
    L_fallback:
    s_waitcnt vmcnt(0) lgkmcnt(0)
    s_nop 7
    s_lshl_b32 s62, s33, 13
    s_add_u32 s88, s62, {FBSLOT0:#x}
    s_and_b32 s62, s33, 1
    s_lshl_b32 s62, s62, 13
    s_lshr_b32 s63, s33, 1
    s_lshl_b32 s63, s63, 7
    s_add_u32 s62, s62, s63
    """)
    for z in range(4): fbk += L(f"v_subrev_u32 v{17+z}, s5, v{17+z}\nv_subrev_u32 v{21+z}, s62, v{21+z}")
    fbk += L(f"s_sub_u32 s62, s88, {kcur:#x}")
    for b in range(4): fbk += L(f"v_add_u32 v{KR+b}, s62, v{KR+b}")
    fbk += L(f"s_sub_u32 s62, s88, {vcur:#x}\nv_add_u32 v116, s62, v{VR}\nv_add_u32 v117, s62, v{VR+1}")
    for qb in range(4): fbk += L(f"v_mov_b32 v{120+qb}, 0xff800000")
    def fb_k(first):
        o = []
        for kb in range(2):
            o += L(f"s_add_u32 m0, s88, {kb*4096}\ns_add_u32 s89, s55, {kb*4096}")
            for z in range(4): o += L(f"buffer_load_dwordx4 v{17+z}, s[28:31], s89 offen offset:{z*1024} lds")
        o += L("s_waitcnt vmcnt(0)")
        for kb in range(2):
            for be in range(4): o += L(f"ds_read_b128 {kfb(0, kb, be)}, v{KR+be} offset:{kb*4096}")
        o += L("s_waitcnt lgkmcnt(0)")
        o += L("\n".join(qk_list(1, first, lambda kb, be: kfb(0, kb, be)))) + L("s_nop 7")
        return o
    fbk += L("s_mov_b32 s55, 0\nL_fb1:") + fb_k(True)
    for qb in range(4):
        fbk += L("\n".join(maxseq(sbl(1, qb, 0), sbl(1, qb, 1), 118))) + L(f"v_max_f32 v{120+qb}, v{120+qb}, v118")
    fbk += L("s_add_u32 s55, s55, 0x2000\ns_cmp_lt_u32 s55, 0x20000\ns_cbranch_scc1 L_fb1")
    for qb in range(4):
        fbk += L("\n".join(xlane(120 + qb, 118)))
        for i in range(4): fbk += L(f"v_sub_f32 v{96+qb*4+i}, 0, v{120+qb}")
    for i in range(144): fbk += L(f"v_accvgpr_write_b32 a{i}, 0")
    fbk += L("s_mov_b32 s55, 0\nL_fb2:")
    fbk += fb_k(False)
    for bp in range(2):
        fbk += L(f"s_add_u32 m0, s88, {bp*4096}\ns_add_u32 s89, s55, {bp*128}")
        for z in range(4): fbk += L(f"buffer_load_dwordx4 v{21+z}, s[36:39], s89 offen offset:{z*1024} lds")
    fbk += L("s_waitcnt vmcnt(0)")
    for db in range(8):
        b32, e = db >> 1, db & 1
        for rr in range(2): fbk += L(f"ds_read_b64_tr_b16 a[{144+db*4+rr*2}:{145+db*4+rr*2}], v{116+e} offset:{(b32>>1)*4096+(b32&1)*512+rr*2048}")
    for qb in range(4):
        for kb in range(2):
            for i in range(4): fbk += L(f"v_exp_f32 v{sbl(1, qb, kb)+i}, v{sbl(1, qb, kb)+i}")
    for qb in range(4):
        for h in range(4): fbk += L(f"v_cvt_pk_bf16_f32 v{sbl(1, qb, 0)+h}, v{sbl(1, qb, h//2)+(h%2)*2}, v{sbl(1, qb, h//2)+(h%2)*2+1}")
    pl = pv_list(15, lambda db: f"a[{144+db*4}:{147+db*4}]")
    nfirst = CHK - pv0[15]
    fbk += L("s_waitcnt lgkmcnt(0)") + L("\n".join(pl[:nfirst]))
    fbk += L("s_add_u32 s55, s55, 0x2000\ns_cmp_lt_u32 s55, 0x20000\ns_cbranch_scc0 L_fb_done") + L("\n".join(pl[nfirst:])) + L("s_branch L_fb2\nL_fb_done:\ns_nop 7")
    for qb in range(4): fbk += L(f"v_accvgpr_read_b32 v{116+qb}, a{128+qb*4}")
    fbk += L("s_branch L_fb_ret")
    errs = check(fbk, "fb")
    assert not errs, "\n".join(errs[:30])
    full = resolve_waits(fix_m0(pro + G_ + mid + A_ + epi))
    full, prog = collapse(full)
    errs = check(full, "fused")
    assert not errs, "\n".join(errs[:30])
    def keep(x):
        t = x.tag
        if isinstance(t, tuple):
            if P.get("ablTW") and t[0] == "TW" and t[1] >= 5: return False
            if P.get("ablTB") and t[0] == "TB" and t[1] >= 5: return False
            if P.get("ablE") and t[0] in ("Bst", "Bld"): return False
        if P.get("noOst") and t == "Ost": return False
        return True
    prog = [x for x in prog if keep(x)]
    return dict(name=NAME + "_kernel", body=text(prog + ool + fbk + L("L_code_end:")), grid=256, block=256, lds=163840, vgpr=512, accum=256, sgpr=102)

if __name__ == "__main__":
    STAMP = "stamp" in sys.argv
    open("t_m.s", "w").write(build_file([gen_fused()]))
    for v in sys.argv[1:]:
        if v == "stamp": continue
        P = {}
        for kv in v.split(","):
            k, _, val = kv.partition("="); P[k] = int(val, 0) if val else 1
        open("t_m_" + v.replace(",", "_").replace("=", "") + ".s", "w").write(build_file([gen_fused(P)]))
```

```python
import sys, struct, math
from gen_core import *
from asmlib import build_file, NAME
from gen import srd, tr_addr, wdma_addr, lane_consts, MF
XN_OFF = 0; O_OFF = 4 << 20; H_OFF = 20 << 20; EX_OFF = 36 << 20; MB_REL = 32 << 20; TS_OFF = 104 << 20
STG = 45056
GST = [0, 90112, 45056]
PAIR = [131072, 98304, 65536, 32768, 0]
K2SLOT = [0, 16384, 32768, 49152, 131072, 147456, 98304, 114688, 65536, 81920]
FBSLOT0 = 98304
BRING = [[('a', 176 + 4 * i) for i in range(8)], [('a', 208 + 4 * i) for i in range(8)], [('a', 144 + 4 * i) for i in range(8)],
         [('a', 240 + 4 * i) for i in range(4)] + [('a', 128 + 4 * i) for i in range(4)], [('v', 32 + 4 * i) for i in range(8)]]
def b2reg(n, s, mb):
    k, b = BRING[n % 5][s * 4 + mb]
    return f'{k}[{b}:{b+3}]'
f2u = lambda f: struct.unpack("<I", struct.pack("<f", f))[0]
QSCALE = f2u(math.log2(math.e) / math.sqrt(128.0))
LNLDS = 163840 - 512
STAMP = False
SC = " sc1"
NST = [0]
def stamp():
    if not STAMP: return []
    k = NST[0]; NST[0] += 1
    return L(f"s_memtime s[84:85]\ns_memrealtime s[86:87]\ns_waitcnt lgkmcnt(0)\nv_writelane_b32 v0, s84, {2*k}\nv_writelane_b32 v0, s86, {2*k+1}")
def stamp_store():
    if not STAMP: return []
    t = srd(8, 60, 61, 1 << 20, TS_OFF)
    t += L("s_lshl_b32 s62, s2, 10\ns_lshl_b32 s63, s33, 8\ns_add_u32 s62, s62, s63\nv_lshlrev_b32 v1, 2, v1\nv_add_u32 v1, s62, v1\nbuffer_store_dword v0, v1, s[8:11], 0 offen")
    return t
def once(lst):
    for x in lst: x.once = True
    return lst
def ASSERTD(tag):
    x = Ins("; @ASSERTD"); x.vm = tag; return x
def ASSERT(tag):
    x = Ins("; @ASSERT"); x.vm = tag; return x

def gen_fused(P=None):
    P = dict(dict(LA=2, LA2=4, thr=f2u(2.0 ** 24), touch0=0, touch=4, ocap=3, slp0=0, slp=2, xsp=3, wsp=5, lb=56, ctouch=4, order=2, sync=1, pre=1, tg=0, tkv=0, pad=0, ectouch=0, ochk=11, tsp=3, pub5=78, bpub=6, fsplit=200, npw=6, ct2=1, wd=4, bd=4, fl5=12, osp=16), **(P or {}))
    NST[0] = 0
    LA = P["LA"]; LA2 = P["LA2"]
    ool = []
    pro = L("""
    s_cmp_ge_u32 s2, 256
    s_cbranch_scc1 L_end
    s_load_dwordx2 s[92:93], s[0:1], 0      ; x
    s_load_dwordx4 s[48:51], s[0:1], 8      ; K, V
    s_load_dwordx4 s[52:55], s[0:1], 24
    s_load_dwordx4 s[56:59], s[0:1], 48
    s_load_dwordx4 s[72:75], s[0:1], 64
    s_load_dwordx4 s[60:63], s[0:1], 80
    """)
    pro += lane_consts()
    pro += L("""
    s_lshr_b32 s34, s2, 3
    s_and_b32 s35, s2, 1
    s_lshl_b32 s35, s35, 2
    s_and_b32 s32, s34, 3
    s_add_u32 s32, s32, s35           ; rb
    s_bfe_u32 s35, s2, 0x20001
    s_lshr_b32 s34, s34, 2
    s_lshl_b32 s3, s35, 3
    s_add_u32 s34, s34, s3            ; j
    s_lshl_b32 s3, s32, 5
    s_add_u32 s3, s3, s34
    s_lshl_b32 s4, s3, 3
    v_and_b32 v32, 7, v1
    v_add_u32 v33, s4, v32            ; row
    v_lshlrev_b32 v34, 11, v33
    v_lshrrev_b32 v35, 3, v1
    s_lshl_b32 s4, s33, 3
    v_add_u32 v35, s4, v35            ; kstep s
    v_lshl_add_u32 v34, v35, 6, v34
    s_mov_b32 s94, 0x400000
    s_mov_b32 s95, 0x20000
    s_waitcnt lgkmcnt(0)
    """)
    for i in range(4): pro += [Ins(f"buffer_load_dwordx4 v[{64+4*i}:{67+4*i}], v34, s[92:95], 0 offen offset:{16*i}", tag="x")]
    pro += stamp()
    defer = []
    dst = (lambda: pro) if P["ectouch"] else (lambda: defer)
    if P["ctouch"]:
        pro += L(f"""
        s_getpc_b64 s[72:73]
        """) * 0
        dst().extend(L(f"""
        s_getpc_b64 s[84:85]
        L_pc:
        s_sub_u32 s84, s84, L_pc-{NAME}_kernel
        s_subb_u32 s85, s85, 0
        s_lshr_b32 s86, s2, 3
        s_lshl_b32 s86, s86, 2
        s_add_u32 s86, s86, s33
        s_and_b32 s86, s86, 31
        s_lshl_b32 s86, s86, 12
        v_lshl_add_u32 v124, v1, 6, s86
        s_mov_b32 s87, L_code_end-{NAME}_kernel-4
        v_min_u32 v124, s87, v124
        """) + [Ins("global_load_dword v124, v124, s[84:85]", tag="touch")])
    pro += L("s_mov_b32 s44, s60\ns_mov_b32 s45, s61\ns_mov_b32 s46, 256\ns_mov_b32 s47, 0x20000\ns_mov_b32 s60, s62\ns_mov_b32 s61, s63")
    pro += L("s_lshl_b32 s62, s34, 8")
    pro += wdma_addr(7, 8192, "s62", t0=36, st=63)
    pro += L(f"""
    s_lshr_b32 s62, s34, 1
    s_mul_i32 s62, s62, 448
    s_and_b32 s63, s34, 1
    s_lshl_b32 s70, s63, 8
    s_add_u32 s70, s70, s62           ; colP
    s_lshl_b32 s71, s63, 5
    s_add_u32 s71, s71, s62
    s_add_u32 s71, s71, 192           ; colX
    v_lshrrev_b32 v36, 5, v1
    v_lshlrev_b32 v36, 3, v36
    v_bfe_u32 v37, v1, 2, 3
    v_add_u32 v36, v36, v37
    s_lshl_b32 s62, s33, 4
    v_add_u32 v36, s62, v36
    s_movk_i32 s62, 7168
    v_mul_lo_u32 v11, v36, s62
    v_bfe_u32 v36, v1, 4, 1
    v_lshlrev_b32 v36, 1, v36
    v_and_b32 v37, 3, v1
    v_xor_b32 v36, v36, v37
    v_lshl_add_u32 v11, v36, 4, v11
    s_add_u32 s70, s70, 4096
    v_add_u32 v11, s70, v11
    v_subrev_u32 v12, 960, v11
    v_subrev_u32 v13, 1920, v11
    v_lshrrev_b32 v36, 1, v1
    s_and_b32 s63, s33, 1
    s_lshl_b32 s63, s63, 5
    v_add_u32 v36, s63, v36
    v_mul_lo_u32 v14, v36, s62
    v_and_b32 v37, 1, v1
    v_lshl_add_u32 v14, v37, 4, v14
    s_add_u32 s71, s71, 4096
    v_add_u32 v14, s71, v14
    s_lshl_b32 s5, s33, 12
    s_mul_i32 s6, s33, 3072
    s_lshl_b32 s7, s33, 10
    """)
    pro += srd(8, 52, 53, 8 << 20) + srd(12, 56, 57, (7 << 20) + 4096, -4096) + srd(16, 58, 59, (7 << 20) + 4096, -4096)
    pro += L("s_cmp_lt_u32 s33, 2\ns_cselect_b32 s20, s12, s16\ns_cselect_b32 s21, s13, s17") + L(f"s_mov_b32 s22, {(7<<20)+4096:#x}\ns_mov_b32 s23, 0x20000")
    pro += srd(76, 54, 55, 8 << 20) + srd(80, 72, 73, 7 << 20) + srd(96, 74, 75, 4 << 20)
    pro += L("s_mov_b32 s52, 0\ns_mov_b32 s53, 0\ns_mov_b32 s54, 0")
    pro += L(f"s_mov_b32 s90, {GST[0]}\ns_mov_b32 s88, {GST[1]}\ns_mov_b32 s89, {GST[2]}")
    def wloads(t):
        sb = GST[t % 3]
        reg = (sb, sb + STG, ("G", t)); tag = ("W", t)
        r = [Ins("s_add_u32 m0, s5, s90")]
        r += [Ins(f"buffer_load_dwordx4 v{7+z}, s[8:11], s52 offen offset:{z*1024} lds", tag=tag, wr=reg) for z in range(4)]
        r += [Ins("s_add_u32 s100, s6, s90"), Ins("s_add_u32 m0, s100, 16384")]
        r += [Ins(f"buffer_load_dwordx4 v{11+z}, s[12:15], s53 offen offset:{z*1024} lds", tag=tag, wr=reg) for z in range(3)]
        r += [Ins("s_add_u32 m0, s100, 28672")]
        r += [Ins(f"buffer_load_dwordx4 v{11+z}, s[16:19], s53 offen offset:{z*1024} lds", tag=tag, wr=reg) for z in range(3)]
        r += [Ins("s_add_u32 s100, s7, s90"), Ins("s_add_u32 m0, s100, 40960")]
        r += [Ins(f"buffer_load_dwordx4 v14, s[20:23], s53 offen lds", tag=tag, wr=reg)]
        r += [Ins("s_add_u32 s52, s52, 0x80000"), Ins("s_add_u32 s53, s53, 0x70000")]
        r += L("s_mov_b32 s100, s90\ns_mov_b32 s90, s88\ns_mov_b32 s88, s89\ns_mov_b32 s89, s100")
        return r
    def breg(t, s, mb):
        k = (s * 4 + mb) * 4
        return f"v[{64+k}:{67+k}]" if t % 2 == 0 else f"a[{224+k}:{227+k}]"
    def xloads(t):
        r = [Ins(f"buffer_load_dwordx4 {breg(t, s, mb)}, v{15+s}, s[24:27], s54 offen offset:{mb*1024}{SC}", tag=("X", t) if t else ("X0", mb * 2 + s)) for mb in range(4) for s in range(2)]
        r += [Ins("s_add_u32 s54, s54, 0x2000")]
        return r
    wl0 = wloads(0); wl1 = wloads(1); late_w1 = []
    if P['order'] == 1: defer[:0] = wl0 + wl1
    elif P['order'] == 2: pro += wl0; defer[:0] = wl1
    elif P['order'] == 3: defer[:0] = wl0; late_w1 = wl1
    elif P['order'] == 4: pro += wl0; late_w1 = wl1
    elif P['order'] == 5: pro += wl0; defer[:0] = wl1
    else: pro += wl0 + wl1
    pro += L("""
    s_lshl_b32 s62, s2, 2
    s_add_u32 s62, s62, s33
    s_lshl_b32 s63, s62, 12
    v_lshlrev_b32 v31, 6, v1
    v_add_u32 v31, s63, v31
    s_lshl_b32 s63, s62, 10
    v_and_b32 v30, 15, v1
    v_lshlrev_b32 v30, 6, v30
    v_add_u32 v30, s63, v30
    """)
    if P["touch"] == 4:
        pro += L("s_mul_i32 s63, s62, 1280\nv_min_u32 v31, 9, v1\nv_lshlrev_b32 v31, 7, v31\nv_add_u32 v31, s63, v31")
    def touch(v, sr, off):
        return [Ins(f"s_mov_b32 s62, {off:#x}"), Ins(f"buffer_load_dword v127, v{v}, s[{sr}:{sr+3}], s62 offen", tag="touch")]
    if P["touch0"]:
        defer.extend(touch(30, 8, 128 * 8192) + touch(30, 12, 4096 + 128 * 7168) + touch(30, 16, 4096 + 128 * 7168))
    pro += srd(64, 60, 61, MB_REL + 32768, EX_OFF)
    pro += L(f"""
    s_lshl_b32 s62, s3, 7
    s_add_u32 s62, s62, {MB_REL:#x}
    v_and_b32 v36, 31, v1
    v_add_u32 v28, s62, v1
    s_lshl_b32 s62, s32, 12
    s_add_u32 s62, s62, s34
    s_add_u32 s62, s62, {MB_REL:#x}
    v_lshl_add_u32 v29, v36, 7, s62
    v_mov_b32 v37, 0x7fff0000
    v_lshrrev_b32 v38, 5, v1
    v_or_b32 v38, s33, v38
    v_cmp_eq_u32 vcc, 0, v38
    v_mov_b32 v126, 0
    s_nop 0
    v_cndmask_b32 v29, v37, v29, vcc
    s_cmp_eq_u32 s33, 0
    s_cselect_b32 s70, 0, 0x40000000
    v_or_b32 v38, s33, v1
    v_cmp_eq_u32 vcc, 0, v38
    v_mov_b32 v36, s3
    s_lshl_b32 s62, s32, 5
    v_cndmask_b32 v27, v37, v36, vcc
    v_and_b32 v26, 31, v1
    v_add_u32 v26, s62, v26
    """)
    if P.get("lnst"): pro += stamp()
    pro += L(f"s_mov_b32 s62, 0xffff0000") + [W(vm="x")]
    if P.get("lnst"): pro += stamp()
    for e in range(32):
        pro += L(f"v_lshlrev_b32 v{80+e}, 16, v{64+e//2}" if e % 2 == 0 else f"v_and_b32 v{80+e}, s62, v{64+e//2}")
    def red8(v):
        return L(f"""
        s_nop 1
        v_add_f32_dpp v{v}, v{v}, v{v} row_ror:8 row_mask:0xf bank_mask:0xf
        v_mov_b32 v40, v{v}
        s_nop 1
        v_permlane16_swap_b32 v{v}, v40
        v_add_f32 v{v}, v{v}, v40
        v_mov_b32 v40, v{v}
        s_nop 1
        v_permlane32_swap_b32 v{v}, v40
        v_add_f32 v{v}, v{v}, v40
        """)
    pro += L("v_pk_add_f32 v[36:37], v[80:81], v[82:83]\nv_pk_add_f32 v[38:39], v[84:85], v[86:87]")
    for e in range(8, 32, 4): pro += L(f"v_pk_add_f32 v[36:37], v[36:37], v[{80+e}:{81+e}]\nv_pk_add_f32 v[38:39], v[38:39], v[{82+e}:{83+e}]")
    pro += L("v_pk_add_f32 v[36:37], v[36:37], v[38:39]\nv_add_f32 v36, v36, v37") + red8(36) + L("v_mul_f32 v36, 0x3b800000, v36\nv_mov_b32 v52, 0\nv_mov_b32 v53, 0\nv_mov_b32 v54, 0\nv_mov_b32 v55, 0")
    for e in range(0, 32, 4):
        pro += L(f"""v_pk_add_f32 v[44:45], v[{80+e}:{81+e}], v[36:37] op_sel_hi:[1,0] neg_lo:[0,1] neg_hi:[0,1]
        v_pk_add_f32 v[46:47], v[{82+e}:{83+e}], v[36:37] op_sel_hi:[1,0] neg_lo:[0,1] neg_hi:[0,1]
        v_pk_fma_f32 v[52:53], v[44:45], v[44:45], v[52:53]
        v_pk_fma_f32 v[54:55], v[46:47], v[46:47], v[54:55]""")
    pro += L("v_pk_add_f32 v[52:53], v[52:53], v[54:55]\nv_add_f32 v37, v52, v53") + red8(37)
    pro += L(f"""
    v_lshlrev_b32 v38, 5, v32
    v_add_u32 v38, {LNLDS:#x}, v38
    s_lshl_b32 s63, s33, 3
    v_add_u32 v39, s63, v38
    ds_write_b64 v39, v[36:37]
    s_waitcnt lgkmcnt(0)
    s_barrier
    ds_read_b128 v[44:47], v38
    ds_read_b128 v[48:51], v38 offset:16
    v_lshrrev_b32 v42, 6, v33
    v_lshlrev_b32 v42, 17, v42
    v_lshl_add_u32 v42, v35, 12, v42
    v_bfe_u32 v43, v33, 4, 2
    v_lshl_add_u32 v42, v43, 10, v42
    v_and_b32 v43, 15, v33
    v_lshl_add_u32 v42, v43, 4, v42
    """)
    pro += srd(24, 60, 61, 4 << 20, XN_OFF)
    pro += L("""
    s_waitcnt lgkmcnt(0)
    v_add_f32 v36, v44, v46
    v_add_f32 v37, v48, v50
    v_add_f32 v36, v36, v37
    v_mul_f32 v36, 0.25, v36
    v_add_f32 v37, v45, v47
    v_add_f32 v38, v49, v51
    v_add_f32 v37, v37, v38
    v_sub_f32 v44, v44, v36
    v_sub_f32 v46, v46, v36
    v_sub_f32 v48, v48, v36
    v_sub_f32 v50, v50, v36
    v_mul_f32 v38, v44, v44
    v_fmac_f32 v38, v46, v46
    v_fmac_f32 v38, v48, v48
    v_fmac_f32 v38, v50, v50
    v_fmac_f32 v37, 0x43800000, v38
    v_mul_f32 v37, 0x3a800000, v37
    v_cvt_pk_bf16_f32 v38, v36, v37
    v_lshlrev_b32 v36, 16, v38
    v_and_b32 v37, s62, v38
    v_add_f32 v37, 0x3727c5ac, v37
    v_cvt_pk_bf16_f32 v37, v37, v37
    v_and_b32 v37, s62, v37
    v_sqrt_f32 v37, v37
    s_nop 0
    v_cvt_pk_bf16_f32 v37, v37, v37
    v_and_b32 v37, s62, v37
    v_rcp_f32 v37, v37
    s_nop 0
    """)
    for e in range(0, 32, 2): pro += L(f"v_pk_add_f32 v[{80+e}:{81+e}], v[{80+e}:{81+e}], v[36:37] op_sel_hi:[1,0] neg_lo:[0,1] neg_hi:[0,1]")
    for q in range(16): pro += L(f"v_cvt_pk_bf16_f32 v{64+q}, v{80+2*q}, v{81+2*q}")
    for e in range(32):
        pro += L(f"v_lshlrev_b32 v{80+e}, 16, v{64+e//2}" if e % 2 == 0 else f"v_and_b32 v{80+e}, s62, v{64+e//2}")
    for e in range(0, 32, 2): pro += L(f"v_pk_mul_f32 v[{80+e}:{81+e}], v[{80+e}:{81+e}], v[36:37] op_sel:[0,1]")
    for g in range(4):
        for h, q in enumerate((2 * g, 2 * g + 1, 8 + 2 * g, 9 + 2 * g)):
            pro += L(f"v_cvt_pk_bf16_f32 v{64+g*4+h}, v{80+2*q}, v{81+2*q}")
        pro += [Ins(f"buffer_store_dwordx4 v[{64+g*4}:{67+g*4}], v42, s[24:27], 0 offen offset:{g*256}{SC}", tag="xn")]
    pro += L(f"buffer_store_byte v126, v28, s[64:67], s70 offen{SC}")
    if P.get("lnst"): pro += stamp()
    pro += L("s_nop 0\nv_mov_b32 v126, 1")
    pro += tr_addr(96, 0, True, 1024, 36) + tr_addr(97, 1, True, 1024, 36) + tr_addr(98, 0, False, 512, 36) + tr_addr(99, 1, False, 512, 36)
    pro += L("v_lshlrev_b32 v100, 3, v1")
    for i in range(5): pro += L(f"v_mov_b32 v{2+i}, v{96+i}")
    if P.get("lnst"): pro += [W(vm="all")] + stamp()
    if P["sync"] == 0:
        pro += [W(vm="all"), Ins("s_barrier"), Ins(f"buffer_store_byte v126, v27, s[44:47], 0 offen{SC}", tag="flag")]
    else:
        pro += L("v_and_b32 v27, 0xffffffe0, v27\nv_mov_b32 v125, 1")
        pro += [W(vm="all"), Ins("s_barrier"), Ins(f"buffer_atomic_add v125, v27, s[44:47], 0 offen sc0 sc1", tag="flag")]
    pro += stamp()
    if P["sync"]:
        pro += [W(vm="flag")] + L(f"""
        v_readfirstlane_b32 s70, v125
        s_sub_u32 s63, 48, s34
        s_and_b32 s70, s70, 31
        s_cmp_eq_u32 s70, 31
        s_cselect_b32 s62, s63, 0x40000000
        buffer_store_byte v126, v29, s[64:67], s62 offen{SC}
        """)
    if P["order"] == 5:
        def cp(lst, m):
            o = []
            for x in fix_m0(lst):
                y = x.copy(); y.text = y.text.replace("L_pc", "L_pc" + m) + ("" if y.label else " ; opt" + m); o.append(y)
            return o
        pro += L("s_cmp_eq_u32 s33, 0\ns_cbranch_scc1 L_skipA") + cp(defer, "A") + L("L_skipA:")
        late_w1 = L("s_cmp_lg_u32 s33, 0\ns_cbranch_scc1 L_skipB") + cp(defer, "B") + L("L_skipB:")
    else: pro += defer
    pro += L(f"""
    s_lshl_b32 s62, s32, 2
    s_add_u32 s62, s62, s33
    s_lshl_b32 s63, s62, 17
    v_lshlrev_b32 v25, 4, v1
    v_add_u32 v15, s63, v25
    v_add_u32 v16, 0x1000, v15
    s_lshl_b32 s62, s35, 19
    s_add_u32 s62, s62, {1536*256:#x}
    s_add_u32 s28, s48, s62
    s_addc_u32 s29, s49, 0
    s_mov_b32 s30, 0x20000
    s_mov_b32 s31, 0x20000
    s_add_u32 s36, s50, s62
    s_addc_u32 s37, s51, 0
    s_mov_b32 s38, 0x20000
    s_mov_b32 s39, 0x20000
    v_lshrrev_b32 v36, 4, v1
    v_and_b32 v37, 15, v1
    v_lshl_add_u32 v38, v36, 8, s5
    """)
    pro += srd(40, 60, 61, 16 << 20, O_OFF)
    for z in range(4):
        pro += L(f"v_add_u32 v39, {4*z}, v36\nv_xor_b32 v39, v39, v37\nv_lshl_add_u32 v{17+z}, v39, 4, v38")
    pro += wdma_addr(21, 256, "0", t0=40, st=63)
    pro += L("s_mov_b32 s55, 0\ns_mov_b32 s56, 0\ns_mov_b32 s57, -1\ns_mov_b32 s91, 6\ns_mov_b32 s58, 0")
    for i in range(224): pro += L(f"v_accvgpr_write_b32 a{i}, 0")
    for i in range(128, 256, 2): pro += L(f"v_mov_b64 v[{i}:{i+1}], 0")
    if P["sync"] == 0:
        pro += [W(vm=("W", 0))]
        pro += L(f"""
        s_cmp_lg_u32 s33, 0
        s_cbranch_scc1 L_x_go
        s_mov_b32 s70, 0x40000
        s_sleep {P['slp0']}
        L_x_poll:
        buffer_load_ubyte v125, v26, s[44:47], 0 offen{SC} ; w0only
        s_waitcnt vmcnt(0) ; w0only
        v_cmp_gt_u32 vcc, 1, v125
        s_sub_u32 s70, s70, 1
        s_cbranch_scc1 L_x_go
        s_cbranch_vccz L_x_go
        s_sleep {P['slp']}
        s_branch L_x_poll
        L_x_go:
        s_barrier
        """)
    else:
        if P["pad"]:
            pro += L("""
            s_cmp_eq_u32 s33, 0
            s_cbranch_scc1 L_scout_ret
            s_mov_b64 exec, 0
            s_cmp_eq_u32 s33, 1
            s_cbranch_scc1 L_pad1_0
            s_cmp_eq_u32 s33, 2
            s_cbranch_scc1 L_pad2_0
            s_branch L_pad3_0
            L_scout_ret:
            s_mov_b64 exec, -1
            """)
        pro += [W(vm=("W", 0))]
        pro += L(f"""
        s_cmp_lg_u32 s33, 0
        s_cbranch_scc1 L_x_go
        s_mov_b32 s70, 0x40000
        L_x_poll:
        buffer_load_ubyte v125, v28, s[64:67], 0 offen{SC} ; w0only
        s_waitcnt vmcnt(0) ; w0only
        v_readlane_b32 s62, v125, 48
        s_sub_u32 s70, s70, 1
        s_cbranch_scc1 L_x_go
        s_cmp_eq_u32 s62, 0
        s_cbranch_scc1 L_x_poll
        L_x_go:
        s_barrier
        """)
    pro += stamp() + (xloads(0) + late_w1 + xloads(1) if not P.get('o6') else xloads(0) + xloads(1) + [W(vm=('X', 0))] + late_w1)
    pro += srd(44, 60, 61, 14 << 20, H_OFF)
    pro += stamp()
    def kvloads(tau, dyn):
        r = []
        for v in range(2):
            sb = PAIR[tau % 5] + v * 16384; i = 2 * tau + v; reg = (sb, sb + 16384, ("KV", i)); tag = ("KV", i)
            r.append(Ins(f"s_add_u32 m0, s89, {v*16384}" if dyn else f"s_add_u32 m0, s5, {sb:#x}"))
            for z in range(4):
                r.append(Ins(f"buffer_load_dwordx4 v{(21 if v else 17)+z}, s[{36 if v else 28}:{39 if v else 31}], s55 offen offset:{z*1024} lds", tag=tag, wr=reg))
        r.append(Ins("s_add_u32 s55, s55, 0x4000"))
        return r
    blocks = []
    for p in range(3):
        for e in range(2):
            for m in range(2):
                bi = (p * 2 + e) * 2 + m
                blocks.append((4 + e, (lambda s, r, p=p, m=m: 16384 + m * 12288 + (2 * s + r) * 3072 + p * 1024), "a", bi * 16))
    for m in range(2):
        blocks.append((6, (lambda s, r, m=m: 40960 + m * 2048 + s * 1024 + r * 512), "a", (12 + m) * 16))
    for nb in range(8):
        b32, e = nb >> 1, nb & 1
        blocks.append((2 + e, (lambda s, r, b32=b32: (b32 >> 1) * 8192 + (b32 & 1) * 512 + s * 4096 + r * 2048), "v", 128 + nb * 16))
    NB = len(blocks); T = 16; TM = NB * 8
    gg = [(t, nb) for t in range(14) for nb in range(NB)] + [(14, nb) for nb in range(14)] + [(15, nb) for nb in range(14)] + [(14, nb) for nb in range(14, 22)] + [(15, nb) for nb in range(14, 22)]
    gidx = {k: i for i, k in enumerate(gg)}
    sc = Sched(2)
    for G, (t, nb) in enumerate(gg):
        va, imm, ak, ab = blocks[nb]; fb = 32 + (G % 4) * 8
        for mb in range(4):
            for s in range(2):
                ac = f"{ak}[{ab+mb*4}:{ab+mb*4+3}]"
                sc.mfma(f"{MF} {ac}, v[{fb+s*4}:{fb+s*4+3}], {breg(t, s, mb)}, {ac}")
    def rd(G):
        t, nb = gg[G]; va, imm, _, _ = blocks[nb]; fb = 32 + (G % 4) * 8; sb = GST[t % 3]
        return [Ins(f"ds_read_b64_tr_b16 v[{fb+s*4+r*2}:{fb+s*4+r*2+1}], v{va} offset:{imm(s, r)}", tag=("P", G), rd=(sb, sb + STG, ("G", t))) for s in range(2) for r in range(2)]
    LB = P['lb']
    for it in range(8):
        g = 2 * it * TM + LB
        if it == 0: sc.used[g] += 2
        else: sc.fixed_front(g, L("s_sub_u32 s91, s91, 1\ns_cbranch_scc0 L_G"))
        sc.fixed_front(g, Ins("; @IT G" if it < 7 else "; @ENDIT G"))
    for t in range(0, T):
        g0 = gidx[(t, 0)] * 8
        if t >= 1: sc.fixed_front(g0 - 8 * LA, [W(vm=("W", t)), Ins("s_barrier")])
        if t: sc.fixed_back(g0, W(vm=("X", t)))
        else:
            for i in range(8): sc.fixed_back(i, W(vm=("X0", i)))
    for G in range(len(gg)): sc.fixed_back(G * 8, W(lg=("P", G)))
    d15 = GST[0] - GST[2]
    for G, (t, nb) in enumerate(gg):
        upd = []
        if nb == 0 and 0 < t < 15: upd = [f"v_add_u32 v{va}, s88, v{94+va}" for va in range(2, 7)]
        if (t, nb) == (15, 0): upd = [f"v_subrev_u32 v{va}, {-d15:#x}, v{va}" for va in (4, 5, 6)]
        if (t, nb) == (15, 14): upd = [f"v_subrev_u32 v{va}, {-d15:#x}, v{va}" for va in (2, 3)]
        for u_ in upd: sc.flow("lds", 8 * (G - LA) - 3, Ins(u_), deadline=8 * (G - LA))
        for i, x in enumerate(rd(G)): sc.flow("lds", 8 * (G - LA) + i, x, deadline=8 * (G - 1) + 2)
    for t in range(1, 15): sc.fixed_front(t * TM + 2, Ins("s_barrier ; FB"))
    def vflow(S, g, its, sp, dl=None):
        for x in its:
            if x.kind == "vmem": x.cost = 2
            g = S.flow("vm", g if dl is None else min(g, dl), x, mingap=(1 if x.kind == "vmem" and S.qpos.get("vm") != dl else 0), deadline=dl) + (sp if x.kind == "vmem" else 0)
        return g
    for t in range(0, 15):
        g = t * TM + 1
        if t == 0:
            its = []
            if P["tkv"]: its += touch(30, 28, 0) + touch(30, 36, 0)
            if P["tg"]:
                its += touch(31, 8, 256 * 8192) + touch(31, 12, 4096 + 256 * 7168) + touch(31, 16, 4096 + 256 * 7168)
                its += touch(31, 8, 512 * 8192) + touch(31, 12, 4096 + (3 << 20)) + touch(31, 16, 4096 + (3 << 20))
            g = vflow(sc, g, its, P["xsp"] - 1)
        else:
            ex = []
            if P["touch"] == 4 and t % 2 == 1:
                ex = [Ins("buffer_load_dword v127, v31, s[80:83], s58 offen", tag="touch"), Ins("buffer_load_dword v127, v31, s[76:79], s58 offen", tag="touch"), Ins(f"s_add_u32 s58, s58, {1024*1280:#x}")]
            g = vflow(sc, g, xloads(t + 1) + ex, P["xsp"])
        assert g < t * TM + LB + P["xsp"] or t % 2 == 1, g - t * TM
        g = max(g, t * TM + LB + 1)
        items = wloads(t + 2) if t + 2 < T else []
        if t == 14:
            items += kvloads(0, False) + kvloads(1, False)
            if P["touch"] == 1: items += touch(31, 80, 0) + touch(31, 80, 3 << 20) + touch(31, 76, 0) + touch(31, 76, 4 << 20)
        g = vflow(sc, g, items, P["wsp"] if t < 14 else 3)
        assert g < (t + 1) * TM - 8 * LA - 4 + P["wsp"] or t >= 14, g - t * TM
    g0 = 14 * TM + LB + 1
    hs = L(f"""
    s_lshl_b32 s62, s32, 2
    s_add_u32 s62, s62, s33           ; mb64
    s_mul_i32 s63, s62, {112*4096}
    s_lshr_b32 s3, s34, 1
    s_mul_i32 s3, s3, 7
    s_and_b32 s4, s34, 1
    s_lshl_b32 s52, s4, 2
    s_add_u32 s52, s52, s3
    s_lshl_b32 s52, s52, 12
    s_add_u32 s52, s52, s63           ; P base
    s_add_u32 s3, s3, 3
    s_lshl_b32 s3, s3, 12
    s_add_u32 s3, s3, s63
    s_lshl_b32 s4, s4, 3
    s_add_u32 s3, s3, s4
    s_add_u32 s53, s52, 4096
    s_add_u32 s54, s52, 8192
    s_mov_b32 s72, s63
    s_lshl_b32 s75, s62, 19
    s_mov_b32 s70, {QSCALE:#x}
    s_mov_b32 s71, s70
    """)
    for x in hs: sc.flow("hd", sc.qpos["vm"] + 1, x)
    k = 0
    for p in range(4):
        ne = 2 if p < 3 else 1
        for mb in range(4):
            tb = 96; ob = 112 + (k % 3) * 4; k += 1
            last = gidx[(15, 4 * p + 3 if p < 3 else 13)] * 8 + mb * 2 + 1
            g = last + 6
            for e in range(ne):
                bi = (p * 2 + e) * 2 if p < 3 else 12
                for i in range(4):
                    sc.flow("hd", g, Ins(f"v_accvgpr_read_b32 v{tb+e*4+i}, a{bi*16+mb*4+i}")); sc.flow("hd", g, Ins(f"v_accvgpr_read_b32 v{tb+8+e*4+i}, a{(bi+1)*16+mb*4+i}"))
            for q in range(4 * ne): sc.flow("hd", g, Ins(f"v_mul_f32 v{tb+q}, v{tb+q}, v{tb+8+q}"))
            for q in range(2 * ne): sc.flow("hd", g, Ins(f"v_cvt_pk_bf16_f32 v{ob+q}, v{tb+2*q}, v{tb+2*q+1}"))
            if p < 3: x = Ins(f"buffer_store_dwordx4 v[{ob}:{ob+3}], v25, s[44:47], s{52+p} offen offset:{mb*1024}{SC}", tag="Hst")
            else: x = Ins(f"buffer_store_dwordx2 v[{ob}:{ob+1}], v25, s[44:47], s3 offen offset:{mb*1024}{SC}", tag="Hst")
            sc.flow("hd", g, x)
    def qfr(qb, be): return 128 + 32 * be + 4 * qb
    for be in range(4):
        g = gidx[(15, 14 + 2 * be + 1)] * 8 + 7 + 6
        for qb in range(4):
            a = qfr(qb, be); b = a + 16
            for r in (a, a + 1, a + 2, a + 3, b, b + 1, b + 2, b + 3): sc.flow("qp", g, Ins(f"v_mul_f32 v{r}, s70, v{r}"))
            for h, r in enumerate((a, a + 2, b, b + 2)): sc.flow("qp", g, Ins(f"v_cvt_pk_bf16_f32 v{a+h}, v{r}, v{r+1}"))
        sw_ = L("s_mov_b64 exec, s[56:57]") + sum([L(f"v_swap_b32 v{qfr(qb, be)}, v{qfr(qb, be)+2}\nv_swap_b32 v{qfr(qb, be)+1}, v{qfr(qb, be)+3}") for qb in range(4)], []) + L("s_mov_b64 exec, -1")
        sc.flowg("qp", len(sc.mf), sw_)
    tail = sc.mid[len(sc.mf)]; nt = []
    i = 0
    while i < len(tail):
        x = tail[i]
        if i + 1 < len(tail) and x.text.startswith("v_mul_f32") and tail[i + 1].text.startswith("v_mul_f32"):
            o1 = [o.strip() for o in x.text[10:].split(",")]; o2 = [o.strip() for o in tail[i + 1].text[10:].split(",")]
            r = int(o1[0][1:])
            if r % 2 == 0 and int(o2[0][1:]) == r + 1:
                if o1[1] == "s70": nt.append(Ins(f"v_pk_mul_f32 v[{r}:{r+1}], v[{r}:{r+1}], s[70:71]"))
                else:
                    q = int(o1[2][1:]); nt.append(Ins(f"v_pk_mul_f32 v[{r}:{r+1}], v[{r}:{r+1}], v[{q}:{q+1}]"))
                i += 2; continue
        nt.append(x); i += 1
    print("G", sc.stats()[:50], "exposed tail instrs", len(nt))
    sc.mid[len(sc.mf)] = stamp() + L("s_nop 7") + nt
    G_ = sc.emit()
    if STAMP and P.get("gst"):
        i = [k for k, x in enumerate(G_) if x.text == "; @IT G"][0]
        G_ = G_[:i] + stamp() + G_[i:]
        i = [k for k, x in enumerate(G_) if x.text == "; @ENDIT G"][0] + 1
        G_ = G_[:i] + stamp() + G_[i:]
    mid = L("""
    v_and_b32 v116, 3, v1
    v_cmp_eq_u32 vcc, 0, v116
    v_mov_b32 v117, 0x3f803f80
    v_lshrrev_b32 v118, 4, v1
    v_cndmask_b32 v112, 0, v117, vcc
    v_cndmask_b32 v113, 0, v117, vcc
    v_cndmask_b32 v114, 0, v117, vcc
    v_cndmask_b32 v115, 0, v117, vcc
    v_and_b32 v119, 15, v1
    """)
    for b in range(4):
        mid += L(f"v_add_u32 v120, {4*b}, v118\nv_xor_b32 v120, v120, v119\nv_lshlrev_b32 v120, 4, v120\nv_lshl_add_u32 v{11+b}, v119, 8, v120\nv_add_u32 v{11+b}, {PAIR[0]:#x}, v{11+b}")
    mid += L(f"s_mov_b32 s100, 0xffff8000\ns_mov_b32 s101, 0x20000\ns_add_u32 s4, s5, {PAIR[0]:#x}")
    mid += stamp()
    late = tr_addr(15, 0, False, 1024, 120) + tr_addr(16, 1, False, 1024, 120)
    late += L(f"v_add_u32 v15, {PAIR[0]+16384+32768:#x}, v15\nv_add_u32 v16, {PAIR[0]+16384+32768:#x}, v16")
    late2 = L(f"""
    v_add_u32 v4, 0x10000, v2
    v_add_u32 v5, 0x10000, v3
    v_add_u32 v6, 0x20000, v2
    v_add_u32 v30, 0x20000, v3
    s_lshr_b32 s48, s34, 3            ; q
    s_and_b32 s49, s34, 7
    s_lshl_b32 s49, s49, 8            ; ct bytes
    s_mul_i32 s71, s48, {896*2048}
    s_mul_i32 s73, s48, {28*4096}
    s_add_u32 s72, s72, s73
    s_lshl_b32 s74, s48, 21
    s_lshl_b32 s73, s34, 14
    s_add_u32 s53, s75, s73           ; O store base
    s_lshl_b32 s73, s48, 17
    s_add_u32 s75, s75, s73
    v_add_u32 v26, 0x1000, v25
    s_mov_b32 s88, 3
    s_mov_b32 s91, 3
    """) + wdma_addr(7, 2048, "0", t0=120, st=63) + L("s_lshl_b32 s63, s48, 6")
    for z in range(4): late2 += L(f"v_xor_b32 v{7+z}, s63, v{7+z}\nv_add_u32 v{7+z}, s49, v{7+z}")
    at = Sched(2)
    qk0 = {}; pv0 = {}
    KR = 11; VR = 15
    def sbl(u, qb, kb): return 144 + 64 * (u % 2) + 32 * kb + 4 * qb
    def kfb(u, kb, be):
        f = (144 if u % 2 else 64) + (kb * 4 + be) * 4
        return f"{'a' if u % 2 else 'v'}[{f}:{f+3}]"
    def qk_list(u, first, kf):
        r = []
        for qb in range(4):
            for kb in range(2):
                d = sbl(u, qb, kb)
                for be in range(4):
                    c = f"v[{d}:{d+3}]" if be else ("0" if first else f"v[{96+qb*4}:{99+qb*4}]")
                    q = qfr(qb, be)
                    r.append(f"{MF} v[{d}:{d+3}], {kf(kb, be)}, v[{q}:{q+3}], {c}")
        return r
    def dborder(u): return [8, 0, 1, 2, 3, 4, 5, 6, 7] if u == 15 else list(range(9))
    def pv_list(u, vf, first=False):
        r = []
        for db in dborder(u):
            for qb in range(4):
                ac = (db * 4 + qb) * 4; pf = sbl(u, qb, 0)
                a = vf(db) if db < 8 else "v[112:115]"
                r.append(f"{MF} a[{ac}:{ac+3}], {a}, v[{pf}:{pf+3}], {'0' if first else f'a[{ac}:{ac+3}]'}")
        return r
    def QK(u):
        qk0[u] = len(at.mf)
        for m in qk_list(u, u == 0, lambda kb, be: kfb(u, kb, be)): at.mfma(m)
    def PV(u):
        pv0[u] = len(at.mf)
        for m in pv_list(u, lambda db: f"v[{32+db*4}:{35+db*4}]", u == 0): at.mfma(m)
    QK(0); QK(1)
    for u in range(14): PV(u); QK(u + 2)
    PV(14); PV(15)
    NU = 16
    def pvpos(u, db): return pv0[u] + dborder(u).index(db) * 4
    kb0 = len(at.mf)
    NT = 30; NN = 25; NBT = 14
    grp = [(n, nb) for n in range(NN) for nb in range(8)] + [(n, nb) for n in range(NN, NT - 2) for nb in range(2, 8)] + [(n, 2 * lam + e) for lam in range(1, 4) for n in (NT - 2, NT - 1) for e in range(2)] + [(n, nb) for n in range(NN, NT) for nb in range(2)]
    g2 = {k: i for i, k in enumerate(grp)}
    def acc2(n, nb, mb):
        r = (nb * 4 + mb) * 4
        return f"v[{128+r}:{131+r}]" if n < NBT else f"a[{r}:{r+3}]"
    for G, (n, nb) in enumerate(grp):
        fb = 64 + (G % 4) * 8
        for mb in range(4):
            for s in range(2):
                ac = acc2(n, nb, mb)
                at.mfma(f"{MF} {ac}, v[{fb+s*4}:{fb+s*4+3}], {b2reg(n, s, mb)}, {'0' if (n in (0, NBT) and s == 0) else ac}")
    def gp(G): return kb0 + 8 * G
    def t0(n): return gp(g2[(n, 0 if n < NN else 2)])
    VLA = 12; ALB = 4
    CHK = pv0[15] + 12
    NIT = 5
    for it in range(1, NIT + 1):
        g = pv0[2 * it] + ALB
        if it == 1: at.used[g] += 2
        else: at.fixed_front(g, L("s_sub_u32 s91, s91, 1\ns_cbranch_scc0 L_A"))
        at.fixed_front(g, Ins("; @IT A" if it < NIT else "; @ENDIT A"))
    at.fixed_front(-10, [W(vm=("KV", 0)), Ins("s_barrier")])
    bpos = {}
    for tau in range(8):
        bpos[tau] = pv0[2 * tau] - VLA - 1
        at.fixed_front(bpos[tau], [W(vm=("KV", min(2 * tau + 2, 15))), Ins("s_barrier")])
    b2 = {}
    for n in range(NT):
        b2[n] = t0(n) - 8 * LA
        at.fixed_front(b2[n], [W(vm=("TW", n)), Ins("s_barrier")])
        at.fixed_back(t0(n), W(vm=("TB", n)))
    for G in range(len(grp)): at.fixed_back(gp(G), W(lg=("P2", G)))
    assert b2[0] > CHK
    for u in range(NU):
        at.fixed_back(qk0[u], W(lg=("K", u, 0)))
        at.fixed_back(qk0[u] + 4, W(lg=("K", u, 1)))
        for db in range(0, 8, 2): at.fixed_back(pvpos(u, db), W(lg=("V", u, db + 1)))
    chk = []
    for qb in range(4): chk += L(f"v_accvgpr_read_b32 v{116+qb}, a{128+qb*4}")
    chk += L(f"""
    v_max3_f32 v124, v116, v117, v118
    s_mov_b32 s62, {P['thr']:#x}
    v_max_f32 v124, v124, v119
    v_cmp_nge_f32 vcc, s62, v124
    s_cbranch_vccnz L_fallback
    L_fb_ret:
    """)
    for qb in range(4): chk += L(f"v_rcp_f32 v{120+qb}, v{116+qb}")
    at.fixed_front(CHK, chk)
    for x in late: at.flow("late", -8, x, deadline=20)
    ev = []; evk = []
    def kreads(u):
        tau = u // 2; sb = PAIR[tau % 5]; r = []
        if u % 2 == 0 and u > 0:
            r.append(L("s_cmp_eq_u32 s88, 2\ns_cselect_b32 s90, s101, s100") if 4 <= u <= 2 * NIT else L("s_mov_b32 s90, s100"))
            r += [Ins(f"v_add_u32 v{x}, s90, v{x}") for x in range(KR, KR + 4)]
        for kb in range(2):
            for be in range(4):
                r.append(Ins(f"ds_read_b128 {kfb(u, kb, be)}, v{KR+be} offset:{((u%2)*2+kb)*4096}", tag=("K", u, kb), rd=(sb, sb + 16384, ("KV", 2 * tau))))
        return r
    def vreads(u, db):
        tau = u // 2; sb = PAIR[tau % 5] + 16384; r = []
        if u % 2 == 0 and db == 0:
            r.append(L("s_cmp_eq_u32 s88, 2\ns_cselect_b32 s59, s101, s100") if 4 <= u <= 2 * NIT else L("s_mov_b32 s59, s100"))
            r += [Ins(f"v_add_u32 v{x}, s59, v{x}") for x in (VR, VR + 1)]
        b32, e = db >> 1, db & 1; f = 32 + db * 4
        for rr in range(2):
            r.append(Ins(f"ds_read_b64_tr_b16 v[{f+rr*2}:{f+rr*2+1}], v{VR+e} offset:{(b32>>1)*8192+(b32&1)*512+(u%2)*4096+rr*2048}", tag=("V", u, db), rd=(sb, sb + 16384, ("KV", 2 * tau + 1))))
        return r
    for i, x in enumerate(kreads(0)): evk.append((-9 + i // 2, 0, x))
    for i, x in enumerate(kreads(1)): evk.append((4 + 2 * (i // 2 * 2), qk0[1] - 4, x))
    for u in range(NU):
        for db in range(8):
            lo = pvpos(u, db) - VLA
            if u >= 1: lo = max(lo, pvpos(u - 1, db) + 4)
            for x in vreads(u, db): ev.append((lo, pvpos(u, db & ~1) - 4, x))
        if u + 2 < NU:
            kr = kreads(u + 2); off = 1 if len(kr) > 8 else 0
            for i, x in enumerate(kr): evk.append((pv0[u] + ALB + 3 + (4 if u % 2 else 3) * ((i + off) // 2), qk0[u + 2] - 4, x))
    def rd2(G):
        n, nb = grp[G]; sb = K2SLOT[n % 10]; fb = 64 + (G % 4) * 8
        b32, e = nb >> 1, nb & 1
        va = [(2, 3), (4, 5), (6, 30)][sb >> 16][e]
        return [Ins(f"ds_read_b64_tr_b16 v[{fb+s*4+rr*2}:{fb+s*4+rr*2+1}], v{va} offset:{(sb & 0xffff)+(b32>>1)*8192+(b32&1)*512+s*4096+rr*2048}", tag=("P2", G), rd=(sb, sb + 16384, ("T", n))) for s in range(2) for rr in range(2)]
    for G in range(len(grp)):
        for i, x in enumerate(rd2(G)): ev.append((gp(G - LA) + i, gp(G - 1) + 2, x))
    ev.sort(key=lambda e: e[0])
    for it in range(1, NIT):
        at.fixed_front(pv0[2 * it] + ALB + 1, L("s_add_u32 s88, s88, 1\ns_cmp_eq_u32 s88, 5\ns_cselect_b32 s88, 0, s88"))
        at.fixed_front(pv0[2 * it] + ALB + 2, L("s_lshl_b32 s89, s88, 15\ns_sub_u32 s89, s4, s89"))
    def maxseq(a, b, t0):
        return [f"v_max3_f32 v{t0}, v{a}, v{a+1}, v{a+2}", f"v_max3_f32 v{t0+1}, v{a+3}, v{b}, v{b+1}", f"v_max3_f32 v{t0}, v{t0}, v{b+2}, v{b+3}", f"v_max_f32 v{t0}, v{t0}, v{t0+1}"]
    def xlane(t0, t1):
        return [f"v_mov_b32 v{t1}, v{t0}", "s_nop 1", f"v_permlane16_swap_b32 v{t0}, v{t1}", f"v_max_f32 v{t0}, v{t0}, v{t1}",
                f"v_mov_b32 v{t1}, v{t0}", "s_nop 1", f"v_permlane32_swap_b32 v{t0}, v{t1}", f"v_max_f32 v{t0}, v{t0}, v{t1}"]
    for q_, lst in (("lds", ev), ("ldsk", evk)):
        for g, dl, x in lst:
            if isinstance(x, list): at.flowg(q_, g, x, deadline=dl, strict=True)
            else: at.flow(q_, g, x, deadline=dl)
    nspin = [0]
    def flagload(tag): return Ins(f"buffer_load_ubyte v125, v28, s[64:67], 0 offen{SC}", tag=tag)
    def fineload(tag): return Ins(f"buffer_load_dword v125, v22, s[64:67], 0 offen{SC}", tag=tag)
    def check_(tag, test, reload):
        k = nspin[0]; nspin[0] += 1
        ool.extend(L(f"L_spin{k}:\ns_mov_b32 s70, 0x40000\nL_spin{k}_l:\n{reload}\ns_waitcnt vmcnt(0)\ns_sub_u32 s70, s70, 1\ns_cbranch_scc1 L_spin{k}_ret\n{test}\ns_cbranch_scc0 L_spin{k}_ret\ns_sleep 1\ns_branch L_spin{k}_l"))
        return [W(vm=tag)] + L(f"{test}\ns_cbranch_scc1 L_spin{k}\nL_spin{k}_ret:")
    def flagcheck(tag, need): return check_(tag, f"v_cmp_gt_u32 vcc, {need}, v125\ns_and_b32 s62, vcc_lo, -1", flagload(0).text)
    def finecheck(tag, mask): return check_(tag, f"v_readfirstlane_b32 s62, v125\ns_and_b32 s62, s62, {mask:#x}\ns_cmp_lg_u32 s62, {mask:#x}", fineload(0).text)
    def pubstore(): return Ins(f"buffer_store_byte v126, v29, s[64:67], 0 offen{SC}", tag="flag")
    def finepub(lam): return Ins(f"buffer_store_byte v126, v23, s[64:67], s{15+lam} offen{SC}", tag="flag")
    def tw(n):
        sb = K2SLOT[n % 10]; sr = 80 if n < NBT else 76
        r = L("s_mov_b32 s71, s74") if n == NBT else []
        r += [Ins(f"s_add_u32 m0, s5, {sb:#x}")]
        r += [Ins(f"buffer_load_dwordx4 v{7+z}, s[{sr}:{sr+3}], s71 offen offset:{z*1024} lds", tag=("TW", n), wr=(sb, sb + 16384, ("T", n))) for z in range(4)]
        return r + L("s_add_u32 s71, s71, 0x20000")
    def tb(n):
        sr = 44 if n < NBT else 40
        r = L("s_mov_b32 s72, s75") if n == NBT else []
        r += [Ins(f"buffer_load_dwordx4 {b2reg(n, s, mb)}, v{25+s}, s[{sr}:{sr+3}], s72 offen offset:{mb*1024}{SC}", tag=("TB", n)) for s in range(2) for mb in range(4)]
        return r + L("s_add_u32 s72, s72, 0x2000")
    def exch(br, lam, store, base, tag):
        r = L(f"s_mov_b32 s58, {br*(16<<20)+lam*16384:#x}")
        for i in range(4):
            rr = f"v[{base+4*i}:{base+4*i+3}]"
            r.append(Ins(f"buffer_store_dwordx4 {rr}, v17, s[64:67], s58 offen offset:{i*1024}{SC}" if store else f"buffer_load_dwordx4 {rr}, v{17+lam}, s[64:67], s58 offen offset:{i*1024}{SC}", tag=tag))
        return r
    vq = []
    vq.append((-9, kvloads(2, False), 3, 48))
    at.front[bpos[0]].insert(0, W(vm="Hst")); at.used[bpos[0]] += 1
    vq.append((bpos[0] + 1, [ASSERT("Hst"), Ins("v_mov_b32 v126, 2"), pubstore()], 0, bpos[0] + 6))
    vq.append((pv0[0] + ALB + 3, kvloads(3, False), 13, pv0[0] + ALB + 125))
    for it in range(1, NIT): vq.append((pv0[2 * it] + ALB + 3, kvloads(it + 3, True), 13, pv0[2 * it] + ALB + 125))
    e0 = pv0[12] + ALB
    if P.get("ct2"):
        c2 = L(f"""
        s_getpc_b64 s[84:85]
        L_pc2:
        s_sub_u32 s84, s84, L_pc2-{NAME}_kernel
        s_subb_u32 s85, s85, 0
        """)
        c3 = L(f"""
        s_lshr_b32 s86, s2, 3
        s_lshl_b32 s86, s86, 2
        s_add_u32 s86, s86, s33
        s_and_b32 s86, s86, 31
        s_lshl_b32 s86, s86, 12
        v_lshl_add_u32 v127, v1, 6, s86
        s_mov_b32 s87, L_code_end-{NAME}_kernel-4
        v_min_u32 v127, s87, v127
        """) + [Ins("global_load_dword v127, v127, s[84:85]", tag="touch")]
        gg_ = pv0[0] + ALB + 130 if P["ct2"] == 1 else e0
        vq.append((gg_, [c2] + c3, 0, gg_ + 1))
    e5 = pv0[10] + ALB
    vq.append((e5 + 1, [flagload("fH")] + tw(0) + tw(1) + tw(2) + tw(3), 6, e5 + 130))
    vq.append((e0 + 1, [flagcheck("fH", 2)] + tb(0) + tb(1), 6, e0 + 130))
    NPW = P["npw"]
    vq.append((pv0[15], sum([tw(n) for n in range(4, NPW)], []), 0, CHK - 1))
    vq.append((CHK + 1, tb(2) + (tb(3) if P['bd'] > 3 else []), 3 if P['bd'] <= 3 else 1, kb0 + 10))
    OC = P["ochk"]; WD = P["wd"]; BD = P["bd"]
    for m in range(0, NT - 2):
        its = []
        if NPW <= m + WD < NT: its += tw(m + WD)
        n = m + BD
        if m == OC: its += [flagcheck("fO", 3)] + sum([tb(k_) for k_ in range(NBT, n + 1)], [])
        elif n < NT and not (NBT <= n and m < OC): its += tb(n)
        if its: vq.append((t0(m) + (11 if m == 0 else 1), its, P["tsp"] if len(its) < 18 else 1, t0(m + 1) - 1))
    vq.append((t0(OC - 2) + 30, [flagload("fO")], 0))
    nmain = len(vq)
    for lam in range(1, 4):
        b = 128 + 32 * lam
        vq.append((t0(NBT + lam - 1) + 10, [Ins(f"v_cvt_pk_bf16_f32 v{b+i}, v{b+2*i}, v{b+2*i+1}") for i in range(16)] + exch(0, lam, True, b, ("Bst", lam)), 10))
    vq.append((t0(NBT + P['bpub']) + 30, [[Ins("v_mov_b32 v126, 1"), W(vm=("Bst", 3))], finepub(1), finepub(2), finepub(3)], 1))
    vq.append((t0(NBT + P['bpub'] + 2) + 10, [fineload("fB")] + [Ins(f"buffer_load_dwordx4 v[{96+mb*4}:{99+mb*4}], v21, s[92:95], s{52+mb} offen", tag="xld") for mb in range(4)], 4))
    vq.append((t0(NN + 1), [finecheck("fB", 0x01010100)] + sum([exch(0, lam, False, 144 + 32 * lam, ("Bld", lam)) for lam in range(1, 4)], []), 5))
    for lam in range(1, 4):
        g = gp(g2[(NT - 1, 2 * lam + 1)]) + 8 + 5
        its = []
        for i in range(0, 32, 8):
            its += [Ins(f"v_accvgpr_read_b32 v{112+q}, a{32*lam+i+q}") for q in range(8)] + [Ins(f"v_cvt_pk_bf16_f32 v{128+32*lam+i//2+q}, v{112+2*q}, v{113+2*q}") for q in range(4)]
        vq.append((g, its + exch(1, lam, True, 128 + 32 * lam, ("Sst", lam)), 2))
    gk = gp(g2[(NN, 0)])
    vy = []
    for lam in range(1, 4):
        vy.append((gk + P["pub5"] - (3 - lam) * 32, [[Ins("v_mov_b32 v126, 3"), W(vm=("Sst", lam))], finepub(lam)], 0))
    vy.append((gk + P["pub5"] - 1, [fineload("f51")], 0))
    for Q, lst in (("vm", sorted(vq[:nmain], key=lambda e: e[0])), ("vx", sorted(vq[nmain:], key=lambda e: e[0])), ("vy", sorted(vy, key=lambda e: e[0]))):
        if Q == "vx":
            for g in range(t0(NN), len(at.mf)): at.capo[g] = 3
        for g, its, sp, *dl in lst:
            dl = dl[0] if dl else None
            for x in its:
                if dl is not None: g = min(g, dl)
                if isinstance(x, list): g = at.flowg(Q, g, x, deadline=dl)
                elif x.kind == "comment":
                    g = max(g, at.qpos.get(Q, g)); at.mid[g].append(x); at.qpos[Q] = g
                elif Q == "vm": g = vflow(at, g, [x], sp, dl)
                else: g = at.flow(Q, g, x, deadline=dl) + (sp if x.kind == "vmem" else 0)
    rdy0 = {}
    for qb in range(4):
        a, b = sbl(0, qb, 0), sbl(0, qb, 1); t0_ = 116 + (qb % 2) * 2; g = qb * 8 + 7 + 6
        seq = maxseq(a, b, t0_) + xlane(t0_, t0_ + 1) + [f"v_sub_f32 v{96+qb*4+i}, 0, v{t0_}" for i in range(4)] + [f"v_sub_f32 v{r}, v{r}, v{t0_}" for r in list(range(a, a + 4)) + list(range(b, b + 4))]
        for i, s_ in enumerate(seq): at.flow("mx", g, Ins(s_), deadline=(qk0[1] + qb * 8 - 2 if i < 16 else pv0[0] - 6))
        rdy0[qb] = at.qpos["mx"] + 1
    exps = []
    for u in range(NU):
        w0 = pv0[u - 1] + ALB if 1 <= u <= 2 * NIT + 1 else 0
        for i in range(32):
            qb, rem = divmod(i, 8)
            ready = qk0[u] + qb * 8 + (rem // 4) * 4 + 3 + 6
            if u == 0: ready = max(ready, rdy0[qb])
            exps.append((max(ready, w0), u, i))
    ei = 0; pend = []
    def put(g, x): at.mid[g].append(x); at.used[g] += x.cost
    for g in range(0, kb0):
        def do_exp():
            nonlocal ei
            _, u, i = exps[ei]; ei += 1
            qb, rem = divmod(i, 8); r = sbl(u, qb, rem // 4) + rem % 4
            put(g, Ins(f"v_exp_f32 v{r}, v{r}"))
            if i % 2: pend.append((g + 1, u, Ins(f"v_cvt_pk_bf16_f32 v{sbl(u, qb, 0)+rem//2}, v{r-1}, v{r}")))
        while ei < len(exps) and pv0[exps[ei][1]] - 2 <= g: do_exp()
        while pend and pv0[pend[0][1]] - 1 <= g: put(g, pend.pop(0)[2])
        nr = sum(1 for p_ in pend if p_[0] <= g)
        if at.used[g] == 0 and ei < len(exps) and exps[ei][0] <= g and nr < 4: do_exp()
        while at.used[g] < 2 and pend and pend[0][0] <= g: put(g, pend.pop(0)[2])
    assert ei == len(exps) and not pend
    for x in late2: at.flow("late", pv0[0] + 1, x, deadline=pv0[2] + ALB - 1)
    for g in range(CHK + 2, t0(4)): at.capo[g] = P["ocap"]
    for x in L("s_add_u32 s54, s53, 4096\ns_add_u32 s55, s53, 8192\ns_add_u32 s3, s53, 12288"): at.flow("od", CHK + 1, x)
    k = 0
    for b32 in range(4):
        for qb in range(4):
            tb_ = 96 + (k % 2) * 8; ob = 112 + (k % 2) * 4; k += 1
            g = max(pvpos(15, 2 * b32 + 1) + 4 + 8, kb0 - 8 + (k - 1) * P["osp"])
            for e in range(2):
                for i in range(4): at.flow("od", g, Ins(f"v_accvgpr_read_b32 v{tb_+e*4+i}, a{((b32*2+e)*4+qb)*4+i}"))
            for q in range(8): at.flow("od", g, Ins(f"v_mul_f32 v{tb_+q}, v{tb_+q}, v{120+qb}"))
            for q in range(4): gq = at.flow("od", g, Ins(f"v_cvt_pk_bf16_f32 v{ob+q}, v{tb_+2*q}, v{tb_+2*q+1}"))
            at.flow("od", gq, Ins(f"buffer_store_dwordx4 v[{ob}:{ob+3}], v25, s[40:43], {['s53','s54','s55','s3'][b32]} offen offset:{qb*1024}{SC}", tag="Ost"))
    npub = [n for n in range(NN) if b2[n] > at.qpos["od"] + 40][0]
    print("O drain ends at K2 tile", (at.qpos["od"] - kb0) / 64, "publish at b2", npub)
    at.front[b2[npub]].insert(0, W(vm="Ost")); at.used[b2[npub]] += 1
    for x in [ASSERT("Ost"), Ins("v_mov_b32 v126, 3"), pubstore()]: at.flow("od", b2[npub] + 1, x)
    xa = L(f"""
    s_lshl_b32 s62, s32, 5
    s_add_u32 s62, s62, s34           ; gid
    s_lshl_b32 s63, s62, 16
    s_lshl_b32 s4, s33, 12
    s_add_u32 s63, s63, s4
    v_add_u32 v17, s63, v25
    v_xor_b32 v18, {8<<16:#x}, v17
    v_xor_b32 v19, {16<<16:#x}, v17
    v_xor_b32 v20, {24<<16:#x}, v17
    s_lshl_b32 s62, s62, 7
    s_lshl_b32 s4, s33, 2
    s_add_u32 s62, s62, s4
    s_add_u32 s62, s62, {MB_REL+32:#x}
    v_mov_b32 v22, s62
    s_xor_b32 s16, s62, {(8<<7)+1:#x}
    s_xor_b32 s17, s62, {(16<<7)+2:#x}
    s_xor_b32 s18, s62, {(24<<7)+3:#x}
    v_cmp_eq_u32 vcc, 0, v1
    v_mov_b32 v23, 0x7ff00000
    v_and_b32 v21, 15, v1
    v_cndmask_b32 v23, v23, 0, vcc
    s_lshl_b32 s62, s32, 8
    s_lshl_b32 s63, s33, 6
    s_add_u32 s62, s62, s63
    v_add_u32 v21, s62, v21
    v_lshlrev_b32 v21, 11, v21
    v_lshrrev_b32 v24, 4, v1
    v_lshl_add_u32 v21, v24, 4, v21
    s_lshl_b32 s62, s48, 6
    s_add_u32 s62, s62, s49
    v_add_u32 v21, s62, v21
    s_mov_b32 s52, 0
    s_mov_b32 s53, 0x8000
    s_mov_b32 s54, 0x10000
    s_mov_b32 s55, 0x18000
    s_mov_b32 s68, 0xbfb8aa3b
    s_mov_b32 s69, 0xffff0000
    """)
    assert at.qpos["od"] < t0(OC - 2)
    for x in xa: at.flow("od", at.qpos["od"], x, deadline=t0(OC - 1))
    def unp(d, src, i): return Ins(f"v_lshlrev_b32 v{d}, 16, v{src+i//2}" if i % 2 == 0 else f"v_and_b32 v{d}, s69, v{src+i//2}")
    fin = [W(vm=("Bld", 3)), Ins("s_mov_b32 s16, s68"), Ins("s_mov_b32 s17, s68")]
    for lam in range(1, 4):
        for i in range(32): fin.append(unp(32 + i, 144 + 32 * lam, i))
        for i in range(0, 32, 2): fin += L(f"v_pk_add_f32 v[{128+i}:{129+i}], v[{128+i}:{129+i}], v[{32+i}:{33+i}]")
    for i0 in range(0, 32, 4):
        tmp = 112 + (i0 // 4 % 2) * 4; r = 128 + i0
        for i in (0, 2): fin += L(f"v_pk_mul_f32 v[{tmp+i}:{tmp+i+1}], v[{r+i}:{r+i+1}], s[16:17]")
        for i in range(4): fin += L(f"v_exp_f32 v{tmp+i}, v{tmp+i}")
        for i in range(4): fin += L(f"v_add_f32 v{tmp+i}, 1.0, v{tmp+i}")
        for i in range(4): fin += L(f"v_rcp_f32 v{tmp+i}, v{tmp+i}")
        fin += L("s_nop 0")
        for i in (0, 2): fin += L(f"v_pk_mul_f32 v[{r+i}:{r+i+1}], v[{r+i}:{r+i+1}], v[{tmp+i}:{tmp+i+1}]")
    fin += L("s_mov_b64 exec, s[56:57]") + sum([L(f"v_swap_b32 v{96+mb*4}, v{98+mb*4}\nv_swap_b32 v{97+mb*4}, v{99+mb*4}") for mb in range(4)], []) + L("s_mov_b64 exec, -1")
    for mb in range(4):
        for q in range(8): fin.append(unp(160 + ((q // 4) * 4 + mb) * 4 + q % 4, 96 + mb * 4, q))
    print("attn+k2", [(i, at.used[i]) for i in range(-12, kb0 + 20) if at.used[i] > 2], "pv0", pv0, "qk0", qk0, "CHK", CHK, "kb0", kb0)
    A_ = at.emit()
    if STAMP and P.get("ast"):
        i = [k for k, x in enumerate(A_) if x.text == "; @IT A"][0]
        A_ = A_[:i] + stamp() + A_[i:]
        i = [k for k, x in enumerate(A_) if x.text == "; @ENDIT A"][0] + 1
        A_ = A_[:i] + stamp() + A_[i:]
    if STAMP:
        for m_ in (kb0, t0(5), t0(NN)) + ((gp(g2[(NT - 2, 2)]), gk) if P.get("tst") else ()):
            i = [k for k, x in enumerate(A_) if x is at.mf[m_]][0]
            A_ = A_[:i] + stamp() + A_[i:]
    nf = P["fsplit"]
    sd = {1: 192, 2: 224, 3: 208}
    nb_ = 3 + 3 * 48
    epi = stamp() + L("s_nop 7") + fin[:100] + finecheck("f51", 0x00020200) + exch(1, 1, False, sd[1], ("Sld", 1)) + exch(1, 2, False, sd[2], ("Sld", 2))
    epi += fin[100:nf] + [fineload("f5")] + fin[nf:] + finecheck("f5", 0x02000000) + exch(1, 3, False, sd[3], ("Sld", 3))
    epi += stamp()
    for i in range(32): epi += L(f"v_accvgpr_read_b32 v{64+i}, a{i}")
    for lam in range(1, 4):
        epi += [W(vm=("Sld", lam))]
        for i in range(32): epi += [unp(32 + i, sd[lam], i)]
        for i in range(0, 32, 2): epi += L(f"v_pk_add_f32 v[{64+i}:{65+i}], v[{64+i}:{65+i}], v[{32+i}:{33+i}]")
    epi += stamp()
    for mb in range(4):
        for e in range(2):
            for h in range(2):
                i = (e * 4 + mb) * 4 + 2 * h
                epi += L(f"v_pk_fma_f32 v[{160+i}:{161+i}], v[{64+i}:{65+i}], v[{128+i}:{129+i}], v[{160+i}:{161+i}]")
        r = 96 + mb * 4
        for e in range(2):
            for h in range(2):
                i = (e * 4 + mb) * 4 + 2 * h
                epi += L(f"v_cvt_pk_bf16_f32 v{r+e*2+h}, v{160+i}, v{161+i}")
        epi += L(f"s_mov_b64 exec, s[56:57]\nv_swap_b32 v{r}, v{r+2}\nv_swap_b32 v{r+1}, v{r+3}\ns_mov_b64 exec, -1")
        epi += L(f"buffer_store_dwordx4 v[{r}:{r+3}], v21, s[96:99], s{52+mb} offen")
    epi += L("s_waitcnt vmcnt(0)") * STAMP + stamp() + stamp_store()
    epi += L("L_end:\ns_endpgm")
    vcur = PAIR[7 % 5] + 16384; kcur = PAIR[7 % 5]
    fbk = L(f"""
    L_fallback:
    s_waitcnt vmcnt(0) lgkmcnt(0)
    s_nop 7
    s_lshl_b32 s62, s33, 13
    s_add_u32 s88, s62, {FBSLOT0:#x}
    s_and_b32 s62, s33, 1
    s_lshl_b32 s62, s62, 13
    s_lshr_b32 s63, s33, 1
    s_lshl_b32 s63, s63, 7
    s_add_u32 s62, s62, s63
    """)
    for z in range(4): fbk += L(f"v_subrev_u32 v{17+z}, s5, v{17+z}\nv_subrev_u32 v{21+z}, s62, v{21+z}")
    fbk += L(f"s_sub_u32 s62, s88, {kcur:#x}")
    for b in range(4): fbk += L(f"v_add_u32 v{KR+b}, s62, v{KR+b}")
    fbk += L(f"s_sub_u32 s62, s88, {vcur:#x}\nv_add_u32 v116, s62, v{VR}\nv_add_u32 v117, s62, v{VR+1}")
    for qb in range(4): fbk += L(f"v_mov_b32 v{120+qb}, 0xff800000")
    def fb_k(first):
        o = []
        for kb in range(2):
            o += L(f"s_add_u32 m0, s88, {kb*4096}\ns_add_u32 s89, s55, {kb*4096}")
            for z in range(4): o += L(f"buffer_load_dwordx4 v{17+z}, s[28:31], s89 offen offset:{z*1024} lds")
        o += L("s_waitcnt vmcnt(0)")
        for kb in range(2):
            for be in range(4): o += L(f"ds_read_b128 {kfb(0, kb, be)}, v{KR+be} offset:{kb*4096}")
        o += L("s_waitcnt lgkmcnt(0)")
        o += L("\n".join(qk_list(1, first, lambda kb, be: kfb(0, kb, be)))) + L("s_nop 7")
        return o
    fbk += L("s_mov_b32 s55, 0\nL_fb1:") + fb_k(True)
    for qb in range(4):
        fbk += L("\n".join(maxseq(sbl(1, qb, 0), sbl(1, qb, 1), 118))) + L(f"v_max_f32 v{120+qb}, v{120+qb}, v118")
    fbk += L("s_add_u32 s55, s55, 0x2000\ns_cmp_lt_u32 s55, 0x20000\ns_cbranch_scc1 L_fb1")
    for qb in range(4):
        fbk += L("\n".join(xlane(120 + qb, 118)))
        for i in range(4): fbk += L(f"v_sub_f32 v{96+qb*4+i}, 0, v{120+qb}")
    for i in range(144): fbk += L(f"v_accvgpr_write_b32 a{i}, 0")
    fbk += L("s_mov_b32 s55, 0\nL_fb2:")
    fbk += fb_k(False)
    for bp in range(2):
        fbk += L(f"s_add_u32 m0, s88, {bp*4096}\ns_add_u32 s89, s55, {bp*128}")
        for z in range(4): fbk += L(f"buffer_load_dwordx4 v{21+z}, s[36:39], s89 offen offset:{z*1024} lds")
    fbk += L("s_waitcnt vmcnt(0)")
    for db in range(8):
        b32, e = db >> 1, db & 1
        for rr in range(2): fbk += L(f"ds_read_b64_tr_b16 a[{144+db*4+rr*2}:{145+db*4+rr*2}], v{116+e} offset:{(b32>>1)*4096+(b32&1)*512+rr*2048}")
    for qb in range(4):
        for kb in range(2):
            for i in range(4): fbk += L(f"v_exp_f32 v{sbl(1, qb, kb)+i}, v{sbl(1, qb, kb)+i}")
    for qb in range(4):
        for h in range(4): fbk += L(f"v_cvt_pk_bf16_f32 v{sbl(1, qb, 0)+h}, v{sbl(1, qb, h//2)+(h%2)*2}, v{sbl(1, qb, h//2)+(h%2)*2+1}")
    pl = pv_list(15, lambda db: f"a[{144+db*4}:{147+db*4}]")
    nfirst = CHK - pv0[15]
    fbk += L("s_waitcnt lgkmcnt(0)") + L("\n".join(pl[:nfirst]))
    fbk += L("s_add_u32 s55, s55, 0x2000\ns_cmp_lt_u32 s55, 0x20000\ns_cbranch_scc0 L_fb_done") + L("\n".join(pl[nfirst:])) + L("s_branch L_fb2\nL_fb_done:\ns_nop 7")
    for qb in range(4): fbk += L(f"v_accvgpr_read_b32 v{116+qb}, a{128+qb*4}")
    fbk += L("s_branch L_fb_ret")
    errs = check(fbk, "fb")
    assert not errs, "\n".join(errs[:30])
    full = resolve_waits(fix_m0(pro + G_ + mid + A_ + epi))
    full, prog = collapse(full)
    errs = check(full, "fused")
    assert not errs, "\n".join(errs[:30])
    def keep(x):
        t = x.tag
        if isinstance(t, tuple):
            if P.get("ablTW") and t[0] == "TW" and t[1] >= 5: return False
            if P.get("ablTB") and t[0] == "TB" and t[1] >= 5: return False
            if P.get("ablE") and t[0] in ("Bst", "Bld"): return False
        if P.get("noOst") and t == "Ost": return False
        return True
    prog = [x for x in prog if keep(x)]
    return dict(name=NAME + "_kernel", body=text(prog + ool + fbk + L("L_code_end:")), grid=256, block=256, lds=163840, vgpr=512, accum=256, sgpr=102)

if __name__ == "__main__":
    STAMP = "stamp" in sys.argv
    open("t_r.s", "w").write(build_file([gen_fused()]))
    for v in sys.argv[1:]:
        if v == "stamp": continue
        P = {}
        for kv in v.split(","):
            k, _, val = kv.partition("="); P[k] = int(val, 0) if val else 1
        open("t_r_" + v.replace(",", "_").replace("=", "") + ".s", "w").write(build_file([gen_fused(P)]))
```

```python
import sys, struct, math
from gen_core import *
from asmlib import build_file, NAME
from gen import srd, tr_addr, wdma_addr, lane_consts, MF
XN_OFF = 0; O_OFF = 4 << 20; H_OFF = 20 << 20; EX_OFF = 36 << 20; MB_REL = 32 << 20; TS_OFF = 104 << 20
STG = 45056
GST = [0, 90112, 45056]
PAIR = [131072, 98304, 65536, 32768, 0]
K2SLOT = [0, 16384, 32768, 49152, 131072, 147456, 98304, 114688, 65536, 81920]
FBSLOT0 = 98304
BRING = [[('a', 176 + 4 * i) for i in range(8)], [('a', 208 + 4 * i) for i in range(8)], [('a', 144 + 4 * i) for i in range(8)],
         [('a', 240 + 4 * i) for i in range(4)] + [('a', 128 + 4 * i) for i in range(4)], [('v', 32 + 4 * i) for i in range(8)]]
def b2reg(n, s, mb):
    k, b = BRING[n % 5][s * 4 + mb]
    return f'{k}[{b}:{b+3}]'
f2u = lambda f: struct.unpack("<I", struct.pack("<f", f))[0]
QSCALE = f2u(math.log2(math.e) / math.sqrt(128.0))
LNLDS = 163840 - 512
STAMP = False
SC = " sc1"
NST = [0]
def stamp():
    if not STAMP: return []
    k = NST[0]; NST[0] += 1
    return L(f"s_memtime s[84:85]\ns_memrealtime s[86:87]\ns_waitcnt lgkmcnt(0)\nv_writelane_b32 v0, s84, {2*k}\nv_writelane_b32 v0, s86, {2*k+1}")
def stamp_store():
    if not STAMP: return []
    t = srd(8, 60, 61, 1 << 20, TS_OFF)
    t += L("s_lshl_b32 s62, s2, 10\ns_lshl_b32 s63, s33, 8\ns_add_u32 s62, s62, s63\nv_lshlrev_b32 v1, 2, v1\nv_add_u32 v1, s62, v1\nbuffer_store_dword v0, v1, s[8:11], 0 offen")
    return t
def once(lst):
    for x in lst: x.once = True
    return lst
def ASSERTD(tag):
    x = Ins("; @ASSERTD"); x.vm = tag; return x
def ASSERT(tag):
    x = Ins("; @ASSERT"); x.vm = tag; return x

def gen_fused(P=None):
    P = dict(dict(LA=2, LA2=4, thr=f2u(2.0 ** 24), touch0=0, touch=4, ocap=3, slp0=0, slp=2, xsp=3, wsp=5, lb=56, ctouch=4, order=2, sync=1, pre=1, tg=0, tkv=0, pad=0, ectouch=0, ochk=11, tsp=3, pub5=78, bpub=6, fsplit=200, npw=6, ct2=1, wd=4, bd=4, fl5=12, osp=16), **(P or {}))
    NST[0] = 0
    LA = P["LA"]; LA2 = P["LA2"]
    ool = []
    pro = L("""
    s_cmp_ge_u32 s2, 256
    s_cbranch_scc1 L_end
    s_load_dwordx2 s[92:93], s[0:1], 0      ; x
    s_load_dwordx4 s[48:51], s[0:1], 8      ; K, V
    s_load_dwordx4 s[52:55], s[0:1], 24
    s_load_dwordx4 s[56:59], s[0:1], 48
    s_load_dwordx4 s[72:75], s[0:1], 64
    s_load_dwordx4 s[60:63], s[0:1], 80
    """)
    pro += lane_consts()
    pro += L("""
    s_lshr_b32 s34, s2, 3
    s_and_b32 s35, s2, 1
    s_lshl_b32 s35, s35, 2
    s_and_b32 s32, s34, 3
    s_add_u32 s32, s32, s35           ; rb
    s_bfe_u32 s35, s2, 0x20001
    s_lshr_b32 s34, s34, 2
    s_lshl_b32 s3, s35, 3
    s_add_u32 s34, s34, s3            ; j
    s_lshl_b32 s3, s32, 5
    s_add_u32 s3, s3, s34
    s_lshl_b32 s4, s3, 3
    v_and_b32 v32, 7, v1
    v_add_u32 v33, s4, v32            ; row
    v_lshlrev_b32 v34, 11, v33
    v_lshrrev_b32 v35, 3, v1
    s_lshl_b32 s4, s33, 3
    v_add_u32 v35, s4, v35            ; kstep s
    v_lshl_add_u32 v34, v35, 6, v34
    s_mov_b32 s94, 0x400000
    s_mov_b32 s95, 0x20000
    s_waitcnt lgkmcnt(0)
    """)
    for i in range(4): pro += [Ins(f"buffer_load_dwordx4 v[{64+4*i}:{67+4*i}], v34, s[92:95], 0 offen offset:{16*i}", tag="x")]
    pro += stamp()
    defer = []
    dst = (lambda: pro) if P["ectouch"] else (lambda: defer)
    if P["ctouch"]:
        pro += L(f"""
        s_getpc_b64 s[72:73]
        """) * 0
        dst().extend(L(f"""
        s_getpc_b64 s[84:85]
        L_pc:
        s_sub_u32 s84, s84, L_pc-{NAME}_kernel
        s_subb_u32 s85, s85, 0
        s_lshr_b32 s86, s2, 3
        s_lshl_b32 s86, s86, 2
        s_add_u32 s86, s86, s33
        s_and_b32 s86, s86, 31
        s_lshl_b32 s86, s86, 12
        v_lshl_add_u32 v124, v1, 6, s86
        s_mov_b32 s87, L_code_end-{NAME}_kernel-4
        v_min_u32 v124, s87, v124
        """) + [Ins("global_load_dword v124, v124, s[84:85]", tag="touch")])
    pro += L("s_mov_b32 s44, s60\ns_mov_b32 s45, s61\ns_mov_b32 s46, 256\ns_mov_b32 s47, 0x20000\ns_mov_b32 s60, s62\ns_mov_b32 s61, s63")
    pro += L("s_lshl_b32 s62, s34, 8")
    pro += wdma_addr(7, 8192, "s62", t0=36, st=63)
    pro += L(f"""
    s_lshr_b32 s62, s34, 1
    s_mul_i32 s62, s62, 448
    s_and_b32 s63, s34, 1
    s_lshl_b32 s70, s63, 8
    s_add_u32 s70, s70, s62           ; colP
    s_lshl_b32 s71, s63, 5
    s_add_u32 s71, s71, s62
    s_add_u32 s71, s71, 192           ; colX
    v_lshrrev_b32 v36, 5, v1
    v_lshlrev_b32 v36, 3, v36
    v_bfe_u32 v37, v1, 2, 3
    v_add_u32 v36, v36, v37
    s_lshl_b32 s62, s33, 4
    v_add_u32 v36, s62, v36
    s_movk_i32 s62, 7168
    v_mul_lo_u32 v11, v36, s62
    v_bfe_u32 v36, v1, 4, 1
    v_lshlrev_b32 v36, 1, v36
    v_and_b32 v37, 3, v1
    v_xor_b32 v36, v36, v37
    v_lshl_add_u32 v11, v36, 4, v11
    s_add_u32 s70, s70, 4096
    v_add_u32 v11, s70, v11
    v_subrev_u32 v12, 960, v11
    v_subrev_u32 v13, 1920, v11
    v_lshrrev_b32 v36, 1, v1
    s_and_b32 s63, s33, 1
    s_lshl_b32 s63, s63, 5
    v_add_u32 v36, s63, v36
    v_mul_lo_u32 v14, v36, s62
    v_and_b32 v37, 1, v1
    v_lshl_add_u32 v14, v37, 4, v14
    s_add_u32 s71, s71, 4096
    v_add_u32 v14, s71, v14
    s_lshl_b32 s5, s33, 12
    s_mul_i32 s6, s33, 3072
    s_lshl_b32 s7, s33, 10
    """)
    pro += srd(8, 52, 53, 8 << 20) + srd(12, 56, 57, (7 << 20) + 4096, -4096) + srd(16, 58, 59, (7 << 20) + 4096, -4096)
    pro += L("s_cmp_lt_u32 s33, 2\ns_cselect_b32 s20, s12, s16\ns_cselect_b32 s21, s13, s17") + L(f"s_mov_b32 s22, {(7<<20)+4096:#x}\ns_mov_b32 s23, 0x20000")
    pro += srd(76, 54, 55, 8 << 20) + srd(80, 72, 73, 7 << 20) + srd(96, 74, 75, 4 << 20)
    pro += L("s_mov_b32 s52, 0\ns_mov_b32 s53, 0\ns_mov_b32 s54, 0")
    pro += L(f"s_mov_b32 s90, {GST[0]}\ns_mov_b32 s88, {GST[1]}\ns_mov_b32 s89, {GST[2]}")
    def wloads(t):
        sb = GST[t % 3]
        reg = (sb, sb + STG, ("G", t)); tag = ("W", t)
        r = [Ins("s_add_u32 m0, s5, s90")]
        r += [Ins(f"buffer_load_dwordx4 v{7+z}, s[8:11], s52 offen offset:{z*1024} lds", tag=tag, wr=reg) for z in range(4)]
        r += [Ins("s_add_u32 s100, s6, s90"), Ins("s_add_u32 m0, s100, 16384")]
        r += [Ins(f"buffer_load_dwordx4 v{11+z}, s[12:15], s53 offen offset:{z*1024} lds", tag=tag, wr=reg) for z in range(3)]
        r += [Ins("s_add_u32 m0, s100, 28672")]
        r += [Ins(f"buffer_load_dwordx4 v{11+z}, s[16:19], s53 offen offset:{z*1024} lds", tag=tag, wr=reg) for z in range(3)]
        r += [Ins("s_add_u32 s100, s7, s90"), Ins("s_add_u32 m0, s100, 40960")]
        r += [Ins(f"buffer_load_dwordx4 v14, s[20:23], s53 offen lds", tag=tag, wr=reg)]
        r += [Ins("s_add_u32 s52, s52, 0x80000"), Ins("s_add_u32 s53, s53, 0x70000")]
        r += L("s_mov_b32 s100, s90\ns_mov_b32 s90, s88\ns_mov_b32 s88, s89\ns_mov_b32 s89, s100")
        return r
    def breg(t, s, mb):
        k = (s * 4 + mb) * 4
        return f"v[{64+k}:{67+k}]" if t % 2 == 0 else f"a[{224+k}:{227+k}]"
    def xloads(t):
        r = [Ins(f"buffer_load_dwordx4 {breg(t, s, mb)}, v{15+s}, s[24:27], s54 offen offset:{mb*1024}{SC}", tag=("X", t) if t else ("X0", mb * 2 + s)) for mb in range(4) for s in range(2)]
        r += [Ins("s_add_u32 s54, s54, 0x2000")]
        return r
    wl0 = wloads(0); wl1 = wloads(1); late_w1 = []
    if P['order'] == 1: defer[:0] = wl0 + wl1
    elif P['order'] == 2: pro += wl0; defer[:0] = wl1
    elif P['order'] == 3: defer[:0] = wl0; late_w1 = wl1
    elif P['order'] == 4: pro += wl0; late_w1 = wl1
    elif P['order'] == 5: pro += wl0; defer[:0] = wl1
    else: pro += wl0 + wl1
    pro += L("""
    s_lshl_b32 s62, s2, 2
    s_add_u32 s62, s62, s33
    s_lshl_b32 s63, s62, 12
    v_lshlrev_b32 v31, 6, v1
    v_add_u32 v31, s63, v31
    s_lshl_b32 s63, s62, 10
    v_and_b32 v30, 15, v1
    v_lshlrev_b32 v30, 6, v30
    v_add_u32 v30, s63, v30
    """)
    if P["touch"] == 4:
        pro += L("s_mul_i32 s63, s62, 1280\nv_min_u32 v31, 9, v1\nv_lshlrev_b32 v31, 7, v31\nv_add_u32 v31, s63, v31")
    def touch(v, sr, off):
        return [Ins(f"s_mov_b32 s62, {off:#x}"), Ins(f"buffer_load_dword v127, v{v}, s[{sr}:{sr+3}], s62 offen", tag="touch")]
    if P["touch0"]:
        defer.extend(touch(30, 8, 128 * 8192) + touch(30, 12, 4096 + 128 * 7168) + touch(30, 16, 4096 + 128 * 7168))
    pro += srd(64, 60, 61, MB_REL + 32768, EX_OFF)
    pro += L(f"""
    s_lshl_b32 s62, s3, 7
    s_add_u32 s62, s62, {MB_REL:#x}
    v_and_b32 v36, 31, v1
    v_add_u32 v28, s62, v1
    s_lshl_b32 s62, s32, 12
    s_add_u32 s62, s62, s34
    s_add_u32 s62, s62, {MB_REL:#x}
    v_lshl_add_u32 v29, v36, 7, s62
    v_mov_b32 v37, 0x7fff0000
    v_lshrrev_b32 v38, 5, v1
    v_or_b32 v38, s33, v38
    v_cmp_eq_u32 vcc, 0, v38
    v_mov_b32 v126, 0
    s_nop 0
    v_cndmask_b32 v29, v37, v29, vcc
    s_cmp_eq_u32 s33, 0
    s_cselect_b32 s70, 0, 0x40000000
    v_or_b32 v38, s33, v1
    v_cmp_eq_u32 vcc, 0, v38
    v_mov_b32 v36, s3
    s_lshl_b32 s62, s32, 5
    v_cndmask_b32 v27, v37, v36, vcc
    v_and_b32 v26, 31, v1
    v_add_u32 v26, s62, v26
    """)
    if P.get("lnst"): pro += stamp()
    pro += L(f"s_mov_b32 s62, 0xffff0000") + [W(vm="x")]
    if P.get("lnst"): pro += stamp()
    for e in range(32):
        pro += L(f"v_lshlrev_b32 v{80+e}, 16, v{64+e//2}" if e % 2 == 0 else f"v_and_b32 v{80+e}, s62, v{64+e//2}")
    def red8(v):
        return L(f"""
        s_nop 1
        v_add_f32_dpp v{v}, v{v}, v{v} row_ror:8 row_mask:0xf bank_mask:0xf
        v_mov_b32 v40, v{v}
        s_nop 1
        v_permlane16_swap_b32 v{v}, v40
        v_add_f32 v{v}, v{v}, v40
        v_mov_b32 v40, v{v}
        s_nop 1
        v_permlane32_swap_b32 v{v}, v40
        v_add_f32 v{v}, v{v}, v40
        """)
    pro += L("v_pk_add_f32 v[36:37], v[80:81], v[82:83]\nv_pk_add_f32 v[38:39], v[84:85], v[86:87]")
    for e in range(8, 32, 4): pro += L(f"v_pk_add_f32 v[36:37], v[36:37], v[{80+e}:{81+e}]\nv_pk_add_f32 v[38:39], v[38:39], v[{82+e}:{83+e}]")
    pro += L("v_pk_add_f32 v[36:37], v[36:37], v[38:39]\nv_add_f32 v36, v36, v37") + red8(36) + L("v_mul_f32 v36, 0x3b800000, v36\nv_mov_b32 v52, 0\nv_mov_b32 v53, 0\nv_mov_b32 v54, 0\nv_mov_b32 v55, 0")
    for e in range(0, 32, 4):
        pro += L(f"""v_pk_add_f32 v[44:45], v[{80+e}:{81+e}], v[36:37] op_sel_hi:[1,0] neg_lo:[0,1] neg_hi:[0,1]
        v_pk_add_f32 v[46:47], v[{82+e}:{83+e}], v[36:37] op_sel_hi:[1,0] neg_lo:[0,1] neg_hi:[0,1]
        v_pk_fma_f32 v[52:53], v[44:45], v[44:45], v[52:53]
        v_pk_fma_f32 v[54:55], v[46:47], v[46:47], v[54:55]""")
    pro += L("v_pk_add_f32 v[52:53], v[52:53], v[54:55]\nv_add_f32 v37, v52, v53") + red8(37)
    pro += L(f"""
    v_lshlrev_b32 v38, 5, v32
    v_add_u32 v38, {LNLDS:#x}, v38
    s_lshl_b32 s63, s33, 3
    v_add_u32 v39, s63, v38
    ds_write_b64 v39, v[36:37]
    s_waitcnt lgkmcnt(0)
    s_barrier
    ds_read_b128 v[44:47], v38
    ds_read_b128 v[48:51], v38 offset:16
    v_lshrrev_b32 v42, 6, v33
    v_lshlrev_b32 v42, 17, v42
    v_lshl_add_u32 v42, v35, 12, v42
    v_bfe_u32 v43, v33, 4, 2
    v_lshl_add_u32 v42, v43, 10, v42
    v_and_b32 v43, 15, v33
    v_lshl_add_u32 v42, v43, 4, v42
    """)
    pro += srd(24, 60, 61, 4 << 20, XN_OFF)
    pro += L("""
    s_waitcnt lgkmcnt(0)
    v_add_f32 v36, v44, v46
    v_add_f32 v37, v48, v50
    v_add_f32 v36, v36, v37
    v_mul_f32 v36, 0.25, v36
    v_add_f32 v37, v45, v47
    v_add_f32 v38, v49, v51
    v_add_f32 v37, v37, v38
    v_sub_f32 v44, v44, v36
    v_sub_f32 v46, v46, v36
    v_sub_f32 v48, v48, v36
    v_sub_f32 v50, v50, v36
    v_mul_f32 v38, v44, v44
    v_fmac_f32 v38, v46, v46
    v_fmac_f32 v38, v48, v48
    v_fmac_f32 v38, v50, v50
    v_fmac_f32 v37, 0x43800000, v38
    v_mul_f32 v37, 0x3a800000, v37
    v_cvt_pk_bf16_f32 v38, v36, v37
    v_lshlrev_b32 v36, 16, v38
    v_and_b32 v37, s62, v38
    v_add_f32 v37, 0x3727c5ac, v37
    v_cvt_pk_bf16_f32 v37, v37, v37
    v_and_b32 v37, s62, v37
    v_sqrt_f32 v37, v37
    s_nop 0
    v_cvt_pk_bf16_f32 v37, v37, v37
    v_and_b32 v37, s62, v37
    v_rcp_f32 v37, v37
    s_nop 0
    """)
    for e in range(0, 32, 2): pro += L(f"v_pk_add_f32 v[{80+e}:{81+e}], v[{80+e}:{81+e}], v[36:37] op_sel_hi:[1,0] neg_lo:[0,1] neg_hi:[0,1]")
    for q in range(16): pro += L(f"v_cvt_pk_bf16_f32 v{64+q}, v{80+2*q}, v{81+2*q}")
    for e in range(32):
        pro += L(f"v_lshlrev_b32 v{80+e}, 16, v{64+e//2}" if e % 2 == 0 else f"v_and_b32 v{80+e}, s62, v{64+e//2}")
    for e in range(0, 32, 2): pro += L(f"v_pk_mul_f32 v[{80+e}:{81+e}], v[{80+e}:{81+e}], v[36:37] op_sel:[0,1]")
    for g in range(4):
        for h, q in enumerate((2 * g, 2 * g + 1, 8 + 2 * g, 9 + 2 * g)):
            pro += L(f"v_cvt_pk_bf16_f32 v{64+g*4+h}, v{80+2*q}, v{81+2*q}")
        pro += [Ins(f"buffer_store_dwordx4 v[{64+g*4}:{67+g*4}], v42, s[24:27], 0 offen offset:{g*256}{SC}", tag="xn")]
    pro += L(f"buffer_store_byte v126, v28, s[64:67], s70 offen{SC}")
    if P.get("lnst"): pro += stamp()
    pro += L("s_nop 0\nv_mov_b32 v126, 1")
    pro += tr_addr(96, 0, True, 1024, 36) + tr_addr(97, 1, True, 1024, 36) + tr_addr(98, 0, False, 512, 36) + tr_addr(99, 1, False, 512, 36)
    pro += L("v_lshlrev_b32 v100, 3, v1")
    for i in range(5): pro += L(f"v_mov_b32 v{2+i}, v{96+i}")
    if P.get("lnst"): pro += [W(vm="all")] + stamp()
    if P["sync"] == 0:
        pro += [W(vm="all"), Ins("s_barrier"), Ins(f"buffer_store_byte v126, v27, s[44:47], 0 offen{SC}", tag="flag")]
    else:
        pro += L("v_and_b32 v27, 0xffffffe0, v27\nv_mov_b32 v125, 1")
        pro += [W(vm="all"), Ins("s_barrier"), Ins(f"buffer_atomic_add v125, v27, s[44:47], 0 offen sc0 sc1", tag="flag")]
    pro += stamp()
    if P["sync"]:
        pro += [W(vm="flag")] + L(f"""
        v_readfirstlane_b32 s70, v125
        s_sub_u32 s63, 48, s34
        s_and_b32 s70, s70, 31
        s_cmp_eq_u32 s70, 31
        s_cselect_b32 s62, s63, 0x40000000
        buffer_store_byte v126, v29, s[64:67], s62 offen{SC}
        """)
    if P["order"] == 5:
        def cp(lst, m):
            o = []
            for x in fix_m0(lst):
                y = x.copy(); y.text = y.text.replace("L_pc", "L_pc" + m) + ("" if y.label else " ; opt" + m); o.append(y)
            return o
        pro += L("s_cmp_eq_u32 s33, 0\ns_cbranch_scc1 L_skipA") + cp(defer, "A") + L("L_skipA:")
        late_w1 = L("s_cmp_lg_u32 s33, 0\ns_cbranch_scc1 L_skipB") + cp(defer, "B") + L("L_skipB:")
    else: pro += defer
    pro += L(f"""
    s_lshl_b32 s62, s32, 2
    s_add_u32 s62, s62, s33
    s_lshl_b32 s63, s62, 17
    v_lshlrev_b32 v25, 4, v1
    v_add_u32 v15, s63, v25
    v_add_u32 v16, 0x1000, v15
    s_lshl_b32 s62, s35, 19
    s_add_u32 s62, s62, {1536*256:#x}
    s_add_u32 s28, s48, s62
    s_addc_u32 s29, s49, 0
    s_mov_b32 s30, 0x20000
    s_mov_b32 s31, 0x20000
    s_add_u32 s36, s50, s62
    s_addc_u32 s37, s51, 0
    s_mov_b32 s38, 0x20000
    s_mov_b32 s39, 0x20000
    v_lshrrev_b32 v36, 4, v1
    v_and_b32 v37, 15, v1
    v_lshl_add_u32 v38, v36, 8, s5
    """)
    pro += srd(40, 60, 61, 16 << 20, O_OFF)
    for z in range(4):
        pro += L(f"v_add_u32 v39, {4*z}, v36\nv_xor_b32 v39, v39, v37\nv_lshl_add_u32 v{17+z}, v39, 4, v38")
    pro += wdma_addr(21, 256, "0", t0=40, st=63)
    pro += L("s_mov_b32 s55, 0\ns_mov_b32 s56, 0\ns_mov_b32 s57, -1\ns_mov_b32 s91, 6\ns_mov_b32 s58, 0")
    for i in range(224): pro += L(f"v_accvgpr_write_b32 a{i}, 0")
    for i in range(128, 256, 2): pro += L(f"v_mov_b64 v[{i}:{i+1}], 0")
    if P["sync"] == 0:
        pro += [W(vm=("W", 0))]
        pro += L(f"""
        s_cmp_lg_u32 s33, 0
        s_cbranch_scc1 L_x_go
        s_mov_b32 s70, 0x40000
        s_sleep {P['slp0']}
        L_x_poll:
        buffer_load_ubyte v125, v26, s[44:47], 0 offen{SC} ; w0only
        s_waitcnt vmcnt(0) ; w0only
        v_cmp_gt_u32 vcc, 1, v125
        s_sub_u32 s70, s70, 1
        s_cbranch_scc1 L_x_go
        s_cbranch_vccz L_x_go
        s_sleep {P['slp']}
        s_branch L_x_poll
        L_x_go:
        s_barrier
        """)
    else:
        if P["pad"]:
            pro += L("""
            s_cmp_eq_u32 s33, 0
            s_cbranch_scc1 L_scout_ret
            s_mov_b64 exec, 0
            s_cmp_eq_u32 s33, 1
            s_cbranch_scc1 L_pad1_0
            s_cmp_eq_u32 s33, 2
            s_cbranch_scc1 L_pad2_0
            s_branch L_pad3_0
            L_scout_ret:
            s_mov_b64 exec, -1
            """)
        pro += [W(vm=("W", 0))]
        pro += L(f"""
        s_cmp_lg_u32 s33, 0
        s_cbranch_scc1 L_x_go
        s_mov_b32 s70, 0x40000
        L_x_poll:
        buffer_load_ubyte v125, v28, s[64:67], 0 offen{SC} ; w0only
        s_waitcnt vmcnt(0) ; w0only
        v_readlane_b32 s62, v125, 48
        s_sub_u32 s70, s70, 1
        s_cbranch_scc1 L_x_go
        s_cmp_eq_u32 s62, 0
        s_cbranch_scc1 L_x_poll
        L_x_go:
        s_barrier
        """)
    pro += stamp() + (xloads(0) + late_w1 + xloads(1) if not P.get('o6') else xloads(0) + xloads(1) + [W(vm=('X', 0))] + late_w1)
    pro += srd(44, 60, 61, 14 << 20, H_OFF)
    pro += stamp()
    def kvloads(tau, dyn):
        r = []
        for v in range(2):
            sb = PAIR[tau % 5] + v * 16384; i = 2 * tau + v; reg = (sb, sb + 16384, ("KV", i)); tag = ("KV", i)
            r.append(Ins(f"s_add_u32 m0, s89, {v*16384}" if dyn else f"s_add_u32 m0, s5, {sb:#x}"))
            for z in range(4):
                r.append(Ins(f"buffer_load_dwordx4 v{(21 if v else 17)+z}, s[{36 if v else 28}:{39 if v else 31}], s55 offen offset:{z*1024} lds", tag=tag, wr=reg))
        r.append(Ins("s_add_u32 s55, s55, 0x4000"))
        return r
    blocks = []
    for p in range(3):
        for e in range(2):
            for m in range(2):
                bi = (p * 2 + e) * 2 + m
                blocks.append((4 + e, (lambda s, r, p=p, m=m: 16384 + m * 12288 + (2 * s + r) * 3072 + p * 1024), "a", bi * 16))
    for m in range(2):
        blocks.append((6, (lambda s, r, m=m: 40960 + m * 2048 + s * 1024 + r * 512), "a", (12 + m) * 16))
    for nb in range(8):
        b32, e = nb >> 1, nb & 1
        blocks.append((2 + e, (lambda s, r, b32=b32: (b32 >> 1) * 8192 + (b32 & 1) * 512 + s * 4096 + r * 2048), "v", 128 + nb * 16))
    NB = len(blocks); T = 16; TM = NB * 8
    gg = [(t, nb) for t in range(14) for nb in range(NB)] + [(14, nb) for nb in range(14)] + [(15, nb) for nb in range(14)] + [(14, nb) for nb in range(14, 22)] + [(15, nb) for nb in range(14, 22)]
    gidx = {k: i for i, k in enumerate(gg)}
    sc = Sched(2)
    for G, (t, nb) in enumerate(gg):
        va, imm, ak, ab = blocks[nb]; fb = 32 + (G % 4) * 8
        for mb in range(4):
            for s in range(2):
                ac = f"{ak}[{ab+mb*4}:{ab+mb*4+3}]"
                sc.mfma(f"{MF} {ac}, v[{fb+s*4}:{fb+s*4+3}], {breg(t, s, mb)}, {ac}")
    def rd(G):
        t, nb = gg[G]; va, imm, _, _ = blocks[nb]; fb = 32 + (G % 4) * 8; sb = GST[t % 3]
        return [Ins(f"ds_read_b64_tr_b16 v[{fb+s*4+r*2}:{fb+s*4+r*2+1}], v{va} offset:{imm(s, r)}", tag=("P", G), rd=(sb, sb + STG, ("G", t))) for s in range(2) for r in range(2)]
    LB = P['lb']
    for it in range(8):
        g = 2 * it * TM + LB
        if it == 0: sc.used[g] += 2
        else: sc.fixed_front(g, L("s_sub_u32 s91, s91, 1\ns_cbranch_scc0 L_G"))
        sc.fixed_front(g, Ins("; @IT G" if it < 7 else "; @ENDIT G"))
    for t in range(0, T):
        g0 = gidx[(t, 0)] * 8
        if t >= 1: sc.fixed_front(g0 - 8 * LA, [W(vm=("W", t)), Ins("s_barrier")])
        if t: sc.fixed_back(g0, W(vm=("X", t)))
        else:
            for i in range(8): sc.fixed_back(i, W(vm=("X0", i)))
    for G in range(len(gg)): sc.fixed_back(G * 8, W(lg=("P", G)))
    d15 = GST[0] - GST[2]
    for G, (t, nb) in enumerate(gg):
        upd = []
        if nb == 0 and 0 < t < 15: upd = [f"v_add_u32 v{va}, s88, v{94+va}" for va in range(2, 7)]
        if (t, nb) == (15, 0): upd = [f"v_subrev_u32 v{va}, {-d15:#x}, v{va}" for va in (4, 5, 6)]
        if (t, nb) == (15, 14): upd = [f"v_subrev_u32 v{va}, {-d15:#x}, v{va}" for va in (2, 3)]
        for u_ in upd: sc.flow("lds", 8 * (G - LA) - 3, Ins(u_), deadline=8 * (G - LA))
        for i, x in enumerate(rd(G)): sc.flow("lds", 8 * (G - LA) + i, x, deadline=8 * (G - 1) + 2)
    for t in range(1, 15): sc.fixed_front(t * TM + 2, Ins("s_barrier ; FB"))
    def vflow(S, g, its, sp, dl=None):
        for x in its:
            if x.kind == "vmem": x.cost = 2
            g = S.flow("vm", g if dl is None else min(g, dl), x, mingap=(1 if x.kind == "vmem" and S.qpos.get("vm") != dl else 0), deadline=dl) + (sp if x.kind == "vmem" else 0)
        return g
    for t in range(0, 15):
        g = t * TM + 1
        if t == 0:
            its = []
            if P["tkv"]: its += touch(30, 28, 0) + touch(30, 36, 0)
            if P["tg"]:
                its += touch(31, 8, 256 * 8192) + touch(31, 12, 4096 + 256 * 7168) + touch(31, 16, 4096 + 256 * 7168)
                its += touch(31, 8, 512 * 8192) + touch(31, 12, 4096 + (3 << 20)) + touch(31, 16, 4096 + (3 << 20))
            g = vflow(sc, g, its, P["xsp"] - 1)
            early = L(f"""
            s_lshl_b32 s62, s32, 2
            s_add_u32 s62, s62, s33           ; mb64
            s_mul_i32 s63, s62, {112*4096}
            s_lshr_b32 s59, s34, 1
            s_mul_i32 s59, s59, 7
            s_and_b32 s4, s34, 1
            s_lshl_b32 s73, s4, 2
            s_add_u32 s73, s73, s59
            s_lshl_b32 s73, s73, 12
            s_add_u32 s73, s73, s63           ; H P base
            s_add_u32 s59, s59, 3
            s_lshl_b32 s59, s59, 12
            s_add_u32 s59, s59, s63
            s_lshl_b32 s4, s4, 3
            s_add_u32 s59, s59, s4            ; H lone base
            s_lshr_b32 s48, s34, 3            ; q
            s_and_b32 s49, s34, 7
            s_lshl_b32 s49, s49, 8            ; ct bytes
            s_mul_i32 s50, s48, {896*2048}
            s_mul_i32 s72, s48, {28*4096}
            s_add_u32 s72, s72, s63
            s_lshl_b32 s74, s48, 21
            s_lshl_b32 s75, s62, 19
            s_lshl_b32 s51, s34, 14
            s_add_u32 s51, s51, s75           ; O store base
            s_lshl_b32 s4, s48, 17
            s_add_u32 s75, s75, s4
            """) + wdma_addr(101, 2048, "0", t0=109, st=63) + L("s_lshl_b32 s63, s48, 6")
            for z in range(4): early += L(f"v_xor_b32 v{101+z}, s63, v{101+z}\nv_add_u32 v{101+z}, s49, v{101+z}")
            early += L(f"""
            v_lshrrev_b32 v109, 4, v1
            v_and_b32 v110, 15, v1
            v_xor_b32 v109, v109, v110
            v_lshlrev_b32 v109, 4, v109
            v_lshl_add_u32 v105, v110, 8, v109
            v_add_u32 v105, {PAIR[0]:#x}, v105
            v_lshrrev_b32 v109, 5, v1
            v_lshl_add_u32 v106, v109, 9, v98
            v_lshl_add_u32 v107, v109, 9, v99
            v_add_u32 v106, {PAIR[0]+16384+32768:#x}, v106
            v_add_u32 v107, {PAIR[0]+16384+32768:#x}, v107
            s_lshr_b32 s62, s2, 3
            s_lshl_b32 s62, s62, 2
            s_add_u32 s62, s62, s33
            s_and_b32 s62, s62, 31
            s_lshl_b32 s62, s62, 12
            v_lshl_add_u32 v108, v1, 6, s62
            s_mov_b32 s63, L_code_end-{NAME}_kernel-4
            v_min_u32 v108, s63, v108
            """)
            for x in early: sc.flow("early", 1, x, deadline=LB - 1)
            sc.flowg("early", 1, L(f"s_getpc_b64 s[68:69]\nL_pc2:\ns_sub_u32 s68, s68, L_pc2-{NAME}_kernel\ns_subb_u32 s69, s69, 0"), deadline=LB - 1)
        else:
            ex = []
            if P["touch"] == 4 and t % 2 == 1:
                ex = [Ins("buffer_load_dword v127, v31, s[80:83], s58 offen", tag="touch"), Ins("buffer_load_dword v127, v31, s[76:79], s58 offen", tag="touch"), Ins(f"s_add_u32 s58, s58, {1024*1280:#x}")]
            g = vflow(sc, g, xloads(t + 1) + ex, P["xsp"])
        assert g < t * TM + LB + P["xsp"] or t % 2 == 1, g - t * TM
        g = max(g, t * TM + LB + 1)
        items = wloads(t + 2) if t + 2 < T else []
        if t == 14:
            items += kvloads(0, False) + kvloads(1, False)
            if P["touch"] == 1: items += touch(31, 80, 0) + touch(31, 80, 3 << 20) + touch(31, 76, 0) + touch(31, 76, 4 << 20)
        g = vflow(sc, g, items, P["wsp"] if t < 14 else 3)
        assert g < (t + 1) * TM - 8 * LA - 4 + P["wsp"] or t >= 14, g - t * TM
    g0 = 14 * TM + LB + 1
    hs = L(f"s_mov_b32 s52, s73\ns_add_u32 s53, s73, 4096\ns_add_u32 s54, s73, 8192\ns_mov_b32 s3, s59\ns_mov_b32 s70, {QSCALE:#x}\ns_mov_b32 s71, s70")
    for x in hs: sc.flow("hd", g0, x)
    k = 0
    for p in range(4):
        ne = 2 if p < 3 else 1
        for mb in range(4):
            tb = 110; ob = (118, 122, 96)[k % 3]; k += 1
            last = gidx[(15, 4 * p + 3 if p < 3 else 13)] * 8 + mb * 2 + 1
            g = last + 6
            for e in range(ne):
                bi = (p * 2 + e) * 2 if p < 3 else 12
                for i in range(4):
                    sc.flow("hd", g, Ins(f"v_accvgpr_read_b32 v{tb+i}, a{bi*16+mb*4+i}")); sc.flow("hd", g, Ins(f"v_accvgpr_read_b32 v{tb+4+i}, a{(bi+1)*16+mb*4+i}"))
                for q in range(4): sc.flow("hd", g, Ins(f"v_mul_f32 v{tb+q}, v{tb+q}, v{tb+4+q}"))
                for q in range(2): sc.flow("hd", g, Ins(f"v_cvt_pk_bf16_f32 v{ob+e*2+q}, v{tb+2*q}, v{tb+2*q+1}"))
            if p < 3: x = Ins(f"buffer_store_dwordx4 v[{ob}:{ob+3}], v25, s[44:47], s{52+p} offen offset:{mb*1024}{SC}", tag="Hst")
            else: x = Ins(f"buffer_store_dwordx2 v[{ob}:{ob+1}], v25, s[44:47], s3 offen offset:{mb*1024}{SC}", tag="Hst")
            sc.flow("hd", g, x)
    def qfr(qb, be): return 128 + 32 * be + 4 * qb
    for be in range(4):
        g = gidx[(15, 14 + 2 * be + 1)] * 8 + 7 + 6
        for qb in range(4):
            a = qfr(qb, be); b = a + 16
            for r in (a, a + 1, a + 2, a + 3, b, b + 1, b + 2, b + 3): sc.flow("qp", g, Ins(f"v_mul_f32 v{r}, s70, v{r}"))
            for h, r in enumerate((a, a + 2, b, b + 2)): sc.flow("qp", g, Ins(f"v_cvt_pk_bf16_f32 v{a+h}, v{r}, v{r+1}"))
        sw_ = L("s_mov_b64 exec, s[56:57]") + sum([L(f"v_swap_b32 v{qfr(qb, be)}, v{qfr(qb, be)+2}\nv_swap_b32 v{qfr(qb, be)+1}, v{qfr(qb, be)+3}") for qb in range(4)], []) + L("s_mov_b64 exec, -1")
        sc.flowg("qp", len(sc.mf), sw_)
    tail = sc.mid[len(sc.mf)]; nt = []
    i = 0
    while i < len(tail):
        x = tail[i]
        if i + 1 < len(tail) and x.text.startswith("v_mul_f32") and tail[i + 1].text.startswith("v_mul_f32"):
            o1 = [o.strip() for o in x.text[10:].split(",")]; o2 = [o.strip() for o in tail[i + 1].text[10:].split(",")]
            r = int(o1[0][1:])
            if r % 2 == 0 and int(o2[0][1:]) == r + 1:
                if o1[1] == "s70": nt.append(Ins(f"v_pk_mul_f32 v[{r}:{r+1}], v[{r}:{r+1}], s[70:71]"))
                else:
                    q = int(o1[2][1:]); nt.append(Ins(f"v_pk_mul_f32 v[{r}:{r+1}], v[{r}:{r+1}], v[{q}:{q+1}]"))
                i += 2; continue
        nt.append(x); i += 1
    print("G", sc.stats()[:50], "exposed tail instrs", len(nt))
    sc.mid[len(sc.mf)] = stamp() + L("s_nop 7") + nt
    G_ = sc.emit()
    if STAMP and P.get("gst"):
        i = [k for k, x in enumerate(G_) if x.text == "; @IT G"][0]
        G_ = G_[:i] + stamp() + G_[i:]
        i = [k for k, x in enumerate(G_) if x.text == "; @ENDIT G"][0] + 1
        G_ = G_[:i] + stamp() + G_[i:]
    mid = L(f"""
    v_mov_b32 v11, v105
    v_xor_b32 v12, 64, v105
    v_xor_b32 v13, 0x80, v105
    v_xor_b32 v14, 0xc0, v105
    s_mov_b32 s100, 0xffff8000
    s_mov_b32 s101, 0x20000
    s_add_u32 s4, s5, {PAIR[0]:#x}
    """)
    mid += stamp()
    late = L("""
    v_mov_b32 v15, v106
    v_mov_b32 v16, v107
    v_mov_b32 v7, v101
    v_mov_b32 v8, v102
    v_mov_b32 v9, v103
    v_mov_b32 v10, v104
    v_mov_b32 v127, v108
    """)
    late2 = L("""
    v_and_b32 v120, 3, v1
    v_cmp_eq_u32 vcc, 0, v120
    v_mov_b32 v121, 0x3f803f80
    v_add_u32 v26, 0x1000, v25
    v_cndmask_b32 v112, 0, v121, vcc
    v_cndmask_b32 v113, 0, v121, vcc
    v_cndmask_b32 v114, 0, v121, vcc
    v_cndmask_b32 v115, 0, v121, vcc
    """)
    late3 = L("""
    v_add_u32 v4, 0x10000, v2
    v_add_u32 v5, 0x10000, v3
    v_add_u32 v6, 0x20000, v2
    v_add_u32 v30, 0x20000, v3
    s_mov_b32 s71, s50
    s_mov_b32 s53, s51
    s_mov_b32 s88, 3
    s_mov_b32 s91, 3
    """)
    at = Sched(2)
    qk0 = {}; pv0 = {}
    KR = 11; VR = 15
    def sbl(u, qb, kb): return 144 + 64 * (u % 2) + 32 * kb + 4 * qb
    def kfb(u, kb, be):
        f = (144 if u % 2 else 64) + (kb * 4 + be) * 4
        return f"{'a' if u % 2 else 'v'}[{f}:{f+3}]"
    def qk_list(u, first, kf):
        r = []
        for qb in range(4):
            for kb in range(2):
                d = sbl(u, qb, kb)
                for be in range(4):
                    c = f"v[{d}:{d+3}]" if be else ("0" if first else f"v[{96+qb*4}:{99+qb*4}]")
                    q = qfr(qb, be)
                    r.append(f"{MF} v[{d}:{d+3}], {kf(kb, be)}, v[{q}:{q+3}], {c}")
        return r
    def dborder(u): return [8, 0, 1, 2, 3, 4, 5, 6, 7] if u == 15 else list(range(9))
    def pv_list(u, vf, first=False):
        r = []
        for db in dborder(u):
            for qb in range(4):
                ac = (db * 4 + qb) * 4; pf = sbl(u, qb, 0)
                a = vf(db) if db < 8 else "v[112:115]"
                r.append(f"{MF} a[{ac}:{ac+3}], {a}, v[{pf}:{pf+3}], {'0' if first else f'a[{ac}:{ac+3}]'}")
        return r
    def QK(u):
        qk0[u] = len(at.mf)
        for m in qk_list(u, u == 0, lambda kb, be: kfb(u, kb, be)): at.mfma(m)
    def PV(u):
        pv0[u] = len(at.mf)
        for m in pv_list(u, lambda db: f"v[{32+db*4}:{35+db*4}]", u == 0): at.mfma(m)
    QK(0); QK(1)
    for u in range(14): PV(u); QK(u + 2)
    PV(14); PV(15)
    NU = 16
    def pvpos(u, db): return pv0[u] + dborder(u).index(db) * 4
    kb0 = len(at.mf)
    NT = 30; NN = 25; NBT = 14
    grp = [(n, nb) for n in range(NN) for nb in range(8)] + [(n, nb) for n in range(NN, NT - 2) for nb in range(2, 8)] + [(n, 2 * lam + e) for lam in range(1, 4) for n in (NT - 2, NT - 1) for e in range(2)] + [(n, nb) for n in range(NN, NT) for nb in range(2)]
    g2 = {k: i for i, k in enumerate(grp)}
    def acc2(n, nb, mb):
        r = (nb * 4 + mb) * 4
        return f"v[{128+r}:{131+r}]" if n < NBT else f"a[{r}:{r+3}]"
    for G, (n, nb) in enumerate(grp):
        fb = 64 + (G % 4) * 8
        for mb in range(4):
            for s in range(2):
                ac = acc2(n, nb, mb)
                at.mfma(f"{MF} {ac}, v[{fb+s*4}:{fb+s*4+3}], {b2reg(n, s, mb)}, {'0' if (n in (0, NBT) and s == 0) else ac}")
    def gp(G): return kb0 + 8 * G
    def t0(n): return gp(g2[(n, 0 if n < NN else 2)])
    VLA = 12; ALB = 4
    CHK = pv0[15] + 12
    NIT = 5
    for it in range(1, NIT + 1):
        g = pv0[2 * it] + ALB
        if it == 1: at.used[g] += 2
        else: at.fixed_front(g, L("s_sub_u32 s91, s91, 1\ns_cbranch_scc0 L_A"))
        at.fixed_front(g, Ins("; @IT A" if it < NIT else "; @ENDIT A"))
    at.fixed_front(-10, [W(vm=("KV", 0)), Ins("s_barrier")])
    bpos = {}
    for tau in range(8):
        bpos[tau] = pv0[2 * tau] - VLA - 1
        at.fixed_front(bpos[tau], [W(vm=("KV", min(2 * tau + 2, 15))), Ins("s_barrier")])
    b2 = {}
    for n in range(NT):
        b2[n] = t0(n) - 8 * LA
        at.fixed_front(b2[n], [W(vm=("TW", n)), Ins("s_barrier")])
        at.fixed_back(t0(n), W(vm=("TB", n)))
    for G in range(len(grp)): at.fixed_back(gp(G), W(lg=("P2", G)))
    assert b2[0] > CHK
    for u in range(NU):
        at.fixed_back(qk0[u], W(lg=("K", u, 0)))
        at.fixed_back(qk0[u] + 4, W(lg=("K", u, 1)))
        for db in range(0, 8, 2): at.fixed_back(pvpos(u, db), W(lg=("V", u, db + 1)))
    chk = []
    for qb in range(4): chk += L(f"v_accvgpr_read_b32 v{116+qb}, a{128+qb*4}")
    chk += L(f"""
    v_max3_f32 v124, v116, v117, v118
    s_mov_b32 s62, {P['thr']:#x}
    v_max_f32 v124, v124, v119
    v_cmp_nge_f32 vcc, s62, v124
    s_cbranch_vccnz L_fallback
    L_fb_ret:
    """)
    for qb in range(4): chk += L(f"v_rcp_f32 v{120+qb}, v{116+qb}")
    at.fixed_front(CHK, chk)
    for x in late: at.flow("late", 1, x, deadline=11)
    ev = []; evk = []
    def kreads(u):
        tau = u // 2; sb = PAIR[tau % 5]; r = []
        if u % 2 == 0 and u > 0:
            r.append(L("s_cmp_eq_u32 s88, 2\ns_cselect_b32 s90, s101, s100") if 4 <= u <= 2 * NIT else L("s_mov_b32 s90, s100"))
            r += [Ins(f"v_add_u32 v{x}, s90, v{x}") for x in range(KR, KR + 4)]
        for kb in range(2):
            for be in range(4):
                r.append(Ins(f"ds_read_b128 {kfb(u, kb, be)}, v{KR+be} offset:{((u%2)*2+kb)*4096}", tag=("K", u, kb), rd=(sb, sb + 16384, ("KV", 2 * tau))))
        return r
    def vreads(u, db):
        tau = u // 2; sb = PAIR[tau % 5] + 16384; r = []
        if u % 2 == 0 and db == 0:
            r.append(L("s_cmp_eq_u32 s88, 2\ns_cselect_b32 s59, s101, s100") if 4 <= u <= 2 * NIT else L("s_mov_b32 s59, s100"))
            r += [Ins(f"v_add_u32 v{x}, s59, v{x}") for x in (VR, VR + 1)]
        b32, e = db >> 1, db & 1; f = 32 + db * 4
        for rr in range(2):
            r.append(Ins(f"ds_read_b64_tr_b16 v[{f+rr*2}:{f+rr*2+1}], v{VR+e} offset:{(b32>>1)*8192+(b32&1)*512+(u%2)*4096+rr*2048}", tag=("V", u, db), rd=(sb, sb + 16384, ("KV", 2 * tau + 1))))
        return r
    for i, x in enumerate(kreads(0)): evk.append((-9 + i // 2, 0, x))
    for i, x in enumerate(kreads(1)): evk.append((4 + 2 * (i // 2 * 2), qk0[1] - 4, x))
    for u in range(NU):
        for db in range(8):
            lo = pvpos(u, db) - VLA
            if u >= 1: lo = max(lo, pvpos(u - 1, db) + 4)
            for x in vreads(u, db): ev.append((lo, pvpos(u, db & ~1) - 4, x))
        if u + 2 < NU:
            kr = kreads(u + 2); off = 1 if len(kr) > 8 else 0
            for i, x in enumerate(kr): evk.append((pv0[u] + ALB + 3 + (4 if u % 2 else 3) * ((i + off) // 2), qk0[u + 2] - 4, x))
    def rd2(G):
        n, nb = grp[G]; sb = K2SLOT[n % 10]; fb = 64 + (G % 4) * 8
        b32, e = nb >> 1, nb & 1
        va = [(2, 3), (4, 5), (6, 30)][sb >> 16][e]
        return [Ins(f"ds_read_b64_tr_b16 v[{fb+s*4+rr*2}:{fb+s*4+rr*2+1}], v{va} offset:{(sb & 0xffff)+(b32>>1)*8192+(b32&1)*512+s*4096+rr*2048}", tag=("P2", G), rd=(sb, sb + 16384, ("T", n))) for s in range(2) for rr in range(2)]
    for G in range(len(grp)):
        for i, x in enumerate(rd2(G)): ev.append((gp(G - LA) + i, gp(G - 1) + 2, x))
    ev.sort(key=lambda e: e[0])
    for it in range(1, NIT):
        at.fixed_front(pv0[2 * it] + ALB + 1, L("s_add_u32 s88, s88, 1\ns_cmp_eq_u32 s88, 5\ns_cselect_b32 s88, 0, s88"))
        at.fixed_front(pv0[2 * it] + ALB + 2, L("s_lshl_b32 s89, s88, 15\ns_sub_u32 s89, s4, s89"))
    def maxseq(a, b, t0):
        return [f"v_max3_f32 v{t0}, v{a}, v{a+1}, v{a+2}", f"v_max3_f32 v{t0+1}, v{a+3}, v{b}, v{b+1}", f"v_max3_f32 v{t0}, v{t0}, v{b+2}, v{b+3}", f"v_max_f32 v{t0}, v{t0}, v{t0+1}"]
    def xlane(t0, t1):
        return [f"v_mov_b32 v{t1}, v{t0}", "s_nop 1", f"v_permlane16_swap_b32 v{t0}, v{t1}", f"v_max_f32 v{t0}, v{t0}, v{t1}",
                f"v_mov_b32 v{t1}, v{t0}", "s_nop 1", f"v_permlane32_swap_b32 v{t0}, v{t1}", f"v_max_f32 v{t0}, v{t0}, v{t1}"]
    for q_, lst in (("lds", ev), ("ldsk", evk)):
        for g, dl, x in lst:
            if isinstance(x, list): at.flowg(q_, g, x, deadline=dl, strict=True)
            else: at.flow(q_, g, x, deadline=dl)
    nspin = [0]
    def flagload(tag): return Ins(f"buffer_load_ubyte v125, v28, s[64:67], 0 offen{SC}", tag=tag)
    def fineload(tag): return Ins(f"buffer_load_dword v125, v22, s[64:67], 0 offen{SC}", tag=tag)
    def check_(tag, test, reload):
        k = nspin[0]; nspin[0] += 1
        ool.extend(L(f"L_spin{k}:\ns_mov_b32 s70, 0x40000\nL_spin{k}_l:\n{reload}\ns_waitcnt vmcnt(0)\ns_sub_u32 s70, s70, 1\ns_cbranch_scc1 L_spin{k}_ret\n{test}\ns_cbranch_scc0 L_spin{k}_ret\ns_sleep 1\ns_branch L_spin{k}_l"))
        return [W(vm=tag)] + L(f"{test}\ns_cbranch_scc1 L_spin{k}\nL_spin{k}_ret:")
    def flagcheck(tag, need): return check_(tag, f"v_cmp_gt_u32 vcc, {need}, v125\ns_and_b32 s62, vcc_lo, -1", flagload(0).text)
    def finecheck(tag, mask): return check_(tag, f"v_readfirstlane_b32 s62, v125\ns_and_b32 s62, s62, {mask:#x}\ns_cmp_lg_u32 s62, {mask:#x}", fineload(0).text)
    def pubstore(): return Ins(f"buffer_store_byte v126, v29, s[64:67], 0 offen{SC}", tag="flag")
    def finepub(lam): return Ins(f"buffer_store_byte v126, v23, s[64:67], s{15+lam} offen{SC}", tag="flag")
    def tw(n):
        sb = K2SLOT[n % 10]; sr = 80 if n < NBT else 76
        r = L("s_mov_b32 s71, s74") if n == NBT else []
        r += [Ins(f"s_add_u32 m0, s5, {sb:#x}")]
        r += [Ins(f"buffer_load_dwordx4 v{7+z}, s[{sr}:{sr+3}], s71 offen offset:{z*1024} lds", tag=("TW", n), wr=(sb, sb + 16384, ("T", n))) for z in range(4)]
        return r + L("s_add_u32 s71, s71, 0x20000")
    def tb(n):
        sr = 44 if n < NBT else 40
        r = L("s_mov_b32 s72, s75") if n == NBT else []
        r += [Ins(f"buffer_load_dwordx4 {b2reg(n, s, mb)}, v{25+s}, s[{sr}:{sr+3}], s72 offen offset:{mb*1024}{SC}", tag=("TB", n)) for s in range(2) for mb in range(4)]
        return r + L("s_add_u32 s72, s72, 0x2000")
    def exch(br, lam, store, base, tag):
        r = L(f"s_mov_b32 s58, {br*(16<<20)+lam*16384:#x}")
        for i in range(4):
            rr = f"v[{base+4*i}:{base+4*i+3}]"
            r.append(Ins(f"buffer_store_dwordx4 {rr}, v17, s[64:67], s58 offen offset:{i*1024}{SC}" if store else f"buffer_load_dwordx4 {rr}, v{17+lam}, s[64:67], s58 offen offset:{i*1024}{SC}", tag=tag))
        return r
    vq = []
    vq.append((-9, kvloads(2, False), 3, 48))
    hb = P.get("hb", 0)
    at.front[bpos[hb]].insert(0, W(vm="Hst")); at.used[bpos[hb]] += 1
    vq.append((bpos[hb] + 1, [ASSERT("Hst"), Ins("v_mov_b32 v126, 2"), pubstore()], 0, bpos[hb] + 6))
    vq.append((pv0[0] + ALB + 3, kvloads(3, False), 13 if not hb else 11, pv0[0] + ALB + (125 if not hb else 110)))
    for it in range(1, NIT): vq.append((pv0[2 * it] + ALB + 3, kvloads(it + 3, True), 13, pv0[2 * it] + ALB + 125))
    e0 = pv0[12] + ALB
    if P.get("ct2"):
        gg_ = pv0[0] + ALB + (130 if not hb else 112) if P["ct2"] == 1 else e0
        vq.append((gg_, [Ins("global_load_dword v127, v127, s[68:69]", tag="touch")], 0, gg_ + 1))
    e5 = pv0[10] + ALB
    vq.append((e5 + 1, [flagload("fH")] + tw(0) + tw(1) + tw(2) + tw(3), 6, e5 + 130))
    vq.append((e0 + 1, [flagcheck("fH", 2)] + tb(0) + tb(1), 6, e0 + 130))
    NPW = P["npw"]
    vq.append((pv0[15], sum([tw(n) for n in range(4, NPW)], []), 0, CHK - 1))
    vq.append((CHK + 1, tb(2) + (tb(3) if P['bd'] > 3 else []), 3 if P['bd'] <= 3 else 1, kb0 + 10))
    OC = P["ochk"]; WD = P["wd"]; BD = P["bd"]
    for m in range(0, NT - 2):
        its = []
        if NPW <= m + WD < NT: its += tw(m + WD)
        n = m + BD
        if m == OC: its += [flagcheck("fO", 3)] + sum([tb(k_) for k_ in range(NBT, n + 1)], [])
        elif n < NT and not (NBT <= n and m < OC): its += tb(n)
        if its: vq.append((t0(m) + (11 if m == 0 else 1), its, P["tsp"] if len(its) < 18 else 1, t0(m + 1) - 1))
    vq.append((t0(OC - 2) + 30, [flagload("fO")], 0))
    nmain = len(vq)
    for lam in range(1, 4):
        b = 128 + 32 * lam
        vq.append((t0(NBT + lam - 1) + 10, [Ins(f"v_cvt_pk_bf16_f32 v{b+i}, v{b+2*i}, v{b+2*i+1}") for i in range(16)] + exch(0, lam, True, b, ("Bst", lam)), 10))
    vq.append((t0(NBT + P['bpub']) + 30, [[Ins("v_mov_b32 v126, 1"), W(vm=("Bst", 3))], finepub(1), finepub(2), finepub(3)], 1))
    vq.append((t0(NBT + P['bpub'] + 2) + 10, [fineload("fB")] + [Ins(f"buffer_load_dwordx4 v[{96+mb*4}:{99+mb*4}], v21, s[92:95], s{52+mb} offen", tag="xld") for mb in range(4)], 4))
    vq.append((t0(NN + 1), [finecheck("fB", 0x01010100)] + sum([exch(0, lam, False, 144 + 32 * lam, ("Bld", lam)) for lam in range(1, 4)], []), 5))
    for lam in range(1, 4):
        g = gp(g2[(NT - 1, 2 * lam + 1)]) + 8 + 5
        its = []
        for i in range(0, 32, 8):
            its += [Ins(f"v_accvgpr_read_b32 v{112+q}, a{32*lam+i+q}") for q in range(8)] + [Ins(f"v_cvt_pk_bf16_f32 v{128+32*lam+i//2+q}, v{112+2*q}, v{113+2*q}") for q in range(4)]
        vq.append((g, its + exch(1, lam, True, 128 + 32 * lam, ("Sst", lam)), 2))
    gk = gp(g2[(NN, 0)])
    vy = []
    for lam in range(1, 4):
        vy.append((gk + P["pub5"] - (3 - lam) * 32, [[Ins("v_mov_b32 v126, 3"), W(vm=("Sst", lam))], finepub(lam)], 0))
    vy.append((gk + P["pub5"] - 1, [fineload("f51")], 0))
    for Q, lst in (("vm", sorted(vq[:nmain], key=lambda e: e[0])), ("vx", sorted(vq[nmain:], key=lambda e: e[0])), ("vy", sorted(vy, key=lambda e: e[0]))):
        if Q == "vx":
            for g in range(t0(NN), len(at.mf)): at.capo[g] = 3
        for g, its, sp, *dl in lst:
            dl = dl[0] if dl else None
            for x in its:
                if dl is not None: g = min(g, dl)
                if isinstance(x, list): g = at.flowg(Q, g, x, deadline=dl)
                elif x.kind == "comment":
                    g = max(g, at.qpos.get(Q, g)); at.mid[g].append(x); at.qpos[Q] = g
                elif Q == "vm": g = vflow(at, g, [x], sp, dl)
                else: g = at.flow(Q, g, x, deadline=dl) + (sp if x.kind == "vmem" else 0)
    rdy0 = {}
    for qb in range(4):
        a, b = sbl(0, qb, 0), sbl(0, qb, 1); t0_ = 116 + (qb % 2) * 2; g = qb * 8 + 7 + 6
        seq = maxseq(a, b, t0_) + xlane(t0_, t0_ + 1) + [f"v_sub_f32 v{96+qb*4+i}, 0, v{t0_}" for i in range(4)] + [f"v_sub_f32 v{r}, v{r}, v{t0_}" for r in list(range(a, a + 4)) + list(range(b, b + 4))]
        for i, s_ in enumerate(seq): at.flow("mx", g, Ins(s_), deadline=(qk0[1] + qb * 8 - 2 if i < 16 else pv0[0] - 6))
        rdy0[qb] = at.qpos["mx"] + 1
    exps = []
    for u in range(NU):
        w0 = pv0[u - 1] + ALB if 1 <= u <= 2 * NIT + 1 else 0
        for i in range(32):
            qb, rem = divmod(i, 8)
            ready = qk0[u] + qb * 8 + (rem // 4) * 4 + 3 + 6
            if u == 0: ready = max(ready, rdy0[qb])
            exps.append((max(ready, w0), u, i))
    ei = 0; pend = []
    def put(g, x): at.mid[g].append(x); at.used[g] += x.cost
    for g in range(0, kb0):
        def do_exp():
            nonlocal ei
            _, u, i = exps[ei]; ei += 1
            qb, rem = divmod(i, 8); r = sbl(u, qb, rem // 4) + rem % 4
            put(g, Ins(f"v_exp_f32 v{r}, v{r}"))
            if i % 2: pend.append((g + 1, u, Ins(f"v_cvt_pk_bf16_f32 v{sbl(u, qb, 0)+rem//2}, v{r-1}, v{r}")))
        while ei < len(exps) and pv0[exps[ei][1]] - 2 <= g: do_exp()
        while pend and pv0[pend[0][1]] - 1 <= g: put(g, pend.pop(0)[2])
        nr = sum(1 for p_ in pend if p_[0] <= g)
        if at.used[g] == 0 and ei < len(exps) and exps[ei][0] <= g and nr < 4: do_exp()
        while at.used[g] < 2 and pend and pend[0][0] <= g: put(g, pend.pop(0)[2])
    assert ei == len(exps) and not pend
    for x in late2: at.flow("late", 1, x, deadline=pv0[0] + 28)
    for x in late3: at.flow("late", pv0[0] + 1, x, deadline=pv0[2] + ALB - 1)
    for g in range(CHK + 2, t0(4)): at.capo[g] = P["ocap"]
    for x in L("s_add_u32 s54, s53, 4096\ns_add_u32 s55, s53, 8192\ns_add_u32 s3, s53, 12288"): at.flow("od", CHK + 1, x)
    k = 0
    for b32 in range(4):
        for qb in range(4):
            tb_ = 96 + (k % 2) * 8; ob = 112 + (k % 2) * 4; k += 1
            g = max(pvpos(15, 2 * b32 + 1) + 4 + 8, kb0 - 8 + (k - 1) * P["osp"])
            for e in range(2):
                for i in range(4): at.flow("od", g, Ins(f"v_accvgpr_read_b32 v{tb_+e*4+i}, a{((b32*2+e)*4+qb)*4+i}"))
            for q in range(8): at.flow("od", g, Ins(f"v_mul_f32 v{tb_+q}, v{tb_+q}, v{120+qb}"))
            for q in range(4): gq = at.flow("od", g, Ins(f"v_cvt_pk_bf16_f32 v{ob+q}, v{tb_+2*q}, v{tb_+2*q+1}"))
            at.flow("od", gq, Ins(f"buffer_store_dwordx4 v[{ob}:{ob+3}], v25, s[40:43], {['s53','s54','s55','s3'][b32]} offen offset:{qb*1024}{SC}", tag="Ost"))
    npub = [n for n in range(NN) if b2[n] > at.qpos["od"] + 40][0]
    print("O drain ends at K2 tile", (at.qpos["od"] - kb0) / 64, "publish at b2", npub)
    at.front[b2[npub]].insert(0, W(vm="Ost")); at.used[b2[npub]] += 1
    for x in [ASSERT("Ost"), Ins("v_mov_b32 v126, 3"), pubstore()]: at.flow("od", b2[npub] + 1, x)
    xa = L(f"""
    s_lshl_b32 s62, s32, 5
    s_add_u32 s62, s62, s34           ; gid
    s_lshl_b32 s63, s62, 16
    s_lshl_b32 s4, s33, 12
    s_add_u32 s63, s63, s4
    v_add_u32 v17, s63, v25
    v_xor_b32 v18, {8<<16:#x}, v17
    v_xor_b32 v19, {16<<16:#x}, v17
    v_xor_b32 v20, {24<<16:#x}, v17
    s_lshl_b32 s62, s62, 7
    s_lshl_b32 s4, s33, 2
    s_add_u32 s62, s62, s4
    s_add_u32 s62, s62, {MB_REL+32:#x}
    v_mov_b32 v22, s62
    s_xor_b32 s16, s62, {(8<<7)+1:#x}
    s_xor_b32 s17, s62, {(16<<7)+2:#x}
    s_xor_b32 s18, s62, {(24<<7)+3:#x}
    v_cmp_eq_u32 vcc, 0, v1
    v_mov_b32 v23, 0x7ff00000
    v_and_b32 v21, 15, v1
    v_cndmask_b32 v23, v23, 0, vcc
    s_lshl_b32 s62, s32, 8
    s_lshl_b32 s63, s33, 6
    s_add_u32 s62, s62, s63
    v_add_u32 v21, s62, v21
    v_lshlrev_b32 v21, 11, v21
    v_lshrrev_b32 v24, 4, v1
    v_lshl_add_u32 v21, v24, 4, v21
    s_lshl_b32 s62, s48, 6
    s_add_u32 s62, s62, s49
    v_add_u32 v21, s62, v21
    s_mov_b32 s52, 0
    s_mov_b32 s53, 0x8000
    s_mov_b32 s54, 0x10000
    s_mov_b32 s55, 0x18000
    s_mov_b32 s68, 0xbfb8aa3b
    s_mov_b32 s69, 0xffff0000
    """)
    assert at.qpos["od"] < t0(OC - 2)
    for x in xa: at.flow("od", at.qpos["od"], x, deadline=t0(OC - 1))
    def unp(d, src, i): return Ins(f"v_lshlrev_b32 v{d}, 16, v{src+i//2}" if i % 2 == 0 else f"v_and_b32 v{d}, s69, v{src+i//2}")
    fin = [W(vm=("Bld", 3)), Ins("s_mov_b32 s16, s68"), Ins("s_mov_b32 s17, s68")]
    for lam in range(1, 4):
        for i in range(32): fin.append(unp(32 + i, 144 + 32 * lam, i))
        for i in range(0, 32, 2): fin += L(f"v_pk_add_f32 v[{128+i}:{129+i}], v[{128+i}:{129+i}], v[{32+i}:{33+i}]")
    for i0 in range(0, 32, 4):
        tmp = 112 + (i0 // 4 % 2) * 4; r = 128 + i0
        for i in (0, 2): fin += L(f"v_pk_mul_f32 v[{tmp+i}:{tmp+i+1}], v[{r+i}:{r+i+1}], s[16:17]")
        for i in range(4): fin += L(f"v_exp_f32 v{tmp+i}, v{tmp+i}")
        for i in range(4): fin += L(f"v_add_f32 v{tmp+i}, 1.0, v{tmp+i}")
        for i in range(4): fin += L(f"v_rcp_f32 v{tmp+i}, v{tmp+i}")
        fin += L("s_nop 0")
        for i in (0, 2): fin += L(f"v_pk_mul_f32 v[{r+i}:{r+i+1}], v[{r+i}:{r+i+1}], v[{tmp+i}:{tmp+i+1}]")
    fin += L("s_mov_b64 exec, s[56:57]") + sum([L(f"v_swap_b32 v{96+mb*4}, v{98+mb*4}\nv_swap_b32 v{97+mb*4}, v{99+mb*4}") for mb in range(4)], []) + L("s_mov_b64 exec, -1")
    for mb in range(4):
        for q in range(8): fin.append(unp(160 + ((q // 4) * 4 + mb) * 4 + q % 4, 96 + mb * 4, q))
    print("attn+k2", [(i, at.used[i]) for i in range(-12, kb0 + 20) if at.used[i] > 2], "pv0", pv0, "qk0", qk0, "CHK", CHK, "kb0", kb0)
    A_ = at.emit()
    if STAMP and P.get("ast"):
        i = [k for k, x in enumerate(A_) if x.text == "; @IT A"][0]
        A_ = A_[:i] + stamp() + A_[i:]
        i = [k for k, x in enumerate(A_) if x.text == "; @ENDIT A"][0] + 1
        A_ = A_[:i] + stamp() + A_[i:]
    if STAMP:
        for m_ in (kb0, t0(5), t0(NN)) + ((gp(g2[(NT - 2, 2)]), gk) if P.get("tst") else ()):
            i = [k for k, x in enumerate(A_) if x is at.mf[m_]][0]
            A_ = A_[:i] + stamp() + A_[i:]
    nf = P["fsplit"]
    sd = {1: 192, 2: 224, 3: 208}
    nb_ = 3 + 3 * 48
    epi = stamp() + L("s_nop 7") + fin[:100] + finecheck("f51", 0x00020200) + exch(1, 1, False, sd[1], ("Sld", 1)) + exch(1, 2, False, sd[2], ("Sld", 2))
    epi += fin[100:nf] + [fineload("f5")] + fin[nf:] + finecheck("f5", 0x02000000) + exch(1, 3, False, sd[3], ("Sld", 3))
    epi += stamp()
    for i in range(32): epi += L(f"v_accvgpr_read_b32 v{64+i}, a{i}")
    for lam in range(1, 4):
        epi += [W(vm=("Sld", lam))]
        for i in range(32): epi += [unp(32 + i, sd[lam], i)]
        for i in range(0, 32, 2): epi += L(f"v_pk_add_f32 v[{64+i}:{65+i}], v[{64+i}:{65+i}], v[{32+i}:{33+i}]")
    epi += stamp()
    for mb in range(4):
        for e in range(2):
            for h in range(2):
                i = (e * 4 + mb) * 4 + 2 * h
                epi += L(f"v_pk_fma_f32 v[{160+i}:{161+i}], v[{64+i}:{65+i}], v[{128+i}:{129+i}], v[{160+i}:{161+i}]")
        r = 96 + mb * 4
        for e in range(2):
            for h in range(2):
                i = (e * 4 + mb) * 4 + 2 * h
                epi += L(f"v_cvt_pk_bf16_f32 v{r+e*2+h}, v{160+i}, v{161+i}")
        epi += L(f"s_mov_b64 exec, s[56:57]\nv_swap_b32 v{r}, v{r+2}\nv_swap_b32 v{r+1}, v{r+3}\ns_mov_b64 exec, -1")
        epi += L(f"buffer_store_dwordx4 v[{r}:{r+3}], v21, s[96:99], s{52+mb} offen")
    epi += L("s_waitcnt vmcnt(0)") * STAMP + stamp() + stamp_store()
    epi += L("L_end:\ns_endpgm")
    vcur = PAIR[7 % 5] + 16384; kcur = PAIR[7 % 5]
    fbk = L(f"""
    L_fallback:
    s_waitcnt vmcnt(0) lgkmcnt(0)
    s_nop 7
    s_lshl_b32 s62, s33, 13
    s_add_u32 s88, s62, {FBSLOT0:#x}
    s_and_b32 s62, s33, 1
    s_lshl_b32 s62, s62, 13
    s_lshr_b32 s63, s33, 1
    s_lshl_b32 s63, s63, 7
    s_add_u32 s62, s62, s63
    """)
    for z in range(4): fbk += L(f"v_subrev_u32 v{17+z}, s5, v{17+z}\nv_subrev_u32 v{21+z}, s62, v{21+z}")
    fbk += L(f"s_sub_u32 s62, s88, {kcur:#x}")
    for b in range(4): fbk += L(f"v_add_u32 v{KR+b}, s62, v{KR+b}")
    fbk += L(f"s_sub_u32 s62, s88, {vcur:#x}\nv_add_u32 v116, s62, v{VR}\nv_add_u32 v117, s62, v{VR+1}")
    for qb in range(4): fbk += L(f"v_mov_b32 v{120+qb}, 0xff800000")
    def fb_k(first):
        o = []
        for kb in range(2):
            o += L(f"s_add_u32 m0, s88, {kb*4096}\ns_add_u32 s89, s55, {kb*4096}")
            for z in range(4): o += L(f"buffer_load_dwordx4 v{17+z}, s[28:31], s89 offen offset:{z*1024} lds")
        o += L("s_waitcnt vmcnt(0)")
        for kb in range(2):
            for be in range(4): o += L(f"ds_read_b128 {kfb(0, kb, be)}, v{KR+be} offset:{kb*4096}")
        o += L("s_waitcnt lgkmcnt(0)")
        o += L("\n".join(qk_list(1, first, lambda kb, be: kfb(0, kb, be)))) + L("s_nop 7")
        return o
    fbk += L("s_mov_b32 s55, 0\nL_fb1:") + fb_k(True)
    for qb in range(4):
        fbk += L("\n".join(maxseq(sbl(1, qb, 0), sbl(1, qb, 1), 118))) + L(f"v_max_f32 v{120+qb}, v{120+qb}, v118")
    fbk += L("s_add_u32 s55, s55, 0x2000\ns_cmp_lt_u32 s55, 0x20000\ns_cbranch_scc1 L_fb1")
    for qb in range(4):
        fbk += L("\n".join(xlane(120 + qb, 118)))
        for i in range(4): fbk += L(f"v_sub_f32 v{96+qb*4+i}, 0, v{120+qb}")
    for i in range(144): fbk += L(f"v_accvgpr_write_b32 a{i}, 0")
    fbk += L("s_mov_b32 s55, 0\nL_fb2:")
    fbk += fb_k(False)
    for bp in range(2):
        fbk += L(f"s_add_u32 m0, s88, {bp*4096}\ns_add_u32 s89, s55, {bp*128}")
        for z in range(4): fbk += L(f"buffer_load_dwordx4 v{21+z}, s[36:39], s89 offen offset:{z*1024} lds")
    fbk += L("s_waitcnt vmcnt(0)")
    for db in range(8):
        b32, e = db >> 1, db & 1
        for rr in range(2): fbk += L(f"ds_read_b64_tr_b16 a[{144+db*4+rr*2}:{145+db*4+rr*2}], v{116+e} offset:{(b32>>1)*4096+(b32&1)*512+rr*2048}")
    for qb in range(4):
        for kb in range(2):
            for i in range(4): fbk += L(f"v_exp_f32 v{sbl(1, qb, kb)+i}, v{sbl(1, qb, kb)+i}")
    for qb in range(4):
        for h in range(4): fbk += L(f"v_cvt_pk_bf16_f32 v{sbl(1, qb, 0)+h}, v{sbl(1, qb, h//2)+(h%2)*2}, v{sbl(1, qb, h//2)+(h%2)*2+1}")
    pl = pv_list(15, lambda db: f"a[{144+db*4}:{147+db*4}]")
    nfirst = CHK - pv0[15]
    fbk += L("s_waitcnt lgkmcnt(0)") + L("\n".join(pl[:nfirst]))
    fbk += L("s_add_u32 s55, s55, 0x2000\ns_cmp_lt_u32 s55, 0x20000\ns_cbranch_scc0 L_fb_done") + L("\n".join(pl[nfirst:])) + L("s_branch L_fb2\nL_fb_done:\ns_nop 7")
    for qb in range(4): fbk += L(f"v_accvgpr_read_b32 v{116+qb}, a{128+qb*4}")
    fbk += L("s_branch L_fb_ret")
    errs = check(fbk, "fb")
    assert not errs, "\n".join(errs[:30])
    full = resolve_waits(fix_m0(pro + G_ + mid + A_ + epi))
    full, prog = collapse(full)
    errs = check(full, "fused")
    assert not errs, "\n".join(errs[:30])
    def keep(x):
        t = x.tag
        if isinstance(t, tuple):
            if P.get("ablTW") and t[0] == "TW" and t[1] >= 5: return False
            if P.get("ablTB") and t[0] == "TB" and t[1] >= 5: return False
            if P.get("ablE") and t[0] in ("Bst", "Bld"): return False
        if P.get("noOst") and t == "Ost": return False
        return True
    prog = [x for x in prog if keep(x)]
    return dict(name=NAME + "_kernel", body=text(prog + ool + fbk + L("L_code_end:")), grid=256, block=256, lds=163840, vgpr=512, accum=256, sgpr=102)

if __name__ == "__main__":
    STAMP = "stamp" in sys.argv
    open("t_s.s", "w").write(build_file([gen_fused()]))
    for v in sys.argv[1:]:
        if v == "stamp": continue
        P = {}
        for kv in v.split(","):
            k, _, val = kv.partition("="); P[k] = int(val, 0) if val else 1
        open("t_s_" + v.replace(",", "_").replace("=", "") + ".s", "w").write(build_file([gen_fused(P)]))
```

```python
import sys, struct, math
from gen_core import *
from asmlib import build_file, NAME
from gen import srd, tr_addr, wdma_addr, lane_consts, MF
XN_OFF = 0; O_OFF = 4 << 20; H_OFF = 20 << 20; EX_OFF = 36 << 20; MB_REL = 32 << 20; TS_OFF = 104 << 20
STG = 45056
GST = [0, 90112, 45056]
PAIR = [131072, 98304, 65536, 32768, 0]
K2SLOT = [0, 16384, 32768, 49152, 131072, 147456, 98304, 114688, 65536, 81920]
FBSLOT0 = 98304
BRING = [[('a', 176 + 4 * i) for i in range(8)], [('a', 208 + 4 * i) for i in range(8)], [('a', 144 + 4 * i) for i in range(8)],
         [('a', 240 + 4 * i) for i in range(4)] + [('a', 128 + 4 * i) for i in range(4)], [('v', 32 + 4 * i) for i in range(8)]]
def b2reg(n, s, mb):
    k, b = BRING[n % 5][s * 4 + mb]
    return f'{k}[{b}:{b+3}]'
f2u = lambda f: struct.unpack("<I", struct.pack("<f", f))[0]
QSCALE = f2u(math.log2(math.e) / math.sqrt(128.0))
LNLDS = 163840 - 512
STAMP = False
SC = " sc1"
NST = [0]
def stamp():
    if not STAMP: return []
    k = NST[0]; NST[0] += 1
    return L(f"s_memtime s[84:85]\ns_memrealtime s[86:87]\ns_waitcnt lgkmcnt(0)\nv_writelane_b32 v0, s84, {2*k}\nv_writelane_b32 v0, s86, {2*k+1}")
def stamp_store():
    if not STAMP: return []
    t = srd(8, 60, 61, 1 << 20, TS_OFF)
    t += L("s_lshl_b32 s62, s2, 10\ns_lshl_b32 s63, s33, 8\ns_add_u32 s62, s62, s63\nv_lshlrev_b32 v1, 2, v1\nv_add_u32 v1, s62, v1\nbuffer_store_dword v0, v1, s[8:11], 0 offen")
    return t
def once(lst):
    for x in lst: x.once = True
    return lst
def ASSERTD(tag):
    x = Ins("; @ASSERTD"); x.vm = tag; return x
def ASSERT(tag):
    x = Ins("; @ASSERT"); x.vm = tag; return x

def gen_fused(P=None):
    P = dict(dict(LA=2, LA2=4, thr=f2u(2.0 ** 24), touch0=0, touch=4, ocap=3, slp0=0, slp=2, xsp=3, wsp=5, lb=56, ctouch=4, order=2, sync=1, pre=1, tg=0, tkv=0, pad=0, ectouch=0, ochk=12, tsp=3, pub5=78, bpub=6, fsplit=200, npw=6, bal=1, ct2=1, wd=4, bd=4, fl5=12, osp=16), **(P or {}))
    NST[0] = 0
    LA = P["LA"]; LA2 = P["LA2"]
    ool = []
    pro = L("""
    s_cmp_ge_u32 s2, 256
    s_cbranch_scc1 L_end
    s_load_dwordx2 s[92:93], s[0:1], 0      ; x
    s_load_dwordx4 s[48:51], s[0:1], 8      ; K, V
    s_load_dwordx4 s[52:55], s[0:1], 24
    s_load_dwordx4 s[56:59], s[0:1], 48
    s_load_dwordx4 s[72:75], s[0:1], 64
    s_load_dwordx4 s[60:63], s[0:1], 80
    """)
    pro += lane_consts()
    pro += L("""
    s_lshr_b32 s34, s2, 3
    s_and_b32 s35, s2, 4
    s_and_b32 s32, s34, 3
    s_add_u32 s32, s32, s35           ; rb
    s_bfe_u32 s35, s2, 0x10001
    s_and_b32 s3, s2, 1
    s_lshl_b32 s3, s3, 1
    s_add_u32 s35, s35, s3
    s_lshr_b32 s34, s34, 2
    s_lshl_b32 s3, s35, 3
    s_add_u32 s34, s34, s3            ; j
    s_lshl_b32 s3, s32, 5
    s_add_u32 s3, s3, s34
    s_lshl_b32 s4, s3, 3
    v_and_b32 v32, 7, v1
    v_add_u32 v33, s4, v32            ; row
    v_lshlrev_b32 v34, 11, v33
    v_lshrrev_b32 v35, 3, v1
    s_lshl_b32 s4, s33, 3
    v_add_u32 v35, s4, v35            ; kstep s
    v_lshl_add_u32 v34, v35, 6, v34
    s_mov_b32 s94, 0x400000
    s_mov_b32 s95, 0x20000
    s_waitcnt lgkmcnt(0)
    """)
    for i in range(4): pro += [Ins(f"buffer_load_dwordx4 v[{64+4*i}:{67+4*i}], v34, s[92:95], 0 offen offset:{16*i}", tag="x")]
    pro += stamp()
    defer = []
    dst = (lambda: pro) if P["ectouch"] else (lambda: defer)
    if P["ctouch"]:
        pro += L(f"""
        s_getpc_b64 s[72:73]
        """) * 0
        dst().extend(L(f"""
        s_getpc_b64 s[84:85]
        L_pc:
        s_sub_u32 s84, s84, L_pc-{NAME}_kernel
        s_subb_u32 s85, s85, 0
        s_lshr_b32 s86, s2, 3
        s_lshl_b32 s86, s86, 2
        s_add_u32 s86, s86, s33
        s_and_b32 s86, s86, 31
        s_lshl_b32 s86, s86, 12
        v_lshl_add_u32 v124, v1, 6, s86
        s_mov_b32 s87, L_code_end-{NAME}_kernel-4
        v_min_u32 v124, s87, v124
        """) + [Ins("global_load_dword v124, v124, s[84:85]", tag="touch")])
    pro += L("s_mov_b32 s44, s60\ns_mov_b32 s45, s61\ns_mov_b32 s46, 256\ns_mov_b32 s47, 0x20000\ns_mov_b32 s60, s62\ns_mov_b32 s61, s63")
    pro += L("s_lshl_b32 s62, s34, 8")
    pro += wdma_addr(7, 8192, "s62", t0=36, st=63)
    pro += L(f"""
    s_lshr_b32 s62, s34, 1
    s_mul_i32 s62, s62, 448
    s_and_b32 s63, s34, 1
    s_lshl_b32 s70, s63, 8
    s_add_u32 s70, s70, s62           ; colP
    s_lshl_b32 s71, s63, 5
    s_add_u32 s71, s71, s62
    s_add_u32 s71, s71, 192           ; colX
    v_lshrrev_b32 v36, 5, v1
    v_lshlrev_b32 v36, 3, v36
    v_bfe_u32 v37, v1, 2, 3
    v_add_u32 v36, v36, v37
    s_lshl_b32 s62, s33, 4
    v_add_u32 v36, s62, v36
    s_movk_i32 s62, 7168
    v_mul_lo_u32 v11, v36, s62
    v_bfe_u32 v36, v1, 4, 1
    v_lshlrev_b32 v36, 1, v36
    v_and_b32 v37, 3, v1
    v_xor_b32 v36, v36, v37
    v_lshl_add_u32 v11, v36, 4, v11
    s_add_u32 s70, s70, 4096
    v_add_u32 v11, s70, v11
    v_subrev_u32 v12, 960, v11
    v_subrev_u32 v13, 1920, v11
    v_lshrrev_b32 v36, 1, v1
    s_and_b32 s63, s33, 1
    s_lshl_b32 s63, s63, 5
    v_add_u32 v36, s63, v36
    v_mul_lo_u32 v14, v36, s62
    v_and_b32 v37, 1, v1
    v_lshl_add_u32 v14, v37, 4, v14
    s_add_u32 s71, s71, 4096
    v_add_u32 v14, s71, v14
    s_lshl_b32 s5, s33, 12
    s_mul_i32 s6, s33, 3072
    s_lshl_b32 s7, s33, 10
    """)
    pro += srd(8, 52, 53, 8 << 20) + srd(12, 56, 57, (7 << 20) + 4096, -4096) + srd(16, 58, 59, (7 << 20) + 4096, -4096)
    pro += L("s_cmp_lt_u32 s33, 2\ns_cselect_b32 s20, s12, s16\ns_cselect_b32 s21, s13, s17") + L(f"s_mov_b32 s22, {(7<<20)+4096:#x}\ns_mov_b32 s23, 0x20000")
    pro += srd(76, 54, 55, 8 << 20) + srd(80, 72, 73, 7 << 20) + srd(96, 74, 75, 4 << 20)
    pro += L("s_mov_b32 s52, 0\ns_mov_b32 s53, 0\ns_mov_b32 s54, 0")
    pro += L(f"s_mov_b32 s90, {GST[0]}\ns_mov_b32 s88, {GST[1]}\ns_mov_b32 s89, {GST[2]}")
    def wloads(t):
        sb = GST[t % 3]
        reg = (sb, sb + STG, ("G", t)); tag = ("W", t)
        r = [Ins("s_add_u32 m0, s5, s90")]
        r += [Ins(f"buffer_load_dwordx4 v{7+z}, s[8:11], s52 offen offset:{z*1024} lds", tag=tag, wr=reg) for z in range(4)]
        r += [Ins("s_add_u32 s100, s6, s90"), Ins("s_add_u32 m0, s100, 16384")]
        r += [Ins(f"buffer_load_dwordx4 v{11+z}, s[12:15], s53 offen offset:{z*1024} lds", tag=tag, wr=reg) for z in range(3)]
        r += [Ins("s_add_u32 m0, s100, 28672")]
        r += [Ins(f"buffer_load_dwordx4 v{11+z}, s[16:19], s53 offen offset:{z*1024} lds", tag=tag, wr=reg) for z in range(3)]
        r += [Ins("s_add_u32 s100, s7, s90"), Ins("s_add_u32 m0, s100, 40960")]
        r += [Ins(f"buffer_load_dwordx4 v14, s[20:23], s53 offen lds", tag=tag, wr=reg)]
        r += [Ins("s_add_u32 s52, s52, 0x80000"), Ins("s_add_u32 s53, s53, 0x70000")]
        r += L("s_mov_b32 s100, s90\ns_mov_b32 s90, s88\ns_mov_b32 s88, s89\ns_mov_b32 s89, s100")
        return r
    def breg(t, s, mb):
        k = (s * 4 + mb) * 4
        return f"v[{64+k}:{67+k}]" if t % 2 == 0 else f"a[{224+k}:{227+k}]"
    def xloads(t):
        r = [Ins(f"buffer_load_dwordx4 {breg(t, s, mb)}, v{15+s}, s[24:27], s54 offen offset:{mb*1024}{SC}", tag=("X", t) if t else ("X0", mb * 2 + s)) for mb in range(4) for s in range(2)]
        r += [Ins("s_add_u32 s54, s54, 0x2000")]
        return r
    wl0 = wloads(0); wl1 = wloads(1); late_w1 = []; tile0 = []
    if P['order'] == 1: defer[:0] = wl0 + wl1
    elif P['order'] == 2: pro += wl0; defer[:0] = wl1
    elif P['order'] == 3: defer[:0] = wl0; late_w1 = wl1
    elif P['order'] == 4: pro += wl0; late_w1 = wl1
    elif P['order'] == 5: pro += wl0; defer[:0] = wl1
    elif P['order'] == 7: pro += wl0; tile0 = wl1 + defer; defer = []
    elif P['order'] == 8: pro += wl0; tile0 = list(wl1)
    else: pro += wl0 + wl1
    pro += L("""
    s_lshl_b32 s62, s2, 2
    s_add_u32 s62, s62, s33
    s_lshl_b32 s63, s62, 12
    v_lshlrev_b32 v31, 6, v1
    v_add_u32 v31, s63, v31
    s_lshl_b32 s63, s62, 10
    v_and_b32 v30, 15, v1
    v_lshlrev_b32 v30, 6, v30
    v_add_u32 v30, s63, v30
    """)
    if P["touch"] == 4:
        pro += L("s_mul_i32 s63, s62, 1280\nv_min_u32 v31, 9, v1\nv_lshlrev_b32 v31, 7, v31\nv_add_u32 v31, s63, v31")
    def touch(v, sr, off):
        return [Ins(f"s_mov_b32 s62, {off:#x}"), Ins(f"buffer_load_dword v127, v{v}, s[{sr}:{sr+3}], s62 offen", tag="touch")]
    if P["touch0"]:
        defer.extend(touch(30, 8, 128 * 8192) + touch(30, 12, 4096 + 128 * 7168) + touch(30, 16, 4096 + 128 * 7168))
    pro += srd(64, 60, 61, MB_REL + 32768, EX_OFF)
    pro += L(f"""
    s_lshl_b32 s62, s3, 7
    s_add_u32 s62, s62, {MB_REL:#x}
    v_and_b32 v36, 31, v1
    v_add_u32 v28, s62, v1
    s_lshl_b32 s62, s32, 12
    s_add_u32 s62, s62, s34
    s_add_u32 s62, s62, {MB_REL:#x}
    v_lshl_add_u32 v29, v36, 7, s62
    v_mov_b32 v37, 0x7fff0000
    v_lshrrev_b32 v38, 5, v1
    v_or_b32 v38, s33, v38
    v_cmp_eq_u32 vcc, 0, v38
    v_mov_b32 v126, 0
    s_nop 0
    v_cndmask_b32 v29, v37, v29, vcc
    s_cmp_eq_u32 s33, 0
    s_cselect_b32 s70, 0, 0x40000000
    v_or_b32 v38, s33, v1
    v_cmp_eq_u32 vcc, 0, v38
    v_mov_b32 v36, s3
    s_lshl_b32 s62, s32, 5
    v_cndmask_b32 v27, v37, v36, vcc
    v_and_b32 v26, 31, v1
    v_add_u32 v26, s62, v26
    """)
    if P.get("lnst"): pro += stamp()
    pro += L(f"s_mov_b32 s62, 0xffff0000") + [W(vm="x")]
    if P.get("lnst"): pro += stamp()
    for e in range(32):
        pro += L(f"v_lshlrev_b32 v{80+e}, 16, v{64+e//2}" if e % 2 == 0 else f"v_and_b32 v{80+e}, s62, v{64+e//2}")
    def red8(v):
        return L(f"""
        s_nop 1
        v_add_f32_dpp v{v}, v{v}, v{v} row_ror:8 row_mask:0xf bank_mask:0xf
        v_mov_b32 v40, v{v}
        s_nop 1
        v_permlane16_swap_b32 v{v}, v40
        v_add_f32 v{v}, v{v}, v40
        v_mov_b32 v40, v{v}
        s_nop 1
        v_permlane32_swap_b32 v{v}, v40
        v_add_f32 v{v}, v{v}, v40
        """)
    pro += L("v_pk_add_f32 v[36:37], v[80:81], v[82:83]\nv_pk_add_f32 v[38:39], v[84:85], v[86:87]")
    for e in range(8, 32, 4): pro += L(f"v_pk_add_f32 v[36:37], v[36:37], v[{80+e}:{81+e}]\nv_pk_add_f32 v[38:39], v[38:39], v[{82+e}:{83+e}]")
    pro += L("v_pk_add_f32 v[36:37], v[36:37], v[38:39]\nv_add_f32 v36, v36, v37") + red8(36) + L("v_mul_f32 v36, 0x3b800000, v36\nv_mov_b32 v52, 0\nv_mov_b32 v53, 0\nv_mov_b32 v54, 0\nv_mov_b32 v55, 0")
    for e in range(0, 32, 4):
        pro += L(f"""v_pk_add_f32 v[44:45], v[{80+e}:{81+e}], v[36:37] op_sel_hi:[1,0] neg_lo:[0,1] neg_hi:[0,1]
        v_pk_add_f32 v[46:47], v[{82+e}:{83+e}], v[36:37] op_sel_hi:[1,0] neg_lo:[0,1] neg_hi:[0,1]
        v_pk_fma_f32 v[52:53], v[44:45], v[44:45], v[52:53]
        v_pk_fma_f32 v[54:55], v[46:47], v[46:47], v[54:55]""")
    pro += L("v_pk_add_f32 v[52:53], v[52:53], v[54:55]\nv_add_f32 v37, v52, v53") + red8(37)
    pro += L(f"""
    v_lshlrev_b32 v38, 5, v32
    v_add_u32 v38, {LNLDS:#x}, v38
    s_lshl_b32 s63, s33, 3
    v_add_u32 v39, s63, v38
    ds_write_b64 v39, v[36:37]
    s_waitcnt lgkmcnt(0)
    s_barrier
    ds_read_b128 v[44:47], v38
    ds_read_b128 v[48:51], v38 offset:16
    v_lshrrev_b32 v42, 6, v33
    v_lshlrev_b32 v42, 17, v42
    v_lshl_add_u32 v42, v35, 12, v42
    v_bfe_u32 v43, v33, 4, 2
    v_lshl_add_u32 v42, v43, 10, v42
    v_and_b32 v43, 15, v33
    v_lshl_add_u32 v42, v43, 4, v42
    """)
    pro += srd(24, 60, 61, 4 << 20, XN_OFF)
    pro += L("""
    s_waitcnt lgkmcnt(0)
    v_add_f32 v36, v44, v46
    v_add_f32 v37, v48, v50
    v_add_f32 v36, v36, v37
    v_mul_f32 v36, 0.25, v36
    v_add_f32 v37, v45, v47
    v_add_f32 v38, v49, v51
    v_add_f32 v37, v37, v38
    v_sub_f32 v44, v44, v36
    v_sub_f32 v46, v46, v36
    v_sub_f32 v48, v48, v36
    v_sub_f32 v50, v50, v36
    v_mul_f32 v38, v44, v44
    v_fmac_f32 v38, v46, v46
    v_fmac_f32 v38, v48, v48
    v_fmac_f32 v38, v50, v50
    v_fmac_f32 v37, 0x43800000, v38
    v_mul_f32 v37, 0x3a800000, v37
    v_cvt_pk_bf16_f32 v38, v36, v37
    v_lshlrev_b32 v36, 16, v38
    v_and_b32 v37, s62, v38
    v_add_f32 v37, 0x3727c5ac, v37
    v_cvt_pk_bf16_f32 v37, v37, v37
    v_and_b32 v37, s62, v37
    v_sqrt_f32 v37, v37
    s_nop 0
    v_cvt_pk_bf16_f32 v37, v37, v37
    v_and_b32 v37, s62, v37
    v_rcp_f32 v37, v37
    s_nop 0
    """)
    for e in range(0, 32, 2): pro += L(f"v_pk_add_f32 v[{80+e}:{81+e}], v[{80+e}:{81+e}], v[36:37] op_sel_hi:[1,0] neg_lo:[0,1] neg_hi:[0,1]")
    for q in range(16): pro += L(f"v_cvt_pk_bf16_f32 v{64+q}, v{80+2*q}, v{81+2*q}")
    for e in range(32):
        pro += L(f"v_lshlrev_b32 v{80+e}, 16, v{64+e//2}" if e % 2 == 0 else f"v_and_b32 v{80+e}, s62, v{64+e//2}")
    for e in range(0, 32, 2): pro += L(f"v_pk_mul_f32 v[{80+e}:{81+e}], v[{80+e}:{81+e}], v[36:37] op_sel:[0,1]")
    for g in range(4):
        for h, q in enumerate((2 * g, 2 * g + 1, 8 + 2 * g, 9 + 2 * g)):
            pro += L(f"v_cvt_pk_bf16_f32 v{64+g*4+h}, v{80+2*q}, v{81+2*q}")
        pro += [Ins(f"buffer_store_dwordx4 v[{64+g*4}:{67+g*4}], v42, s[24:27], 0 offen offset:{g*256}{SC}", tag="xn")]
    pro += L(f"buffer_store_byte v126, v28, s[64:67], s70 offen{SC}")
    if P.get("lnst"): pro += stamp()
    pro += L("s_nop 0\nv_mov_b32 v126, 1")
    pro += tr_addr(96, 0, True, 1024, 36) + tr_addr(97, 1, True, 1024, 36) + tr_addr(98, 0, False, 512, 36) + tr_addr(99, 1, False, 512, 36)
    pro += L("v_lshlrev_b32 v100, 3, v1")
    for i in range(5): pro += L(f"v_mov_b32 v{2+i}, v{96+i}")
    if P.get("lnst"): pro += [W(vm="all")] + stamp()
    if P["sync"] == 0:
        pro += [W(vm="all"), Ins("s_barrier"), Ins(f"buffer_store_byte v126, v27, s[44:47], 0 offen{SC}", tag="flag")]
    else:
        pro += L("v_and_b32 v27, 0xffffffe0, v27\nv_mov_b32 v125, 1")
        pro += [W(vm="all"), Ins("s_barrier"), Ins(f"buffer_atomic_add v125, v27, s[44:47], 0 offen sc0 sc1", tag="flag")]
    pro += stamp()
    if P["sync"]:
        pro += [W(vm="flag")] + L(f"""
        v_readfirstlane_b32 s70, v125
        s_sub_u32 s63, 48, s34
        s_and_b32 s70, s70, 31
        s_cmp_eq_u32 s70, 31
        s_cselect_b32 s62, s63, 0x40000000
        buffer_store_byte v126, v29, s[64:67], s62 offen{SC}
        """)
    if P["order"] == 5:
        def cp(lst, m):
            o = []
            for x in fix_m0(lst):
                y = x.copy(); y.text = y.text.replace("L_pc", "L_pc" + m) + ("" if y.label else " ; opt" + m); o.append(y)
            return o
        pro += L("s_cmp_eq_u32 s33, 0\ns_cbranch_scc1 L_skipA") + cp(defer, "A") + L("L_skipA:")
        late_w1 = L("s_cmp_lg_u32 s33, 0\ns_cbranch_scc1 L_skipB") + cp(defer, "B") + L("L_skipB:")
    else: pro += defer
    pro += L(f"""
    s_lshl_b32 s62, s32, 2
    s_add_u32 s62, s62, s33
    s_lshl_b32 s63, s62, 17
    v_lshlrev_b32 v25, 4, v1
    v_add_u32 v15, s63, v25
    v_add_u32 v16, 0x1000, v15
    s_lshl_b32 s62, s35, 19
    s_add_u32 s62, s62, {1536*256:#x}
    s_add_u32 s28, s48, s62
    s_addc_u32 s29, s49, 0
    s_mov_b32 s30, 0x20000
    s_mov_b32 s31, 0x20000
    s_add_u32 s36, s50, s62
    s_addc_u32 s37, s51, 0
    s_mov_b32 s38, 0x20000
    s_mov_b32 s39, 0x20000
    v_lshrrev_b32 v36, 4, v1
    v_and_b32 v37, 15, v1
    v_lshl_add_u32 v38, v36, 8, s5
    """)
    pro += srd(40, 60, 61, 16 << 20, O_OFF)
    for z in range(4):
        pro += L(f"v_add_u32 v39, {4*z}, v36\nv_xor_b32 v39, v39, v37\nv_lshl_add_u32 v{17+z}, v39, 4, v38")
    pro += wdma_addr(21, 256, "0", t0=40, st=63)
    pro += L("s_mov_b32 s55, 0\ns_mov_b32 s56, 0\ns_mov_b32 s57, -1\ns_mov_b32 s91, 6\ns_mov_b32 s58, 0")
    for i in range(224): pro += L(f"v_accvgpr_write_b32 a{i}, 0")
    for i in range(128, 256, 2): pro += L(f"v_mov_b64 v[{i}:{i+1}], 0")
    if P["sync"] == 0:
        pro += [W(vm=("W", 0))]
        pro += L(f"""
        s_cmp_lg_u32 s33, 0
        s_cbranch_scc1 L_x_go
        s_mov_b32 s70, 0x40000
        s_sleep {P['slp0']}
        L_x_poll:
        buffer_load_ubyte v125, v26, s[44:47], 0 offen{SC} ; w0only
        s_waitcnt vmcnt(0) ; w0only
        v_cmp_gt_u32 vcc, 1, v125
        s_sub_u32 s70, s70, 1
        s_cbranch_scc1 L_x_go
        s_cbranch_vccz L_x_go
        s_sleep {P['slp']}
        s_branch L_x_poll
        L_x_go:
        s_barrier
        """)
    else:
        if P["pad"]:
            pro += L("""
            s_cmp_eq_u32 s33, 0
            s_cbranch_scc1 L_scout_ret
            s_mov_b64 exec, 0
            s_cmp_eq_u32 s33, 1
            s_cbranch_scc1 L_pad1_0
            s_cmp_eq_u32 s33, 2
            s_cbranch_scc1 L_pad2_0
            s_branch L_pad3_0
            L_scout_ret:
            s_mov_b64 exec, -1
            """)
        pro += [W(vm=("W", 0))]
        pro += L(f"""
        s_cmp_lg_u32 s33, 0
        s_cbranch_scc1 L_x_go
        s_mov_b32 s70, 0x40000
        L_x_poll:
        buffer_load_ubyte v125, v28, s[64:67], 0 offen{SC} ; w0only
        s_waitcnt vmcnt(0) ; w0only
        v_readlane_b32 s62, v125, 48
        s_sub_u32 s70, s70, 1
        s_cbranch_scc1 L_x_go
        s_cmp_eq_u32 s62, 0
        s_cbranch_scc1 L_x_poll
        L_x_go:
        s_barrier
        """)
    pro += stamp() + (xloads(0) + late_w1 + xloads(1) if not P.get('o6') else xloads(0) + xloads(1) + [W(vm=('X', 0))] + late_w1)
    pro += srd(44, 60, 61, 14 << 20, H_OFF)
    pro += stamp()
    def kvloads(tau, dyn):
        r = []
        for v in range(2):
            sb = PAIR[tau % 5] + v * 16384; i = 2 * tau + v; reg = (sb, sb + 16384, ("KV", i)); tag = ("KV", i)
            r.append(Ins(f"s_add_u32 m0, s89, {v*16384}" if dyn else f"s_add_u32 m0, s5, {sb:#x}"))
            for z in range(4):
                r.append(Ins(f"buffer_load_dwordx4 v{(21 if v else 17)+z}, s[{36 if v else 28}:{39 if v else 31}], s55 offen offset:{z*1024} lds", tag=tag, wr=reg))
        r.append(Ins("s_add_u32 s55, s55, 0x4000"))
        return r
    blocks = []
    for p in range(3):
        for e in range(2):
            for m in range(2):
                bi = (p * 2 + e) * 2 + m
                blocks.append((4 + e, (lambda s, r, p=p, m=m: 16384 + m * 12288 + (2 * s + r) * 3072 + p * 1024), "a", bi * 16))
    for m in range(2):
        blocks.append((6, (lambda s, r, m=m: 40960 + m * 2048 + s * 1024 + r * 512), "a", (12 + m) * 16))
    for nb in range(8):
        b32, e = nb >> 1, nb & 1
        blocks.append((2 + e, (lambda s, r, b32=b32: (b32 >> 1) * 8192 + (b32 & 1) * 512 + s * 4096 + r * 2048), "v", 128 + nb * 16))
    NB = len(blocks); T = 16; TM = NB * 8
    gg = [(t, nb) for t in range(14) for nb in range(NB)] + [(14, nb) for nb in range(14)] + [(15, nb) for nb in range(14)] + [(14, nb) for nb in range(14, 22)] + [(15, nb) for nb in range(14, 22)]
    gidx = {k: i for i, k in enumerate(gg)}
    sc = Sched(2)
    for G, (t, nb) in enumerate(gg):
        va, imm, ak, ab = blocks[nb]; fb = 32 + (G % 4) * 8
        for mb in range(4):
            for s in ((0, 1) if (mb % 2 == 0 or not P.get("snake")) else (1, 0)):
                ac = f"{ak}[{ab+mb*4}:{ab+mb*4+3}]"
                sc.mfma(f"{MF} {ac}, v[{fb+s*4}:{fb+s*4+3}], {breg(t, s, mb)}, {ac}")
    def rd(G):
        t, nb = gg[G]; va, imm, _, _ = blocks[nb]; fb = 32 + (G % 4) * 8; sb = GST[t % 3]
        return [Ins(f"ds_read_b64_tr_b16 v[{fb+s*4+r*2}:{fb+s*4+r*2+1}], v{va} offset:{imm(s, r)}", tag=("P", G), rd=(sb, sb + STG, ("G", t))) for s in range(2) for r in range(2)]
    LB = P['lb']
    for it in range(8):
        g = 2 * it * TM + LB
        if it == 0: sc.used[g] += 2
        else: sc.fixed_front(g, L("s_sub_u32 s91, s91, 1\ns_cbranch_scc0 L_G"))
        sc.fixed_front(g, Ins("; @IT G" if it < 7 else "; @ENDIT G"))
    for t in range(0, T):
        g0 = gidx[(t, 0)] * 8
        if t >= 1: sc.fixed_front(g0 - 8 * LA, [W(vm=("W", t)), Ins("s_barrier")])
        if t: sc.fixed_back(g0, W(vm=("X", t)))
        else:
            for i in range(8): sc.fixed_back(i, W(vm=("X0", i | 1)))
    for G in range(len(gg)): sc.fixed_back(G * 8, W(lg=("P", G)))
    d15 = GST[0] - GST[2]
    for G, (t, nb) in enumerate(gg):
        upd = []
        if nb == 0 and 0 < t < 15: upd = [f"v_add_u32 v{va}, s88, v{94+va}" for va in range(2, 7)]
        if (t, nb) == (15, 0): upd = [f"v_subrev_u32 v{va}, {-d15:#x}, v{va}" for va in (4, 5, 6)]
        if (t, nb) == (15, 14): upd = [f"v_subrev_u32 v{va}, {-d15:#x}, v{va}" for va in (2, 3)]
        for u_ in upd: sc.flow("lds", 8 * (G - LA) - 3, Ins(u_), deadline=8 * (G - LA))
        for i, x in enumerate(rd(G)): sc.flow("lds", 8 * (G - LA) + i, x, deadline=8 * (G - 1) + 2)
    for t in range(1, 15): sc.fixed_front(t * TM + 2, Ins("s_barrier ; FB"))
    def vflow(S, g, its, sp, dl=None):
        for x in its:
            if x.kind == "vmem": x.cost = 2
            g = S.flow("vm", g if dl is None else min(g, dl), x, mingap=(1 if x.kind == "vmem" and S.qpos.get("vm") != dl else 0), deadline=dl) + (sp if x.kind == "vmem" else 0)
        return g
    for t in range(0, 15):
        g = t * TM + 1
        if t == 0:
            its = []
            if P["tkv"]: its += touch(30, 28, 0) + touch(30, 36, 0)
            if P["tg"]:
                its += touch(31, 8, 256 * 8192) + touch(31, 12, 4096 + 256 * 7168) + touch(31, 16, 4096 + 256 * 7168)
                its += touch(31, 8, 512 * 8192) + touch(31, 12, 4096 + (3 << 20)) + touch(31, 16, 4096 + (3 << 20))
            pcg = [x for x in tile0 if "getpc" in x.text or "L_pc" in x.text or x.text.startswith("s_subb_u32 s85")]
            g = vflow(sc, g, [x for x in tile0 if x not in pcg][:23], 1)
            if pcg:
                g = sc.flowg("vm", g, pcg); g = vflow(sc, g, [x for x in tile0 if x not in pcg][23:], 1)
            g = vflow(sc, g, its, P["xsp"] - 1)
            early = L(f"""
            s_lshl_b32 s62, s32, 2
            s_add_u32 s62, s62, s33           ; mb64
            s_mul_i32 s63, s62, {112*4096}
            s_lshr_b32 s59, s34, 1
            s_mul_i32 s59, s59, 7
            s_and_b32 s4, s34, 1
            s_lshl_b32 s73, s4, 2
            s_add_u32 s73, s73, s59
            s_lshl_b32 s73, s73, 12
            s_add_u32 s73, s73, s63           ; H P base
            s_add_u32 s59, s59, 3
            s_lshl_b32 s59, s59, 12
            s_add_u32 s59, s59, s63
            s_lshl_b32 s4, s4, 3
            s_add_u32 s59, s59, s4            ; H lone base
            s_lshr_b32 s48, s34, 3            ; q
            s_and_b32 s49, s34, 7
            s_lshl_b32 s49, s49, 8            ; ct bytes
            s_mul_i32 s72, s48, {15 if P['bal'] else 14}
            s_lshr_b32 s50, s48, 1
            s_and_b32 s50, s50, s48
            s_mul_i32 s50, s50, {2 if P['bal'] else 0}
            s_sub_u32 s72, s72, s50           ; first b tile: 0,15,30,43
            s_lshl_b32 s50, s72, 17
            s_lshl_b32 s72, s72, 13
            s_add_u32 s72, s72, s63
            s_lshl_b32 s74, s48, 21
            s_lshl_b32 s75, s62, 19
            s_lshl_b32 s51, s34, 14
            s_add_u32 s51, s51, s75           ; O store base
            s_lshl_b32 s4, s48, 17
            s_add_u32 s75, s75, s4
            """) + wdma_addr(101, 2048, "0", t0=109, st=63) + L("s_lshl_b32 s63, s48, 6")
            for z in range(4): early += L(f"v_xor_b32 v{101+z}, s63, v{101+z}\nv_add_u32 v{101+z}, s49, v{101+z}")
            early += L(f"""
            v_lshrrev_b32 v109, 4, v1
            v_and_b32 v110, 15, v1
            v_xor_b32 v109, v109, v110
            v_lshlrev_b32 v109, 4, v109
            v_lshl_add_u32 v105, v110, 8, v109
            v_add_u32 v105, {PAIR[0]:#x}, v105
            v_lshrrev_b32 v109, 5, v1
            v_lshl_add_u32 v106, v109, 9, v98
            v_lshl_add_u32 v107, v109, 9, v99
            v_add_u32 v106, {PAIR[0]+16384+32768:#x}, v106
            v_add_u32 v107, {PAIR[0]+16384+32768:#x}, v107
            s_lshr_b32 s62, s2, 3
            s_lshl_b32 s62, s62, 2
            s_add_u32 s62, s62, s33
            s_and_b32 s62, s62, 31
            s_lshl_b32 s62, s62, 12
            v_lshl_add_u32 v108, v1, 6, s62
            s_mov_b32 s63, L_code_end-{NAME}_kernel-4
            v_min_u32 v108, s63, v108
            """)
            for x in early: sc.flow("early", 1, x, deadline=LB - 1)
            sc.flowg("early", 1, L(f"s_getpc_b64 s[68:69]\nL_pc2:\ns_sub_u32 s68, s68, L_pc2-{NAME}_kernel\ns_subb_u32 s69, s69, 0"), deadline=LB - 1)
        else:
            ex = []
            if P["touch"] == 4 and t % 2 == 1:
                ex = [Ins("buffer_load_dword v127, v31, s[80:83], s58 offen", tag="touch"), Ins("buffer_load_dword v127, v31, s[76:79], s58 offen", tag="touch"), Ins(f"s_add_u32 s58, s58, {1024*1280:#x}")]
            g = vflow(sc, g, xloads(t + 1) + ex, P["xsp"])
        assert g < t * TM + LB + P["xsp"] or t % 2 == 1, g - t * TM
        g = max(g, t * TM + LB + 1)
        items = wloads(t + 2) if t + 2 < T else []
        if t == 14:
            items += kvloads(0, False) + kvloads(1, False)
            if P["touch"] == 1: items += touch(31, 80, 0) + touch(31, 80, 3 << 20) + touch(31, 76, 0) + touch(31, 76, 4 << 20)
        g = vflow(sc, g, items, P["wsp"] if t < 14 else 3)
        assert g < (t + 1) * TM - 8 * LA - 4 + P["wsp"] or t >= 14, g - t * TM
    g0 = 14 * TM + LB + 1
    hs = L(f"s_mov_b32 s52, s73\ns_add_u32 s53, s73, 4096\ns_add_u32 s54, s73, 8192\ns_mov_b32 s3, s59\ns_mov_b32 s70, {QSCALE:#x}\ns_mov_b32 s71, s70")
    for x in hs: sc.flow("hd", g0, x)
    k = 0
    for p in range(4):
        ne = 2 if p < 3 else 1
        for mb in range(4):
            tb = 110; ob = (118, 122, 96)[k % 3]; k += 1
            last = gidx[(15, 4 * p + 3 if p < 3 else 13)] * 8 + mb * 2 + 1
            g = last + 6
            for e in range(ne):
                bi = (p * 2 + e) * 2 if p < 3 else 12
                for i in range(4):
                    sc.flow("hd", g, Ins(f"v_accvgpr_read_b32 v{tb+i}, a{bi*16+mb*4+i}")); sc.flow("hd", g, Ins(f"v_accvgpr_read_b32 v{tb+4+i}, a{(bi+1)*16+mb*4+i}"))
                for q in range(4): sc.flow("hd", g, Ins(f"v_mul_f32 v{tb+q}, v{tb+q}, v{tb+4+q}"))
                for q in range(2): sc.flow("hd", g, Ins(f"v_cvt_pk_bf16_f32 v{ob+e*2+q}, v{tb+2*q}, v{tb+2*q+1}"))
            if p < 3: x = Ins(f"buffer_store_dwordx4 v[{ob}:{ob+3}], v25, s[44:47], s{52+p} offen offset:{mb*1024}{SC}", tag="Hst")
            else: x = Ins(f"buffer_store_dwordx2 v[{ob}:{ob+1}], v25, s[44:47], s3 offen offset:{mb*1024}{SC}", tag="Hst")
            sc.flow("hd", g, x)
    def qfr(qb, be): return 128 + 32 * be + 4 * qb
    for be in range(4):
        g = gidx[(15, 14 + 2 * be + 1)] * 8 + 7 + 6
        for qb in range(4):
            a = qfr(qb, be); b = a + 16
            for r in (a, a + 1, a + 2, a + 3, b, b + 1, b + 2, b + 3): sc.flow("qp", g, Ins(f"v_mul_f32 v{r}, s70, v{r}"))
            for h, r in enumerate((a, a + 2, b, b + 2)): sc.flow("qp", g, Ins(f"v_cvt_pk_bf16_f32 v{a+h}, v{r}, v{r+1}"))
        sw_ = L("s_mov_b64 exec, s[56:57]") + sum([L(f"v_swap_b32 v{qfr(qb, be)}, v{qfr(qb, be)+2}\nv_swap_b32 v{qfr(qb, be)+1}, v{qfr(qb, be)+3}") for qb in range(4)], []) + L("s_mov_b64 exec, -1")
        sc.flowg("qp", len(sc.mf), sw_)
    tail = sc.mid[len(sc.mf)]; nt = []
    i = 0
    while i < len(tail):
        x = tail[i]
        if i + 1 < len(tail) and x.text.startswith("v_mul_f32") and tail[i + 1].text.startswith("v_mul_f32"):
            o1 = [o.strip() for o in x.text[10:].split(",")]; o2 = [o.strip() for o in tail[i + 1].text[10:].split(",")]
            r = int(o1[0][1:])
            if r % 2 == 0 and int(o2[0][1:]) == r + 1:
                if o1[1] == "s70": nt.append(Ins(f"v_pk_mul_f32 v[{r}:{r+1}], v[{r}:{r+1}], s[70:71]"))
                else:
                    q = int(o1[2][1:]); nt.append(Ins(f"v_pk_mul_f32 v[{r}:{r+1}], v[{r}:{r+1}], v[{q}:{q+1}]"))
                i += 2; continue
        nt.append(x); i += 1
    print("G", sc.stats()[:50], "exposed tail instrs", len(nt))
    sc.mid[len(sc.mf)] = stamp() + L("s_nop 7") + nt
    G_ = sc.emit()
    if STAMP and P.get("gst"):
        i = [k for k, x in enumerate(G_) if x.text == "; @IT G"][0]
        G_ = G_[:i] + stamp() + G_[i:]
        i = [k for k, x in enumerate(G_) if x.text == "; @ENDIT G"][0] + 1
        G_ = G_[:i] + stamp() + G_[i:]
    mid = L(f"""
    v_mov_b32 v11, v105
    v_xor_b32 v12, 64, v105
    v_xor_b32 v13, 0x80, v105
    v_xor_b32 v14, 0xc0, v105
    s_mov_b32 s100, 0xffff8000
    s_mov_b32 s101, 0x20000
    s_add_u32 s4, s5, {PAIR[0]:#x}
    """)
    mid += stamp()
    late = L("""
    v_mov_b32 v15, v106
    v_mov_b32 v16, v107
    v_mov_b32 v7, v101
    v_mov_b32 v8, v102
    v_mov_b32 v9, v103
    v_mov_b32 v10, v104
    v_mov_b32 v127, v108
    """)
    late2 = L("""
    v_and_b32 v120, 3, v1
    v_cmp_eq_u32 vcc, 0, v120
    v_mov_b32 v121, 0x3f803f80
    v_add_u32 v26, 0x1000, v25
    v_cndmask_b32 v112, 0, v121, vcc
    v_cndmask_b32 v113, 0, v121, vcc
    v_cndmask_b32 v114, 0, v121, vcc
    v_cndmask_b32 v115, 0, v121, vcc
    """)
    late3 = L("""
    v_add_u32 v4, 0x10000, v2
    v_add_u32 v5, 0x10000, v3
    v_add_u32 v6, 0x20000, v2
    v_add_u32 v30, 0x20000, v3
    s_mov_b32 s71, s50
    s_lshr_b32 s50, s48, 1
    s_lshl_b32 s50, s50, 30
    s_mov_b32 s53, s51
    s_mov_b32 s88, 3
    s_mov_b32 s91, 3
    """)
    at = Sched(2)
    qk0 = {}; pv0 = {}
    KR = 11; VR = 15
    def sbl(u, qb, kb): return 144 + 64 * (u % 2) + 32 * kb + 4 * qb
    def kfb(u, kb, be):
        f = (144 if u % 2 else 64) + (kb * 4 + be) * 4
        return f"{'a' if u % 2 else 'v'}[{f}:{f+3}]"
    def qk_list(u, first, kf):
        r = []
        for qb in range(4):
            for kb in range(2):
                d = sbl(u, qb, kb)
                for be in range(4):
                    c = f"v[{d}:{d+3}]" if be else ("0" if first else f"v[{96+qb*4}:{99+qb*4}]")
                    q = qfr(qb, be)
                    r.append(f"{MF} v[{d}:{d+3}], {kf(kb, be)}, v[{q}:{q+3}], {c}")
        return r
    def dborder(u): return [8, 0, 1, 2, 3, 4, 5, 6, 7] if u == 15 else list(range(9))
    def pv_list(u, vf, first=False):
        r = []
        for db in dborder(u):
            for qb in range(4):
                ac = (db * 4 + qb) * 4; pf = sbl(u, qb, 0)
                a = vf(db) if db < 8 else "v[112:115]"
                r.append(f"{MF} a[{ac}:{ac+3}], {a}, v[{pf}:{pf+3}], {'0' if first else f'a[{ac}:{ac+3}]'}")
        return r
    def QK(u):
        qk0[u] = len(at.mf)
        for m in qk_list(u, u == 0, lambda kb, be: kfb(u, kb, be)): at.mfma(m)
    def PV(u):
        pv0[u] = len(at.mf)
        for m in pv_list(u, lambda db: f"v[{32+db*4}:{35+db*4}]", u == 0): at.mfma(m)
    QK(0); QK(1)
    for u in range(14): PV(u); QK(u + 2)
    PV(14); PV(15)
    NU = 16
    def pvpos(u, db): return pv0[u] + dborder(u).index(db) * 4
    kb0 = len(at.mf)
    BAL = P['bal']; NT = 30 + BAL; NN = NT - 5; NBT = 14 + BAL
    grp = [(n, nb) for n in range(NN) for nb in range(8)] + [(n, nb) for n in range(NN, NT - 2) for nb in range(2, 8)] + [(n, 2 * lam + e) for lam in range(1, 4) for n in (NT - 2, NT - 1) for e in range(2)] + [(n, nb) for n in range(NN, NT) for nb in range(2)]
    g2 = {k: i for i, k in enumerate(grp)}
    def acc2(n, nb, mb):
        r = (nb * 4 + mb) * 4
        return f"v[{128+r}:{131+r}]" if n < NBT else f"a[{r}:{r+3}]"
    for G, (n, nb) in enumerate(grp):
        fb = 64 + (G % 4) * 8
        for mb in range(4):
            for si, s in enumerate((0, 1) if (mb % 2 == 0 or not P.get("snake")) else (1, 0)):
                ac = acc2(n, nb, mb)
                at.mfma(f"{MF} {ac}, v[{fb+s*4}:{fb+s*4+3}], {b2reg(n, s, mb)}, {'0' if (n in (0, NBT) and si == 0) else ac}")
    def gp(G): return kb0 + 8 * G
    def t0(n): return gp(g2[(n, 0 if n < NN else 2)])
    VLA = 12; ALB = 4
    CHK = pv0[15] + 12
    NIT = 5
    for it in range(1, NIT + 1):
        g = pv0[2 * it] + ALB
        if it == 1: at.used[g] += 2
        else: at.fixed_front(g, L("s_sub_u32 s91, s91, 1\ns_cbranch_scc0 L_A"))
        at.fixed_front(g, Ins("; @IT A" if it < NIT else "; @ENDIT A"))
    at.fixed_front(-10, [W(vm=("KV", 0)), Ins("s_barrier")])
    bpos = {}
    for tau in range(8):
        bpos[tau] = pv0[2 * tau] - VLA - 1
        at.fixed_front(bpos[tau], [W(vm=("KV", min(2 * tau + 2, 15))), Ins("s_barrier")])
    b2 = {}
    for n in range(NT):
        b2[n] = t0(n) - 8 * LA
        at.fixed_front(b2[n], [W(vm=("TW", n)), Ins("s_barrier")])
        at.fixed_back(t0(n), W(vm=("TB", n)))
    for G in range(len(grp)): at.fixed_back(gp(G), W(lg=("P2", G)))
    assert b2[0] > CHK
    for u in range(NU):
        at.fixed_back(qk0[u], W(lg=("K", u, 0)))
        at.fixed_back(qk0[u] + 4, W(lg=("K", u, 1)))
        for db in range(0, 8, 2): at.fixed_back(pvpos(u, db), W(lg=("V", u, db + 1)))
    chk = []
    for qb in range(4): chk += L(f"v_accvgpr_read_b32 v{116+qb}, a{128+qb*4}")
    chk += L(f"""
    v_max3_f32 v124, v116, v117, v118
    s_mov_b32 s62, {P['thr']:#x}
    v_max_f32 v124, v124, v119
    v_cmp_nge_f32 vcc, s62, v124
    s_cbranch_vccnz L_fallback
    L_fb_ret:
    """)
    for qb in range(4): chk += L(f"v_rcp_f32 v{120+qb}, v{116+qb}")
    at.fixed_front(CHK, chk)
    for x in late: at.flow("late", 1, x, deadline=11)
    ev = []; evk = []
    def kreads(u):
        tau = u // 2; sb = PAIR[tau % 5]; r = []
        if u % 2 == 0 and u > 0:
            r.append(L("s_cmp_eq_u32 s88, 2\ns_cselect_b32 s90, s101, s100") if 4 <= u <= 2 * NIT else L("s_mov_b32 s90, s100"))
            r += [Ins(f"v_add_u32 v{x}, s90, v{x}") for x in range(KR, KR + 4)]
        for kb in range(2):
            for be in range(4):
                r.append(Ins(f"ds_read_b128 {kfb(u, kb, be)}, v{KR+be} offset:{((u%2)*2+kb)*4096}", tag=("K", u, kb), rd=(sb, sb + 16384, ("KV", 2 * tau))))
        return r
    def vreads(u, db):
        tau = u // 2; sb = PAIR[tau % 5] + 16384; r = []
        if u % 2 == 0 and db == 0:
            r.append(L("s_cmp_eq_u32 s88, 2\ns_cselect_b32 s59, s101, s100") if 4 <= u <= 2 * NIT else L("s_mov_b32 s59, s100"))
            r += [Ins(f"v_add_u32 v{x}, s59, v{x}") for x in (VR, VR + 1)]
        b32, e = db >> 1, db & 1; f = 32 + db * 4
        for rr in range(2):
            r.append(Ins(f"ds_read_b64_tr_b16 v[{f+rr*2}:{f+rr*2+1}], v{VR+e} offset:{(b32>>1)*8192+(b32&1)*512+(u%2)*4096+rr*2048}", tag=("V", u, db), rd=(sb, sb + 16384, ("KV", 2 * tau + 1))))
        return r
    for i, x in enumerate(kreads(0)): evk.append((-9 + i // 2, 0, x))
    for i, x in enumerate(kreads(1)): evk.append((4 + 2 * (i // 2 * 2), qk0[1] - 4, x))
    for u in range(NU):
        for db in range(8):
            lo = pvpos(u, db) - VLA
            if u >= 1: lo = max(lo, pvpos(u - 1, db) + 4)
            for x in vreads(u, db): ev.append((lo, pvpos(u, db & ~1) - 4, x))
        if u + 2 < NU:
            kr = kreads(u + 2); off = 1 if len(kr) > 8 else 0
            for i, x in enumerate(kr): evk.append((pv0[u] + ALB + 3 + (4 if u % 2 else 3) * ((i + off) // 2), qk0[u + 2] - 4, x))
    def rd2(G):
        n, nb = grp[G]; sb = K2SLOT[n % 10]; fb = 64 + (G % 4) * 8
        b32, e = nb >> 1, nb & 1
        va = [(2, 3), (4, 5), (6, 30)][sb >> 16][e]
        return [Ins(f"ds_read_b64_tr_b16 v[{fb+s*4+rr*2}:{fb+s*4+rr*2+1}], v{va} offset:{(sb & 0xffff)+(b32>>1)*8192+(b32&1)*512+s*4096+rr*2048}", tag=("P2", G), rd=(sb, sb + 16384, ("T", n))) for s in range(2) for rr in range(2)]
    for G in range(len(grp)):
        for i, x in enumerate(rd2(G)): ev.append((gp(G - LA) + i, gp(G - 1) + 2, x))
    ev.sort(key=lambda e: e[0])
    for it in range(1, NIT):
        at.fixed_front(pv0[2 * it] + ALB + 1, L("s_add_u32 s88, s88, 1\ns_cmp_eq_u32 s88, 5\ns_cselect_b32 s88, 0, s88"))
        at.fixed_front(pv0[2 * it] + ALB + 2, L("s_lshl_b32 s89, s88, 15\ns_sub_u32 s89, s4, s89"))
    def maxseq(a, b, t0):
        return [f"v_max3_f32 v{t0}, v{a}, v{a+1}, v{a+2}", f"v_max3_f32 v{t0+1}, v{a+3}, v{b}, v{b+1}", f"v_max3_f32 v{t0}, v{t0}, v{b+2}, v{b+3}", f"v_max_f32 v{t0}, v{t0}, v{t0+1}"]
    def xlane(t0, t1):
        return [f"v_mov_b32 v{t1}, v{t0}", "s_nop 1", f"v_permlane16_swap_b32 v{t0}, v{t1}", f"v_max_f32 v{t0}, v{t0}, v{t1}",
                f"v_mov_b32 v{t1}, v{t0}", "s_nop 1", f"v_permlane32_swap_b32 v{t0}, v{t1}", f"v_max_f32 v{t0}, v{t0}, v{t1}"]
    for q_, lst in (("lds", ev), ("ldsk", evk)):
        for g, dl, x in lst:
            if isinstance(x, list): at.flowg(q_, g, x, deadline=dl, strict=True)
            else: at.flow(q_, g, x, deadline=dl)
    nspin = [0]
    def flagload(tag): return Ins(f"buffer_load_ubyte v125, v28, s[64:67], 0 offen{SC}", tag=tag)
    def fineload(tag): return Ins(f"buffer_load_dword v125, v22, s[64:67], 0 offen{SC}", tag=tag)
    def check_(tag, test, reload):
        k = nspin[0]; nspin[0] += 1
        ool.extend(L(f"L_spin{k}:\ns_mov_b32 s70, 0x40000\nL_spin{k}_l:\n{reload}\ns_waitcnt vmcnt(0)\ns_sub_u32 s70, s70, 1\ns_cbranch_scc1 L_spin{k}_ret\n{test}\ns_cbranch_scc0 L_spin{k}_ret\ns_sleep 1\ns_branch L_spin{k}_l"))
        return [W(vm=tag)] + L(f"{test}\ns_cbranch_scc1 L_spin{k}\nL_spin{k}_ret:")
    def flagcheck(tag, need): return check_(tag, f"v_cmp_gt_u32 vcc, {need}, v125\ns_and_b32 s62, vcc_lo, -1", flagload(0).text)
    def finecheck(tag, mask): return check_(tag, f"v_readfirstlane_b32 s62, v125\ns_and_b32 s62, s62, {mask:#x}\ns_cmp_lg_u32 s62, {mask:#x}", fineload(0).text)
    def pubstore(): return Ins(f"buffer_store_byte v126, v29, s[64:67], 0 offen{SC}", tag="flag")
    def finepub(lam): return Ins(f"buffer_store_byte v126, v23, s[64:67], s{15+lam} offen{SC}", tag="flag")
    def tw(n):
        sb = K2SLOT[n % 10]; sr = 80 if n < NBT else 76
        r = L("s_mov_b32 s71, s74") if n == NBT else []
        if BAL and n == NBT - 2: r += L("s_add_u32 s71, s71, s50")
        r += [Ins(f"s_add_u32 m0, s5, {sb:#x}")]
        r += [Ins(f"buffer_load_dwordx4 v{7+z}, s[{sr}:{sr+3}], s71 offen offset:{z*1024} lds", tag=("TW", n), wr=(sb, sb + 16384, ("T", n))) for z in range(4)]
        return r + L("s_add_u32 s71, s71, 0x20000")
    def tb(n):
        sr = 44 if n < NBT else 40
        r = L("s_mov_b32 s72, s75") if n == NBT else []
        if BAL and n == NBT - 2: r += L("s_add_u32 s72, s72, s50")
        r += [Ins(f"buffer_load_dwordx4 {b2reg(n, s, mb)}, v{25+s}, s[{sr}:{sr+3}], s72 offen offset:{mb*1024}{SC}", tag=("TB", n)) for s in range(2) for mb in range(4)]
        return r + L("s_add_u32 s72, s72, 0x2000")
    def exch(br, lam, store, base, tag):
        r = L(f"s_mov_b32 s58, {br*(16<<20)+lam*16384:#x}")
        for i in range(4):
            rr = f"v[{base+4*i}:{base+4*i+3}]"
            r.append(Ins(f"buffer_store_dwordx4 {rr}, v17, s[64:67], s58 offen offset:{i*1024}{SC}" if store else f"buffer_load_dwordx4 {rr}, v{17+lam}, s[64:67], s58 offen offset:{i*1024}{SC}", tag=tag))
        return r
    vq = []
    vq.append((-9, kvloads(2, False), 3, 48))
    hb = P.get("hb", 0)
    at.front[bpos[hb]].insert(0, W(vm="Hst")); at.used[bpos[hb]] += 1
    vq.append((bpos[hb] + 1, [ASSERT("Hst"), Ins("v_mov_b32 v126, 2"), pubstore()], 0, bpos[hb] + 6))
    vq.append((pv0[0] + ALB + 3, kvloads(3, False), 13 if not hb else 11, pv0[0] + ALB + (125 if not hb else 110)))
    for it in range(1, NIT): vq.append((pv0[2 * it] + ALB + 3, kvloads(it + 3, True), 13, pv0[2 * it] + ALB + 125))
    e0 = pv0[12] + ALB
    if P.get("ct2"):
        gg_ = pv0[0] + ALB + (130 if not hb else 112) if P["ct2"] == 1 else e0
        vq.append((gg_, [Ins("global_load_dword v127, v127, s[68:69]", tag="touch")], 0, gg_ + 1))
    e5 = pv0[10] + ALB
    vq.append((e5 + 1, [flagload("fH")] + tw(0) + tw(1) + tw(2) + tw(3), 6, e5 + 130))
    vq.append((e0 + 1, [flagcheck("fH", 2)] + tb(0) + tb(1), 6, e0 + 130))
    NPW = P["npw"]
    if NPW > 6:
        vq.append((e0 + 131, tw(4) + tw(5), 2, pv0[15] - 1))
        vq.append((pv0[15], sum([tw(n) for n in range(6, NPW)], []), 0, CHK - 1))
    else: vq.append((pv0[15], sum([tw(n) for n in range(4, NPW)], []), 0, CHK - 1))
    vq.append((CHK + 1, tb(2) + (tb(3) if P['bd'] > 3 else []), 3 if P['bd'] <= 3 else 1, kb0 + 10))
    OC = P["ochk"]; WD = P["wd"]; BD = P["bd"]
    for m in range(0, NT - 2):
        its = []
        if NPW <= m + WD < NT: its += tw(m + WD)
        n = m + BD
        if m == OC: its += [flagcheck("fO", 3)] + sum([tb(k_) for k_ in range(NBT, n + 1)], [])
        elif n < NT and not (NBT <= n and m < OC): its += tb(n)
        if its: vq.append((t0(m) + (11 if m == 0 else 1), its, P["tsp"] if len(its) < 18 else 1, t0(m + 1) - 1))
    vq.append((t0(OC - 2) + 30, [flagload("fO")], 0))
    nmain = len(vq)
    for lam in range(1, 4):
        b = 128 + 32 * lam
        vq.append((t0(NBT + lam - 1) + 10, [Ins(f"v_cvt_pk_bf16_f32 v{b+i}, v{b+2*i}, v{b+2*i+1}") for i in range(16)] + exch(0, lam, True, b, ("Bst", lam)), 10))
    vq.append((t0(NBT + P['bpub']) + 30, [[Ins("v_mov_b32 v126, 1"), W(vm=("Bst", 3))], finepub(1), finepub(2), finepub(3)], 1))
    vq.append((t0(NBT + P['bpub'] + 2) + 10, [fineload("fB")] + [Ins(f"buffer_load_dwordx4 v[{96+mb*4}:{99+mb*4}], v21, s[92:95], s{52+mb} offen", tag="xld") for mb in range(4)], 4))
    vq.append((t0(NN + 1), [finecheck("fB", 0x01010100)] + sum([exch(0, lam, False, 144 + 32 * lam, ("Bld", lam)) for lam in range(1, 4)], []), 5))
    for lam in range(1, 4):
        g = gp(g2[(NT - 1, 2 * lam + 1)]) + 8 + 5
        its = []
        for i in range(0, 32, 8):
            its += [Ins(f"v_accvgpr_read_b32 v{112+q}, a{32*lam+i+q}") for q in range(8)] + [Ins(f"v_cvt_pk_bf16_f32 v{128+32*lam+i//2+q}, v{112+2*q}, v{113+2*q}") for q in range(4)]
        vq.append((g, its + exch(1, lam, True, 128 + 32 * lam, ("Sst", lam)), 2))
    gk = gp(g2[(NN, 0)])
    vy = []
    for lam in range(1, 4):
        vy.append((gk + P["pub5"] - (3 - lam) * 32, [[Ins("v_mov_b32 v126, 3"), W(vm=("Sst", lam))], finepub(lam)], 0))
    vy.append((gk + P["pub5"] - 1, [fineload("f51")], 0))
    for Q, lst in (("vm", sorted(vq[:nmain], key=lambda e: e[0])), ("vx", sorted(vq[nmain:], key=lambda e: e[0])), ("vy", sorted(vy, key=lambda e: e[0]))):
        if Q == "vx":
            for g in range(t0(NN), len(at.mf)): at.capo[g] = 3
        for g, its, sp, *dl in lst:
            dl = dl[0] if dl else None
            for x in its:
                if dl is not None: g = min(g, dl)
                if isinstance(x, list): g = at.flowg(Q, g, x, deadline=dl)
                elif x.kind == "comment":
                    g = max(g, at.qpos.get(Q, g)); at.mid[g].append(x); at.qpos[Q] = g
                elif Q == "vm": g = vflow(at, g, [x], sp, dl)
                else: g = at.flow(Q, g, x, deadline=dl) + (sp if x.kind == "vmem" else 0)
    rdy0 = {}
    for qb in range(4):
        a, b = sbl(0, qb, 0), sbl(0, qb, 1); t0_ = 116 + (qb % 2) * 2; g = qb * 8 + 7 + 6
        seq = maxseq(a, b, t0_) + xlane(t0_, t0_ + 1) + [f"v_sub_f32 v{96+qb*4+i}, 0, v{t0_}" for i in range(4)] + [f"v_sub_f32 v{r}, v{r}, v{t0_}" for r in list(range(a, a + 4)) + list(range(b, b + 4))]
        for i, s_ in enumerate(seq): at.flow("mx", g, Ins(s_), deadline=(qk0[1] + qb * 8 - 2 if i < 16 else pv0[0] - 6))
        rdy0[qb] = at.qpos["mx"] + 1
    exps = []
    for u in range(NU):
        w0 = pv0[u - 1] + ALB if 1 <= u <= 2 * NIT + 1 else 0
        for i in range(32):
            qb, rem = divmod(i, 8)
            ready = qk0[u] + qb * 8 + (rem // 4) * 4 + 3 + 6
            if u == 0: ready = max(ready, rdy0[qb])
            exps.append((max(ready, w0), u, i))
    ei = 0; pend = []
    def put(g, x): at.mid[g].append(x); at.used[g] += x.cost
    for g in range(0, kb0):
        def do_exp():
            nonlocal ei
            _, u, i = exps[ei]; ei += 1
            qb, rem = divmod(i, 8); r = sbl(u, qb, rem // 4) + rem % 4
            put(g, Ins(f"v_exp_f32 v{r}, v{r}"))
            if i % 2: pend.append((g + 1, u, Ins(f"v_cvt_pk_bf16_f32 v{sbl(u, qb, 0)+rem//2}, v{r-1}, v{r}")))
        while ei < len(exps) and pv0[exps[ei][1]] - 2 <= g: do_exp()
        while pend and pv0[pend[0][1]] - 1 <= g: put(g, pend.pop(0)[2])
        nr = sum(1 for p_ in pend if p_[0] <= g)
        if at.used[g] == 0 and ei < len(exps) and exps[ei][0] <= g and nr < 4: do_exp()
        while at.used[g] < 2 and pend and pend[0][0] <= g: put(g, pend.pop(0)[2])
    assert ei == len(exps) and not pend
    for x in late2: at.flow("late", 1, x, deadline=pv0[0] + 28)
    for x in late3: at.flow("late", pv0[0] + 1, x, deadline=pv0[2] + ALB - 1)
    for g in range(CHK + 2, t0(4)): at.capo[g] = P["ocap"]
    for x in L("s_add_u32 s54, s53, 4096\ns_add_u32 s55, s53, 8192\ns_add_u32 s3, s53, 12288"): at.flow("od", CHK + 1, x)
    k = 0
    for b32 in range(4):
        for qb in range(4):
            tb_ = 96 + (k % 2) * 8; ob = 112 + (k % 2) * 4; k += 1
            g = max(pvpos(15, 2 * b32 + 1) + 4 + 8, kb0 - 8 + (k - 1) * P["osp"])
            for e in range(2):
                for i in range(4): at.flow("od", g, Ins(f"v_accvgpr_read_b32 v{tb_+e*4+i}, a{((b32*2+e)*4+qb)*4+i}"))
            for q in range(8): at.flow("od", g, Ins(f"v_mul_f32 v{tb_+q}, v{tb_+q}, v{120+qb}"))
            for q in range(4): gq = at.flow("od", g, Ins(f"v_cvt_pk_bf16_f32 v{ob+q}, v{tb_+2*q}, v{tb_+2*q+1}"))
            at.flow("od", gq, Ins(f"buffer_store_dwordx4 v[{ob}:{ob+3}], v25, s[40:43], {['s53','s54','s55','s3'][b32]} offen offset:{qb*1024}{SC}", tag="Ost"))
    npub = [n for n in range(NN) if b2[n] > at.qpos["od"] + 40][0]
    print("O drain ends at K2 tile", (at.qpos["od"] - kb0) / 64, "publish at b2", npub)
    at.front[b2[npub]].insert(0, W(vm="Ost")); at.used[b2[npub]] += 1
    for x in [ASSERT("Ost"), Ins("v_mov_b32 v126, 3"), pubstore()]: at.flow("od", b2[npub] + 1, x)
    xa = L(f"""
    s_lshl_b32 s62, s32, 5
    s_add_u32 s62, s62, s34           ; gid
    s_lshl_b32 s63, s62, 16
    s_lshl_b32 s4, s33, 12
    s_add_u32 s63, s63, s4
    v_add_u32 v17, s63, v25
    v_xor_b32 v18, {8<<16:#x}, v17
    v_xor_b32 v19, {16<<16:#x}, v17
    v_xor_b32 v20, {24<<16:#x}, v17
    s_lshl_b32 s62, s62, 7
    s_lshl_b32 s4, s33, 2
    s_add_u32 s62, s62, s4
    s_add_u32 s62, s62, {MB_REL+32:#x}
    v_mov_b32 v22, s62
    s_xor_b32 s16, s62, {(8<<7)+1:#x}
    s_xor_b32 s17, s62, {(16<<7)+2:#x}
    s_xor_b32 s18, s62, {(24<<7)+3:#x}
    v_cmp_eq_u32 vcc, 0, v1
    v_mov_b32 v23, 0x7ff00000
    v_and_b32 v21, 15, v1
    v_cndmask_b32 v23, v23, 0, vcc
    s_lshl_b32 s62, s32, 8
    s_lshl_b32 s63, s33, 6
    s_add_u32 s62, s62, s63
    v_add_u32 v21, s62, v21
    v_lshlrev_b32 v21, 11, v21
    v_lshrrev_b32 v24, 4, v1
    v_lshl_add_u32 v21, v24, 4, v21
    s_lshl_b32 s62, s48, 6
    s_add_u32 s62, s62, s49
    v_add_u32 v21, s62, v21
    s_mov_b32 s52, 0
    s_mov_b32 s53, 0x8000
    s_mov_b32 s54, 0x10000
    s_mov_b32 s55, 0x18000
    s_mov_b32 s68, 0xbfb8aa3b
    s_mov_b32 s69, 0xffff0000
    """)
    assert at.qpos["od"] < t0(OC - 2)
    for x in xa: at.flow("od", at.qpos["od"], x, deadline=t0(OC - 1))
    def unp(d, src, i): return Ins(f"v_lshlrev_b32 v{d}, 16, v{src+i//2}" if i % 2 == 0 else f"v_and_b32 v{d}, s69, v{src+i//2}")
    fin = [W(vm=("Bld", 3)), Ins("s_mov_b32 s16, s68"), Ins("s_mov_b32 s17, s68")]
    for lam in range(1, 4):
        for i in range(32): fin.append(unp(32 + i, 144 + 32 * lam, i))
        for i in range(0, 32, 2): fin += L(f"v_pk_add_f32 v[{128+i}:{129+i}], v[{128+i}:{129+i}], v[{32+i}:{33+i}]")
    for i0 in range(0, 32, 4):
        tmp = 112 + (i0 // 4 % 2) * 4; r = 128 + i0
        for i in (0, 2): fin += L(f"v_pk_mul_f32 v[{tmp+i}:{tmp+i+1}], v[{r+i}:{r+i+1}], s[16:17]")
        for i in range(4): fin += L(f"v_exp_f32 v{tmp+i}, v{tmp+i}")
        for i in range(4): fin += L(f"v_add_f32 v{tmp+i}, 1.0, v{tmp+i}")
        for i in range(4): fin += L(f"v_rcp_f32 v{tmp+i}, v{tmp+i}")
        fin += L("s_nop 0")
        for i in (0, 2): fin += L(f"v_pk_mul_f32 v[{r+i}:{r+i+1}], v[{r+i}:{r+i+1}], v[{tmp+i}:{tmp+i+1}]")
    fin += L("s_mov_b64 exec, s[56:57]") + sum([L(f"v_swap_b32 v{96+mb*4}, v{98+mb*4}\nv_swap_b32 v{97+mb*4}, v{99+mb*4}") for mb in range(4)], []) + L("s_mov_b64 exec, -1")
    for mb in range(4):
        for q in range(8): fin.append(unp(160 + ((q // 4) * 4 + mb) * 4 + q % 4, 96 + mb * 4, q))
    print("attn+k2", [(i, at.used[i]) for i in range(-12, kb0 + 20) if at.used[i] > 2], "pv0", pv0, "qk0", qk0, "CHK", CHK, "kb0", kb0)
    if BAL:
        at.front[t0(NBT - 2)].insert(0, Ins("; @SKIP0")); at.front[t0(NBT)].insert(0, Ins("; @SKIP1"))
        for m_ in range(t0(NBT - 2), t0(NBT)): at.mf[m_].tag = "skipme"
    A_ = at.emit()
    if STAMP and P.get("ast"):
        i = [k for k, x in enumerate(A_) if x.text == "; @IT A"][0]
        A_ = A_[:i] + stamp() + A_[i:]
        i = [k for k, x in enumerate(A_) if x.text == "; @ENDIT A"][0] + 1
        A_ = A_[:i] + stamp() + A_[i:]
    if STAMP:
        for m_ in (kb0, t0(5), t0(NN)) + ((gp(g2[(NT - 2, 2)]), gk) if P.get("tst") else ()):
            i = [k for k, x in enumerate(A_) if x is at.mf[m_]][0]
            A_ = A_[:i] + stamp() + A_[i:]
    nf = P["fsplit"]
    sd = {1: 192, 2: 224, 3: 208}
    nb_ = 3 + 3 * 48
    epi = stamp() + L("s_nop 7") + fin[:100] + finecheck("f51", 0x00020200) + exch(1, 1, False, sd[1], ("Sld", 1)) + exch(1, 2, False, sd[2], ("Sld", 2))
    epi += fin[100:nf] + [fineload("f5")] + fin[nf:] + finecheck("f5", 0x02000000) + exch(1, 3, False, sd[3], ("Sld", 3))
    epi += stamp()
    for i in range(32): epi += L(f"v_accvgpr_read_b32 v{64+i}, a{i}")
    for lam in range(1, 4):
        epi += [W(vm=("Sld", lam))]
        for i in range(32): epi += [unp(32 + i, sd[lam], i)]
        for i in range(0, 32, 2): epi += L(f"v_pk_add_f32 v[{64+i}:{65+i}], v[{64+i}:{65+i}], v[{32+i}:{33+i}]")
    epi += stamp()
    for mb in range(4):
        for e in range(2):
            for h in range(2):
                i = (e * 4 + mb) * 4 + 2 * h
                epi += L(f"v_pk_fma_f32 v[{160+i}:{161+i}], v[{64+i}:{65+i}], v[{128+i}:{129+i}], v[{160+i}:{161+i}]")
        r = 96 + mb * 4
        for e in range(2):
            for h in range(2):
                i = (e * 4 + mb) * 4 + 2 * h
                epi += L(f"v_cvt_pk_bf16_f32 v{r+e*2+h}, v{160+i}, v{161+i}")
        epi += L(f"s_mov_b64 exec, s[56:57]\nv_swap_b32 v{r}, v{r+2}\nv_swap_b32 v{r+1}, v{r+3}\ns_mov_b64 exec, -1")
        epi += L(f"buffer_store_dwordx4 v[{r}:{r+3}], v21, s[96:99], s{52+mb} offen")
    epi += L("s_waitcnt vmcnt(0)") * STAMP + stamp() + stamp_store()
    epi += L("L_end:\ns_endpgm")
    vcur = PAIR[7 % 5] + 16384; kcur = PAIR[7 % 5]
    fbk = L(f"""
    L_fallback:
    s_waitcnt vmcnt(0) lgkmcnt(0)
    s_nop 7
    s_lshl_b32 s62, s33, 13
    s_add_u32 s88, s62, {FBSLOT0:#x}
    s_and_b32 s62, s33, 1
    s_lshl_b32 s62, s62, 13
    s_lshr_b32 s63, s33, 1
    s_lshl_b32 s63, s63, 7
    s_add_u32 s62, s62, s63
    """)
    for z in range(4): fbk += L(f"v_subrev_u32 v{17+z}, s5, v{17+z}\nv_subrev_u32 v{21+z}, s62, v{21+z}")
    fbk += L(f"s_sub_u32 s62, s88, {kcur:#x}")
    for b in range(4): fbk += L(f"v_add_u32 v{KR+b}, s62, v{KR+b}")
    fbk += L(f"s_sub_u32 s62, s88, {vcur:#x}\nv_add_u32 v116, s62, v{VR}\nv_add_u32 v117, s62, v{VR+1}")
    for qb in range(4): fbk += L(f"v_mov_b32 v{120+qb}, 0xff800000")
    def fb_k(first):
        o = []
        for kb in range(2):
            o += L(f"s_add_u32 m0, s88, {kb*4096}\ns_add_u32 s89, s55, {kb*4096}")
            for z in range(4): o += L(f"buffer_load_dwordx4 v{17+z}, s[28:31], s89 offen offset:{z*1024} lds")
        o += L("s_waitcnt vmcnt(0)")
        for kb in range(2):
            for be in range(4): o += L(f"ds_read_b128 {kfb(0, kb, be)}, v{KR+be} offset:{kb*4096}")
        o += L("s_waitcnt lgkmcnt(0)")
        o += L("\n".join(qk_list(1, first, lambda kb, be: kfb(0, kb, be)))) + L("s_nop 7")
        return o
    fbk += L("s_mov_b32 s55, 0\nL_fb1:") + fb_k(True)
    for qb in range(4):
        fbk += L("\n".join(maxseq(sbl(1, qb, 0), sbl(1, qb, 1), 118))) + L(f"v_max_f32 v{120+qb}, v{120+qb}, v118")
    fbk += L("s_add_u32 s55, s55, 0x2000\ns_cmp_lt_u32 s55, 0x20000\ns_cbranch_scc1 L_fb1")
    for qb in range(4):
        fbk += L("\n".join(xlane(120 + qb, 118)))
        for i in range(4): fbk += L(f"v_sub_f32 v{96+qb*4+i}, 0, v{120+qb}")
    for i in range(144): fbk += L(f"v_accvgpr_write_b32 a{i}, 0")
    fbk += L("s_mov_b32 s55, 0\nL_fb2:")
    fbk += fb_k(False)
    for bp in range(2):
        fbk += L(f"s_add_u32 m0, s88, {bp*4096}\ns_add_u32 s89, s55, {bp*128}")
        for z in range(4): fbk += L(f"buffer_load_dwordx4 v{21+z}, s[36:39], s89 offen offset:{z*1024} lds")
    fbk += L("s_waitcnt vmcnt(0)")
    for db in range(8):
        b32, e = db >> 1, db & 1
        for rr in range(2): fbk += L(f"ds_read_b64_tr_b16 a[{144+db*4+rr*2}:{145+db*4+rr*2}], v{116+e} offset:{(b32>>1)*4096+(b32&1)*512+rr*2048}")
    for qb in range(4):
        for kb in range(2):
            for i in range(4): fbk += L(f"v_exp_f32 v{sbl(1, qb, kb)+i}, v{sbl(1, qb, kb)+i}")
    for qb in range(4):
        for h in range(4): fbk += L(f"v_cvt_pk_bf16_f32 v{sbl(1, qb, 0)+h}, v{sbl(1, qb, h//2)+(h%2)*2}, v{sbl(1, qb, h//2)+(h%2)*2+1}")
    pl = pv_list(15, lambda db: f"a[{144+db*4}:{147+db*4}]")
    nfirst = CHK - pv0[15]
    fbk += L("s_waitcnt lgkmcnt(0)") + L("\n".join(pl[:nfirst]))
    fbk += L("s_add_u32 s55, s55, 0x2000\ns_cmp_lt_u32 s55, 0x20000\ns_cbranch_scc0 L_fb_done") + L("\n".join(pl[nfirst:])) + L("s_branch L_fb2\nL_fb_done:\ns_nop 7")
    for qb in range(4): fbk += L(f"v_accvgpr_read_b32 v{116+qb}, a{128+qb*4}")
    fbk += L("s_branch L_fb_ret")
    errs = check(fbk, "fb")
    assert not errs, "\n".join(errs[:30])
    full = resolve_waits(fix_m0(pro + G_ + mid + A_ + epi))
    full, prog = collapse(full)
    errs = check(full, "fused")
    assert not errs, "\n".join(errs[:30])
    if BAL:
        def split(tr):
            a = [i for i, x in enumerate(tr) if x.text == "; @SKIP0"][0]; b = [i for i, x in enumerate(tr) if x.text == "; @SKIP1"][0]
            return tr[:a], tr[a + 1:b], tr[b + 1:]
        pre, reg, post = split(full)
        alt = [x for x in reg if not (x.tag == "skipme" or (x.kind == "lds" and grp[x.tag[1]][0] in (NBT - 2, NBT - 1)) or (x.kind == "wait" and "vmcnt" not in x.text) or x.kind == "comment")]
        alt = L("s_waitcnt lgkmcnt(0)") + fix_m0([x.copy() for x in alt]); assert not any(x.label for x in alt)
        errs = check(pre + alt + post, "fused-alt")
        assert not errs, "\n".join(errs[:30])
        pre, reg, post = split(prog)
        prog = pre + L("s_cmp_lg_u32 s50, 0\ns_cbranch_scc1 L_skip") + reg + L("L_skip_ret:") + post
        ool = ool + L("L_skip:") + alt + L("s_branch L_skip_ret")
    def keep(x):
        t = x.tag
        if isinstance(t, tuple):
            if P.get("ablTW") and t[0] == "TW" and t[1] >= 5: return False
            if P.get("ablTB") and t[0] == "TB" and t[1] >= 5: return False
            if P.get("ablE") and t[0] in ("Bst", "Bld"): return False
        if P.get("noOst") and t == "Ost": return False
        return True
    prog = [x for x in prog if keep(x)]
    return dict(name=NAME + "_kernel", body=text(prog + ool + fbk + L("L_code_end:")), grid=256, block=256, lds=163840, vgpr=512, accum=256, sgpr=102)

if __name__ == "__main__":
    STAMP = "stamp" in sys.argv
    open("t_t.s", "w").write(build_file([gen_fused()]))
    for v in sys.argv[1:]:
        if v == "stamp": continue
        P = {}
        for kv in v.split(","):
            k, _, val = kv.partition("="); P[k] = int(val, 0) if val else 1
        open("t_t_" + v.replace(",", "_").replace("=", "") + ".s", "w").write(build_file([gen_fused(P)]))
```

```python
import sys, struct, math
from gen_core import *
from asmlib import build_file, NAME
from gen import srd, tr_addr, wdma_addr, lane_consts, MF
XN_OFF = 0; O_OFF = 4 << 20; H_OFF = 20 << 20; EX_OFF = 36 << 20; MB_REL = 0; TS_OFF = 104 << 20
STG = 45056
GST = [0, 90112, 45056]
PAIR = [131072, 98304, 65536, 32768, 0]
K2SLOT = [0, 16384, 32768, 49152, 131072, 147456, 98304, 114688, 65536]
XL = 81920
FBSLOT0 = 98304
BRING = [[('a', 176 + 4 * i) for i in range(8)], [('a', 208 + 4 * i) for i in range(8)], [('a', 144 + 4 * i) for i in range(8)],
         [('a', 240 + 4 * i) for i in range(4)] + [('a', 128 + 4 * i) for i in range(4)], [('v', 32 + 4 * i) for i in range(8)]]
def b2reg(n, s, mb):
    k, b = BRING[n % 5][s * 4 + mb]
    return f'{k}[{b}:{b+3}]'
f2u = lambda f: struct.unpack("<I", struct.pack("<f", f))[0]
QSCALE = f2u(math.log2(math.e) / math.sqrt(128.0))
LNLDS = 163840 - 512
STAMP = False
SC = " sc1"
NST = [0]
def stamp():
    if not STAMP: return []
    k = NST[0]; NST[0] += 1
    return L(f"s_memtime s[84:85]\ns_memrealtime s[86:87]\ns_waitcnt lgkmcnt(0)\nv_writelane_b32 v0, s84, {2*k}\nv_writelane_b32 v0, s86, {2*k+1}")
def stamp_store():
    if not STAMP: return []
    t = srd(8, 60, 61, 1 << 20, TS_OFF)
    t += L("s_lshl_b32 s62, s2, 10\ns_lshl_b32 s63, s33, 8\ns_add_u32 s62, s62, s63\nv_lshlrev_b32 v1, 2, v1\nv_add_u32 v1, s62, v1\nbuffer_store_dword v0, v1, s[8:11], 0 offen")
    return t
def once(lst):
    for x in lst: x.once = True
    return lst
def ASSERTD(tag):
    x = Ins("; @ASSERTD"); x.vm = tag; return x
def ASSERT(tag):
    x = Ins("; @ASSERT"); x.vm = tag; return x

def gen_fused(P=None):
    P = dict(dict(LA=2, LA2=4, thr=f2u(2.0 ** 24), touch0=0, touch=4, ocap=3, slp0=0, slp=2, xsp=3, wsp=5, lb=56, ctouch=4, order=2, sync=1, pre=1, tg=0, tkv=0, pad=0, ectouch=0, ochk=10, tsp=3, pub5=78, bpub=7, fsplit=200, npw=8, xt=20, xs=1, bsp=24, ct2=1, wd=4, bd=4, fl5=12, osp=16), **(P or {}))
    NST[0] = 0
    LA = P["LA"]; LA2 = P["LA2"]
    ool = []
    pro = L("""
    s_cmp_ge_u32 s2, 256
    s_cbranch_scc1 L_end
    s_load_dwordx2 s[92:93], s[0:1], 0      ; x
    s_load_dwordx4 s[48:51], s[0:1], 8      ; K, V
    s_load_dwordx4 s[52:55], s[0:1], 24
    s_load_dwordx4 s[56:59], s[0:1], 48
    s_load_dwordx4 s[72:75], s[0:1], 64
    s_load_dwordx4 s[60:63], s[0:1], 80
    """)
    pro += lane_consts()
    pro += L("""
    s_lshr_b32 s34, s2, 3
    s_and_b32 s35, s2, 1
    s_lshl_b32 s35, s35, 2
    s_and_b32 s32, s34, 3
    s_add_u32 s32, s32, s35           ; rb
    s_bfe_u32 s35, s2, 0x20001
    s_lshr_b32 s34, s34, 2
    s_lshl_b32 s3, s35, 3
    s_add_u32 s34, s34, s3            ; j
    s_lshl_b32 s3, s32, 5
    s_add_u32 s3, s3, s34
    s_lshl_b32 s4, s3, 3
    v_and_b32 v32, 7, v1
    v_add_u32 v33, s4, v32            ; row
    v_lshlrev_b32 v34, 11, v33
    v_lshrrev_b32 v35, 3, v1
    s_lshl_b32 s4, s33, 3
    v_add_u32 v35, s4, v35            ; kstep s
    v_lshl_add_u32 v34, v35, 6, v34
    s_mov_b32 s94, 0x400000
    s_mov_b32 s95, 0x20000
    s_waitcnt lgkmcnt(0)
    """)
    for i in range(4): pro += [Ins(f"buffer_load_dwordx4 v[{64+4*i}:{67+4*i}], v34, s[92:95], 0 offen offset:{16*i}", tag="x")]
    pro += stamp()
    defer = []
    dst = (lambda: pro) if P["ectouch"] else (lambda: defer)
    if P["ctouch"]:
        pro += L(f"""
        s_getpc_b64 s[72:73]
        """) * 0
        dst().extend(L(f"""
        s_getpc_b64 s[84:85]
        L_pc:
        s_sub_u32 s84, s84, L_pc-{NAME}_kernel
        s_subb_u32 s85, s85, 0
        s_lshr_b32 s86, s2, 3
        s_lshl_b32 s86, s86, 2
        s_add_u32 s86, s86, s33
        s_and_b32 s86, s86, 31
        s_lshl_b32 s86, s86, 12
        v_lshl_add_u32 v124, v1, 6, s86
        s_mov_b32 s87, L_code_end-{NAME}_kernel-4
        v_min_u32 v124, s87, v124
        """) + [Ins("global_load_dword v124, v124, s[84:85]", tag="touch")])
    pro += L("s_mov_b32 s44, s60\ns_mov_b32 s45, s61\ns_mov_b32 s46, 256\ns_mov_b32 s47, 0x20000\ns_mov_b32 s60, s62\ns_mov_b32 s61, s63")
    pro += L("s_lshl_b32 s62, s34, 8")
    pro += wdma_addr(7, 8192, "s62", t0=36, st=63)
    pro += L(f"""
    s_lshr_b32 s62, s34, 1
    s_mul_i32 s62, s62, 448
    s_and_b32 s63, s34, 1
    s_lshl_b32 s70, s63, 8
    s_add_u32 s70, s70, s62           ; colP
    s_lshl_b32 s71, s63, 5
    s_add_u32 s71, s71, s62
    s_add_u32 s71, s71, 192           ; colX
    v_lshrrev_b32 v36, 5, v1
    v_lshlrev_b32 v36, 3, v36
    v_bfe_u32 v37, v1, 2, 3
    v_add_u32 v36, v36, v37
    s_lshl_b32 s62, s33, 4
    v_add_u32 v36, s62, v36
    s_movk_i32 s62, 7168
    v_mul_lo_u32 v11, v36, s62
    v_bfe_u32 v36, v1, 4, 1
    v_lshlrev_b32 v36, 1, v36
    v_and_b32 v37, 3, v1
    v_xor_b32 v36, v36, v37
    v_lshl_add_u32 v11, v36, 4, v11
    s_add_u32 s70, s70, 4096
    v_add_u32 v11, s70, v11
    v_subrev_u32 v12, 960, v11
    v_subrev_u32 v13, 1920, v11
    v_lshrrev_b32 v36, 1, v1
    s_and_b32 s63, s33, 1
    s_lshl_b32 s63, s63, 5
    v_add_u32 v36, s63, v36
    v_mul_lo_u32 v14, v36, s62
    v_and_b32 v37, 1, v1
    v_lshl_add_u32 v14, v37, 4, v14
    s_add_u32 s71, s71, 4096
    v_add_u32 v14, s71, v14
    s_lshl_b32 s5, s33, 12
    s_mul_i32 s6, s33, 3072
    s_lshl_b32 s7, s33, 10
    """)
    pro += srd(8, 52, 53, 8 << 20) + srd(12, 56, 57, (7 << 20) + 4096, -4096) + srd(16, 58, 59, (7 << 20) + 4096, -4096)
    pro += L("s_cmp_lt_u32 s33, 2\ns_cselect_b32 s20, s12, s16\ns_cselect_b32 s21, s13, s17") + L(f"s_mov_b32 s22, {(7<<20)+4096:#x}\ns_mov_b32 s23, 0x20000")
    pro += srd(76, 54, 55, 8 << 20) + srd(80, 72, 73, 7 << 20) + srd(96, 74, 75, 4 << 20)
    pro += L("s_mov_b32 s52, 0\ns_mov_b32 s53, 0\ns_mov_b32 s54, 0")
    pro += L(f"s_mov_b32 s90, {GST[0]}\ns_mov_b32 s88, {GST[1]}\ns_mov_b32 s89, {GST[2]}")
    def wloads(t):
        sb = GST[t % 3]
        reg = (sb, sb + STG, ("G", t)); tag = ("W", t)
        r = [Ins("s_add_u32 m0, s5, s90")]
        r += [Ins(f"buffer_load_dwordx4 v{7+z}, s[8:11], s52 offen offset:{z*1024} lds", tag=tag, wr=reg) for z in range(4)]
        r += [Ins("s_add_u32 s100, s6, s90"), Ins("s_add_u32 m0, s100, 16384")]
        r += [Ins(f"buffer_load_dwordx4 v{11+z}, s[12:15], s53 offen offset:{z*1024} lds", tag=tag, wr=reg) for z in range(3)]
        r += [Ins("s_add_u32 m0, s100, 28672")]
        r += [Ins(f"buffer_load_dwordx4 v{11+z}, s[16:19], s53 offen offset:{z*1024} lds", tag=tag, wr=reg) for z in range(3)]
        r += [Ins("s_add_u32 s100, s7, s90"), Ins("s_add_u32 m0, s100, 40960")]
        r += [Ins(f"buffer_load_dwordx4 v14, s[20:23], s53 offen lds", tag=tag, wr=reg)]
        r += [Ins("s_add_u32 s52, s52, 0x80000"), Ins("s_add_u32 s53, s53, 0x70000")]
        r += L("s_mov_b32 s100, s90\ns_mov_b32 s90, s88\ns_mov_b32 s88, s89\ns_mov_b32 s89, s100")
        return r
    def breg(t, s, mb):
        k = (s * 4 + mb) * 4
        return f"v[{64+k}:{67+k}]" if t % 2 == 0 else f"a[{224+k}:{227+k}]"
    def xloads(t):
        r = [Ins(f"buffer_load_dwordx4 {breg(t, s, mb)}, v{15+s}, s[24:27], s54 offen offset:{mb*1024}{SC}", tag=("X", t) if t else ("X0", mb * 2 + s)) for mb in range(4) for s in range(2)]
        r += [Ins("s_add_u32 s54, s54, 0x2000")]
        return r
    wl0 = wloads(0); wl1 = wloads(1); late_w1 = []; tile0 = []
    if P['order'] == 1: defer[:0] = wl0 + wl1
    elif P['order'] == 2: pro += wl0; defer[:0] = wl1
    elif P['order'] == 3: defer[:0] = wl0; late_w1 = wl1
    elif P['order'] == 4: pro += wl0; late_w1 = wl1
    elif P['order'] == 5: pro += wl0; defer[:0] = wl1
    elif P['order'] == 7: pro += wl0; tile0 = wl1 + defer; defer = []
    elif P['order'] == 8: pro += wl0; tile0 = list(wl1)
    else: pro += wl0 + wl1
    pro += L("""
    s_lshl_b32 s62, s2, 2
    s_add_u32 s62, s62, s33
    s_lshl_b32 s63, s62, 12
    v_lshlrev_b32 v31, 6, v1
    v_add_u32 v31, s63, v31
    s_lshl_b32 s63, s62, 10
    v_and_b32 v30, 15, v1
    v_lshlrev_b32 v30, 6, v30
    v_add_u32 v30, s63, v30
    """)
    if P["touch"] == 4:
        pro += L("s_mul_i32 s63, s62, 1280\nv_min_u32 v31, 9, v1\nv_lshlrev_b32 v31, 7, v31\nv_add_u32 v31, s63, v31")
    def touch(v, sr, off):
        return [Ins(f"s_mov_b32 s62, {off:#x}"), Ins(f"buffer_load_dword v127, v{v}, s[{sr}:{sr+3}], s62 offen", tag="touch")]
    if P["touch0"]:
        defer.extend(touch(30, 8, 128 * 8192) + touch(30, 12, 4096 + 128 * 7168) + touch(30, 16, 4096 + 128 * 7168))
    pro += srd(64, 60, 61, 32 << 20, EX_OFF)
    pro += L(f"""
    s_lshl_b32 s62, s3, 17
    s_add_u32 s62, s62, {MB_REL:#x}
    v_and_b32 v36, 31, v1
    v_add_u32 v28, s62, v1
    s_lshl_b32 s62, s32, 22
    s_add_u32 s62, s62, s34
    s_add_u32 s62, s62, {MB_REL:#x}
    v_lshl_add_u32 v29, v36, 17, s62
    v_mov_b32 v37, 0x7fff0000
    v_lshrrev_b32 v38, 5, v1
    v_or_b32 v38, s33, v38
    v_cmp_eq_u32 vcc, 0, v38
    v_mov_b32 v126, 0
    s_nop 0
    v_cndmask_b32 v29, v37, v29, vcc
    s_cmp_eq_u32 s33, 0
    s_cselect_b32 s70, 0, 0x40000000
    v_or_b32 v38, s33, v1
    v_cmp_eq_u32 vcc, 0, v38
    v_mov_b32 v36, s3
    s_lshl_b32 s62, s32, 5
    v_cndmask_b32 v27, v37, v36, vcc
    v_and_b32 v26, 31, v1
    v_add_u32 v26, s62, v26
    """)
    if P.get("lnst"): pro += stamp()
    pro += L(f"s_mov_b32 s62, 0xffff0000") + [W(vm="x")]
    if P.get("lnst"): pro += stamp()
    for e in range(32):
        pro += L(f"v_lshlrev_b32 v{80+e}, 16, v{64+e//2}" if e % 2 == 0 else f"v_and_b32 v{80+e}, s62, v{64+e//2}")
    def red8(v):
        return L(f"""
        s_nop 1
        v_add_f32_dpp v{v}, v{v}, v{v} row_ror:8 row_mask:0xf bank_mask:0xf
        v_mov_b32 v40, v{v}
        s_nop 1
        v_permlane16_swap_b32 v{v}, v40
        v_add_f32 v{v}, v{v}, v40
        v_mov_b32 v40, v{v}
        s_nop 1
        v_permlane32_swap_b32 v{v}, v40
        v_add_f32 v{v}, v{v}, v40
        """)
    pro += L("v_pk_add_f32 v[36:37], v[80:81], v[82:83]\nv_pk_add_f32 v[38:39], v[84:85], v[86:87]")
    for e in range(8, 32, 4): pro += L(f"v_pk_add_f32 v[36:37], v[36:37], v[{80+e}:{81+e}]\nv_pk_add_f32 v[38:39], v[38:39], v[{82+e}:{83+e}]")
    pro += L("v_pk_add_f32 v[36:37], v[36:37], v[38:39]\nv_add_f32 v36, v36, v37") + red8(36) + L("v_mul_f32 v36, 0x3b800000, v36\nv_mov_b32 v52, 0\nv_mov_b32 v53, 0\nv_mov_b32 v54, 0\nv_mov_b32 v55, 0")
    for e in range(0, 32, 4):
        pro += L(f"""v_pk_add_f32 v[44:45], v[{80+e}:{81+e}], v[36:37] op_sel_hi:[1,0] neg_lo:[0,1] neg_hi:[0,1]
        v_pk_add_f32 v[46:47], v[{82+e}:{83+e}], v[36:37] op_sel_hi:[1,0] neg_lo:[0,1] neg_hi:[0,1]
        v_pk_fma_f32 v[52:53], v[44:45], v[44:45], v[52:53]
        v_pk_fma_f32 v[54:55], v[46:47], v[46:47], v[54:55]""")
    pro += L("v_pk_add_f32 v[52:53], v[52:53], v[54:55]\nv_add_f32 v37, v52, v53") + red8(37)
    pro += L(f"""
    v_lshlrev_b32 v38, 5, v32
    v_add_u32 v38, {LNLDS:#x}, v38
    s_lshl_b32 s63, s33, 3
    v_add_u32 v39, s63, v38
    ds_write_b64 v39, v[36:37]
    s_waitcnt lgkmcnt(0)
    s_barrier
    ds_read_b128 v[44:47], v38
    ds_read_b128 v[48:51], v38 offset:16
    v_lshrrev_b32 v42, 6, v33
    v_lshlrev_b32 v42, 17, v42
    v_lshl_add_u32 v42, v35, 12, v42
    v_bfe_u32 v43, v33, 4, 2
    v_lshl_add_u32 v42, v43, 10, v42
    v_and_b32 v43, 15, v33
    v_lshl_add_u32 v42, v43, 4, v42
    """)
    pro += srd(24, 60, 61, 4 << 20, XN_OFF)
    pro += L("""
    s_waitcnt lgkmcnt(0)
    v_add_f32 v36, v44, v46
    v_add_f32 v37, v48, v50
    v_add_f32 v36, v36, v37
    v_mul_f32 v36, 0.25, v36
    v_add_f32 v37, v45, v47
    v_add_f32 v38, v49, v51
    v_add_f32 v37, v37, v38
    v_sub_f32 v44, v44, v36
    v_sub_f32 v46, v46, v36
    v_sub_f32 v48, v48, v36
    v_sub_f32 v50, v50, v36
    v_mul_f32 v38, v44, v44
    v_fmac_f32 v38, v46, v46
    v_fmac_f32 v38, v48, v48
    v_fmac_f32 v38, v50, v50
    v_fmac_f32 v37, 0x43800000, v38
    v_mul_f32 v37, 0x3a800000, v37
    v_cvt_pk_bf16_f32 v38, v36, v37
    v_lshlrev_b32 v36, 16, v38
    v_and_b32 v37, s62, v38
    v_add_f32 v37, 0x3727c5ac, v37
    v_cvt_pk_bf16_f32 v37, v37, v37
    v_and_b32 v37, s62, v37
    v_sqrt_f32 v37, v37
    s_nop 0
    v_cvt_pk_bf16_f32 v37, v37, v37
    v_and_b32 v37, s62, v37
    v_rcp_f32 v37, v37
    s_nop 0
    """)
    for e in range(0, 32, 2): pro += L(f"v_pk_add_f32 v[{80+e}:{81+e}], v[{80+e}:{81+e}], v[36:37] op_sel_hi:[1,0] neg_lo:[0,1] neg_hi:[0,1]")
    for q in range(16): pro += L(f"v_cvt_pk_bf16_f32 v{64+q}, v{80+2*q}, v{81+2*q}")
    for e in range(32):
        pro += L(f"v_lshlrev_b32 v{80+e}, 16, v{64+e//2}" if e % 2 == 0 else f"v_and_b32 v{80+e}, s62, v{64+e//2}")
    for e in range(0, 32, 2): pro += L(f"v_pk_mul_f32 v[{80+e}:{81+e}], v[{80+e}:{81+e}], v[36:37] op_sel:[0,1]")
    for g in range(4):
        for h, q in enumerate((2 * g, 2 * g + 1, 8 + 2 * g, 9 + 2 * g)):
            pro += L(f"v_cvt_pk_bf16_f32 v{64+g*4+h}, v{80+2*q}, v{81+2*q}")
        pro += [Ins(f"buffer_store_dwordx4 v[{64+g*4}:{67+g*4}], v42, s[24:27], 0 offen offset:{g*256}{SC}", tag="xn")]
    pro += L(f"buffer_store_byte v126, v28, s[64:67], s70 offen{SC}")
    if P.get("lnst"): pro += stamp()
    pro += L("s_nop 0\nv_mov_b32 v126, 1")
    pro += tr_addr(96, 0, True, 1024, 36) + tr_addr(97, 1, True, 1024, 36) + tr_addr(98, 0, False, 512, 36) + tr_addr(99, 1, False, 512, 36)
    pro += L("v_lshlrev_b32 v100, 3, v1")
    for i in range(5): pro += L(f"v_mov_b32 v{2+i}, v{96+i}")
    if P.get("lnst"): pro += [W(vm="all")] + stamp()
    if P["sync"] == 0:
        pro += [W(vm="all"), Ins("s_barrier"), Ins(f"buffer_store_byte v126, v27, s[44:47], 0 offen{SC}", tag="flag")]
    else:
        pro += L("v_and_b32 v27, 0xffffffe0, v27\nv_mov_b32 v125, 1")
        pro += [W(vm="all"), Ins("s_barrier"), Ins(f"buffer_atomic_add v125, v27, s[44:47], 0 offen sc0 sc1", tag="flag")]
    pro += stamp()
    if P["sync"]:
        pro += [W(vm="flag")] + L(f"""
        v_readfirstlane_b32 s70, v125
        s_sub_u32 s63, 48, s34
        s_and_b32 s70, s70, 31
        s_cmp_eq_u32 s70, 31
        s_cselect_b32 s62, s63, 0x40000000
        buffer_store_byte v126, v29, s[64:67], s62 offen{SC}
        """)
    if P["order"] == 5:
        def cp(lst, m):
            o = []
            for x in fix_m0(lst):
                y = x.copy(); y.text = y.text.replace("L_pc", "L_pc" + m) + ("" if y.label else " ; opt" + m); o.append(y)
            return o
        pro += L("s_cmp_eq_u32 s33, 0\ns_cbranch_scc1 L_skipA") + cp(defer, "A") + L("L_skipA:")
        late_w1 = L("s_cmp_lg_u32 s33, 0\ns_cbranch_scc1 L_skipB") + cp(defer, "B") + L("L_skipB:")
    else: pro += defer
    pro += L(f"""
    s_lshl_b32 s62, s32, 2
    s_add_u32 s62, s62, s33
    s_lshl_b32 s63, s62, 17
    v_lshlrev_b32 v25, 4, v1
    v_add_u32 v15, s63, v25
    v_add_u32 v16, 0x1000, v15
    s_lshl_b32 s62, s35, 19
    s_add_u32 s62, s62, {1536*256:#x}
    s_add_u32 s28, s48, s62
    s_addc_u32 s29, s49, 0
    s_mov_b32 s30, 0x20000
    s_mov_b32 s31, 0x20000
    s_add_u32 s36, s50, s62
    s_addc_u32 s37, s51, 0
    s_mov_b32 s38, 0x20000
    s_mov_b32 s39, 0x20000
    v_lshrrev_b32 v36, 4, v1
    v_and_b32 v37, 15, v1
    v_lshl_add_u32 v38, v36, 8, s5
    """)
    pro += srd(40, 60, 61, 16 << 20, O_OFF)
    for z in range(4):
        pro += L(f"v_add_u32 v39, {4*z}, v36\nv_xor_b32 v39, v39, v37\nv_lshl_add_u32 v{17+z}, v39, 4, v38")
    pro += wdma_addr(21, 256, "0", t0=40, st=63)
    pro += L("s_mov_b32 s55, 0\ns_mov_b32 s56, 0\ns_mov_b32 s57, -1\ns_mov_b32 s91, 6\ns_mov_b32 s58, 0")
    for i in range(224): pro += L(f"v_accvgpr_write_b32 a{i}, 0")
    for i in range(128, 256, 2): pro += L(f"v_mov_b64 v[{i}:{i+1}], 0")
    if P["sync"] == 0:
        pro += [W(vm=("W", 0))]
        pro += L(f"""
        s_cmp_lg_u32 s33, 0
        s_cbranch_scc1 L_x_go
        s_mov_b32 s70, 0x40000
        s_sleep {P['slp0']}
        L_x_poll:
        buffer_load_ubyte v125, v26, s[44:47], 0 offen{SC} ; w0only
        s_waitcnt vmcnt(0) ; w0only
        v_cmp_gt_u32 vcc, 1, v125
        s_sub_u32 s70, s70, 1
        s_cbranch_scc1 L_x_go
        s_cbranch_vccz L_x_go
        s_sleep {P['slp']}
        s_branch L_x_poll
        L_x_go:
        s_barrier
        """)
    else:
        if P["pad"]:
            pro += L("""
            s_cmp_eq_u32 s33, 0
            s_cbranch_scc1 L_scout_ret
            s_mov_b64 exec, 0
            s_cmp_eq_u32 s33, 1
            s_cbranch_scc1 L_pad1_0
            s_cmp_eq_u32 s33, 2
            s_cbranch_scc1 L_pad2_0
            s_branch L_pad3_0
            L_scout_ret:
            s_mov_b64 exec, -1
            """)
        pro += [W(vm=("W", 0))]
        pro += L(f"""
        s_cmp_lg_u32 s33, 0
        s_cbranch_scc1 L_x_go
        s_mov_b32 s70, 0x40000
        L_x_poll:
        buffer_load_ubyte v125, v28, s[64:67], 0 offen{SC} ; w0only
        s_waitcnt vmcnt(0) ; w0only
        v_readlane_b32 s62, v125, 48
        s_sub_u32 s70, s70, 1
        s_cbranch_scc1 L_x_go
        s_cmp_eq_u32 s62, 0
        s_cbranch_scc1 L_x_poll
        L_x_go:
        s_barrier
        """)
    pro += stamp() + (xloads(0) + late_w1 + xloads(1) if not P.get('o6') else xloads(0) + xloads(1) + [W(vm=('X', 0))] + late_w1)
    pro += srd(44, 60, 61, 14 << 20, H_OFF)
    pro += stamp()
    def kvloads(tau, dyn):
        r = []
        for v in range(2):
            sb = PAIR[tau % 5] + v * 16384; i = 2 * tau + v; reg = (sb, sb + 16384, ("KV", i)); tag = ("KV", i)
            r.append(Ins(f"s_add_u32 m0, s89, {v*16384}" if dyn else f"s_add_u32 m0, s5, {sb:#x}"))
            for z in range(4):
                r.append(Ins(f"buffer_load_dwordx4 v{(21 if v else 17)+z}, s[{36 if v else 28}:{39 if v else 31}], s55 offen offset:{z*1024} lds", tag=tag, wr=reg))
        r.append(Ins("s_add_u32 s55, s55, 0x4000"))
        return r
    blocks = []
    for p in range(3):
        for e in range(2):
            for m in range(2):
                bi = (p * 2 + e) * 2 + m
                blocks.append((4 + e, (lambda s, r, p=p, m=m: 16384 + m * 12288 + (2 * s + r) * 3072 + p * 1024), "a", bi * 16))
    for m in range(2):
        blocks.append((6, (lambda s, r, m=m: 40960 + m * 2048 + s * 1024 + r * 512), "a", (12 + m) * 16))
    for nb in range(8):
        b32, e = nb >> 1, nb & 1
        blocks.append((2 + e, (lambda s, r, b32=b32: (b32 >> 1) * 8192 + (b32 & 1) * 512 + s * 4096 + r * 2048), "v", 128 + nb * 16))
    NB = len(blocks); T = 16; TM = NB * 8
    gg = [(t, nb) for t in range(14) for nb in range(NB)] + [(14, nb) for nb in range(14)] + [(15, nb) for nb in range(14)] + [(14, nb) for nb in range(14, 22)] + [(15, nb) for nb in range(14, 22)]
    gidx = {k: i for i, k in enumerate(gg)}
    sc = Sched(2)
    for G, (t, nb) in enumerate(gg):
        va, imm, ak, ab = blocks[nb]; fb = 32 + (G % 4) * 8
        for mb in range(4):
            for s in ((0, 1) if (mb % 2 == 0 or not P.get("snake")) else (1, 0)):
                ac = f"{ak}[{ab+mb*4}:{ab+mb*4+3}]"
                sc.mfma(f"{MF} {ac}, v[{fb+s*4}:{fb+s*4+3}], {breg(t, s, mb)}, {ac}")
    def rd(G):
        t, nb = gg[G]; va, imm, _, _ = blocks[nb]; fb = 32 + (G % 4) * 8; sb = GST[t % 3]
        return [Ins(f"ds_read_b64_tr_b16 v[{fb+s*4+r*2}:{fb+s*4+r*2+1}], v{va} offset:{imm(s, r)}", tag=("P", G), rd=(sb, sb + STG, ("G", t))) for s in range(2) for r in range(2)]
    LB = P['lb']
    for it in range(8):
        g = 2 * it * TM + LB
        if it == 0: sc.used[g] += 2
        else: sc.fixed_front(g, L("s_sub_u32 s91, s91, 1\ns_cbranch_scc0 L_G"))
        sc.fixed_front(g, Ins("; @IT G" if it < 7 else "; @ENDIT G"))
    for t in range(0, T):
        g0 = gidx[(t, 0)] * 8
        if t >= 1: sc.fixed_front(g0 - 8 * LA, [W(vm=("W", t)), Ins("s_barrier")])
        if t: sc.fixed_back(g0, W(vm=("X", t)))
        else:
            for i in range(8): sc.fixed_back(i, W(vm=("X0", i | 1)))
    for G in range(len(gg)): sc.fixed_back(G * 8, W(lg=("P", G)))
    d15 = GST[0] - GST[2]
    for G, (t, nb) in enumerate(gg):
        upd = []
        if nb == 0 and 0 < t < 15: upd = [f"v_add_u32 v{va}, s88, v{94+va}" for va in range(2, 7)]
        if (t, nb) == (15, 0): upd = [f"v_subrev_u32 v{va}, {-d15:#x}, v{va}" for va in (4, 5, 6)]
        if (t, nb) == (15, 14): upd = [f"v_subrev_u32 v{va}, {-d15:#x}, v{va}" for va in (2, 3)]
        for u_ in upd: sc.flow("lds", 8 * (G - LA) - 3, Ins(u_), deadline=8 * (G - LA))
        for i, x in enumerate(rd(G)): sc.flow("lds", 8 * (G - LA) + i, x, deadline=8 * (G - 1) + 2)
    for t in range(1, 15): sc.fixed_front(t * TM + 2, Ins("s_barrier ; FB"))
    def vflow(S, g, its, sp, dl=None):
        for x in its:
            if x.kind == "vmem": x.cost = 2
            g = S.flow("vm", g if dl is None else min(g, dl), x, mingap=(1 if x.kind == "vmem" and S.qpos.get("vm") != dl else 0), deadline=dl) + (sp if x.kind == "vmem" else 0)
        return g
    for t in range(0, 15):
        g = t * TM + 1
        if t == 0:
            its = []
            if P["tkv"]: its += touch(30, 28, 0) + touch(30, 36, 0)
            if P["tg"]:
                its += touch(31, 8, 256 * 8192) + touch(31, 12, 4096 + 256 * 7168) + touch(31, 16, 4096 + 256 * 7168)
                its += touch(31, 8, 512 * 8192) + touch(31, 12, 4096 + (3 << 20)) + touch(31, 16, 4096 + (3 << 20))
            pcg = [x for x in tile0 if "getpc" in x.text or "L_pc" in x.text or x.text.startswith("s_subb_u32 s85")]
            g = vflow(sc, g, [x for x in tile0 if x not in pcg][:23], 1)
            if pcg:
                g = sc.flowg("vm", g, pcg); g = vflow(sc, g, [x for x in tile0 if x not in pcg][23:], 1)
            g = vflow(sc, g, its, P["xsp"] - 1)
            early = L(f"""
            s_lshl_b32 s62, s32, 2
            s_add_u32 s62, s62, s33           ; mb64
            s_mul_i32 s63, s62, {112*4096}
            s_lshr_b32 s59, s34, 1
            s_mul_i32 s59, s59, 7
            s_and_b32 s4, s34, 1
            s_lshl_b32 s73, s4, 2
            s_add_u32 s73, s73, s59
            s_lshl_b32 s73, s73, 12
            s_add_u32 s73, s73, s63           ; H P base
            s_add_u32 s59, s59, 3
            s_lshl_b32 s59, s59, 12
            s_add_u32 s59, s59, s63
            s_lshl_b32 s4, s4, 3
            s_add_u32 s59, s59, s4            ; H lone base
            s_lshr_b32 s48, s34, 3            ; q
            s_and_b32 s49, s34, 7
            s_lshl_b32 s49, s49, 8            ; ct bytes
            s_mul_i32 s50, s48, {896*2048}
            s_mul_i32 s72, s48, {28*4096}
            s_add_u32 s72, s72, s63
            s_lshl_b32 s74, s48, 21
            s_lshl_b32 s75, s62, 19
            s_lshl_b32 s51, s34, 14
            s_add_u32 s51, s51, s75           ; O store base
            s_lshl_b32 s4, s48, 17
            s_add_u32 s75, s75, s4
            """) + wdma_addr(101, 2048, "0", t0=109, st=63) + L("s_lshl_b32 s63, s48, 6")
            for z in range(4): early += L(f"v_xor_b32 v{101+z}, s63, v{101+z}\nv_add_u32 v{101+z}, s49, v{101+z}")
            early += L(f"""
            v_lshrrev_b32 v109, 4, v1
            v_and_b32 v110, 15, v1
            v_xor_b32 v109, v109, v110
            v_lshlrev_b32 v109, 4, v109
            v_lshl_add_u32 v105, v110, 8, v109
            v_add_u32 v105, {PAIR[0]:#x}, v105
            v_lshrrev_b32 v109, 5, v1
            v_lshl_add_u32 v106, v109, 9, v98
            v_lshl_add_u32 v107, v109, 9, v99
            v_add_u32 v106, {PAIR[0]+16384+32768:#x}, v106
            v_add_u32 v107, {PAIR[0]+16384+32768:#x}, v107
            s_lshr_b32 s62, s2, 3
            s_lshl_b32 s62, s62, 2
            s_add_u32 s62, s62, s33
            s_and_b32 s62, s62, 31
            s_lshl_b32 s62, s62, 12
            v_lshl_add_u32 v108, v1, 6, s62
            s_mov_b32 s63, L_code_end-{NAME}_kernel-4
            v_min_u32 v108, s63, v108
            """)
            for x in early: sc.flow("early", 1, x, deadline=LB - 1)
            sc.flowg("early", 1, L(f"s_getpc_b64 s[68:69]\nL_pc2:\ns_sub_u32 s68, s68, L_pc2-{NAME}_kernel\ns_subb_u32 s69, s69, 0"), deadline=LB - 1)
        else:
            ex = []
            if P["touch"] == 4 and t % 2 == 1:
                ex = [Ins("buffer_load_dword v127, v31, s[80:83], s58 offen", tag="touch"), Ins("buffer_load_dword v127, v31, s[76:79], s58 offen", tag="touch"), Ins(f"s_add_u32 s58, s58, {1024*1280:#x}")]
                if P.get("tx"): ex += [Ins(f"s_sub_u32 s101, s58, {4*1024*1280:#x}"), Ins("buffer_load_dword v127, v31, s[92:95], s101 offen", tag="touch")]
            g = vflow(sc, g, xloads(t + 1) + ex, P["xsp"])
        assert g < t * TM + LB + P["xsp"] or t % 2 == 1, g - t * TM
        g = max(g, t * TM + LB + 1)
        items = wloads(t + 2) if t + 2 < T else []
        if t == 14:
            items += kvloads(0, False) + kvloads(1, False)
            if P["touch"] == 1: items += touch(31, 80, 0) + touch(31, 80, 3 << 20) + touch(31, 76, 0) + touch(31, 76, 4 << 20)
        g = vflow(sc, g, items, P["wsp"] if t < 14 else 3)
        assert g < (t + 1) * TM - 8 * LA - 4 + P["wsp"] or t >= 14, g - t * TM
    g0 = 14 * TM + LB + 1
    hs = L(f"s_mov_b32 s52, s73\ns_add_u32 s53, s73, 4096\ns_add_u32 s54, s73, 8192\ns_mov_b32 s3, s59\ns_mov_b32 s70, {QSCALE:#x}\ns_mov_b32 s71, s70")
    for x in hs: sc.flow("hd", g0, x)
    k = 0
    for p in range(4):
        ne = 2 if p < 3 else 1
        for mb in range(4):
            tb = 110; ob = (118, 122, 96)[k % 3]; k += 1
            last = gidx[(15, 4 * p + 3 if p < 3 else 13)] * 8 + mb * 2 + 1
            g = last + 6
            for e in range(ne):
                bi = (p * 2 + e) * 2 if p < 3 else 12
                for i in range(4):
                    sc.flow("hd", g, Ins(f"v_accvgpr_read_b32 v{tb+i}, a{bi*16+mb*4+i}")); sc.flow("hd", g, Ins(f"v_accvgpr_read_b32 v{tb+4+i}, a{(bi+1)*16+mb*4+i}"))
                for q in range(4): sc.flow("hd", g, Ins(f"v_mul_f32 v{tb+q}, v{tb+q}, v{tb+4+q}"))
                for q in range(2): sc.flow("hd", g, Ins(f"v_cvt_pk_bf16_f32 v{ob+e*2+q}, v{tb+2*q}, v{tb+2*q+1}"))
            if p < 3: x = Ins(f"buffer_store_dwordx4 v[{ob}:{ob+3}], v25, s[44:47], s{52+p} offen offset:{mb*1024}{SC}", tag="Hst")
            else: x = Ins(f"buffer_store_dwordx2 v[{ob}:{ob+1}], v25, s[44:47], s3 offen offset:{mb*1024}{SC}", tag="Hst")
            sc.flow("hd", g, x)
    def qfr(qb, be): return 128 + 32 * be + 4 * qb
    for be in range(4):
        g = gidx[(15, 14 + 2 * be + 1)] * 8 + 7 + 6
        for qb in range(4):
            a = qfr(qb, be); b = a + 16
            for r in (a, a + 1, a + 2, a + 3, b, b + 1, b + 2, b + 3): sc.flow("qp", g, Ins(f"v_mul_f32 v{r}, s70, v{r}"))
            for h, r in enumerate((a, a + 2, b, b + 2)): sc.flow("qp", g, Ins(f"v_cvt_pk_bf16_f32 v{a+h}, v{r}, v{r+1}"))
        sw_ = L("s_mov_b64 exec, s[56:57]") + sum([L(f"v_swap_b32 v{qfr(qb, be)}, v{qfr(qb, be)+2}\nv_swap_b32 v{qfr(qb, be)+1}, v{qfr(qb, be)+3}") for qb in range(4)], []) + L("s_mov_b64 exec, -1")
        sc.flowg("qp", len(sc.mf), sw_)
    tail = sc.mid[len(sc.mf)]; nt = []
    i = 0
    while i < len(tail):
        x = tail[i]
        if i + 1 < len(tail) and x.text.startswith("v_mul_f32") and tail[i + 1].text.startswith("v_mul_f32"):
            o1 = [o.strip() for o in x.text[10:].split(",")]; o2 = [o.strip() for o in tail[i + 1].text[10:].split(",")]
            r = int(o1[0][1:])
            if r % 2 == 0 and int(o2[0][1:]) == r + 1:
                if o1[1] == "s70": nt.append(Ins(f"v_pk_mul_f32 v[{r}:{r+1}], v[{r}:{r+1}], s[70:71]"))
                else:
                    q = int(o1[2][1:]); nt.append(Ins(f"v_pk_mul_f32 v[{r}:{r+1}], v[{r}:{r+1}], v[{q}:{q+1}]"))
                i += 2; continue
        nt.append(x); i += 1
    print("G", sc.stats()[:50], "exposed tail instrs", len(nt))
    sc.mid[len(sc.mf)] = stamp() + L("s_nop 7") + nt
    G_ = sc.emit()
    if STAMP and P.get("gst"):
        i = [k for k, x in enumerate(G_) if x.text == "; @IT G"][0]
        G_ = G_[:i] + stamp() + G_[i:]
        i = [k for k, x in enumerate(G_) if x.text == "; @ENDIT G"][0] + 1
        G_ = G_[:i] + stamp() + G_[i:]
    mid = L(f"""
    v_mov_b32 v11, v105
    v_xor_b32 v12, 64, v105
    v_xor_b32 v13, 0x80, v105
    v_xor_b32 v14, 0xc0, v105
    s_mov_b32 s100, 0xffff8000
    s_mov_b32 s101, 0x20000
    s_add_u32 s4, s5, {PAIR[0]:#x}
    """)
    mid += stamp()
    late = L("""
    v_mov_b32 v15, v106
    v_mov_b32 v16, v107
    v_mov_b32 v7, v101
    v_mov_b32 v8, v102
    v_mov_b32 v9, v103
    v_mov_b32 v10, v104
    v_mov_b32 v127, v108
    """)
    late2 = L("""
    v_and_b32 v120, 3, v1
    v_cmp_eq_u32 vcc, 0, v120
    v_mov_b32 v121, 0x3f803f80
    v_add_u32 v26, 0x1000, v25
    v_cndmask_b32 v112, 0, v121, vcc
    v_cndmask_b32 v113, 0, v121, vcc
    v_cndmask_b32 v114, 0, v121, vcc
    v_cndmask_b32 v115, 0, v121, vcc
    """)
    late3 = L("""
    v_add_u32 v4, 0x10000, v2
    v_add_u32 v5, 0x10000, v3
    v_add_u32 v6, 0x20000, v2
    v_add_u32 v30, 0x20000, v3
    s_mov_b32 s71, s50
    s_mov_b32 s53, s51
    s_mov_b32 s88, 3
    s_mov_b32 s91, 3
    """)
    at = Sched(2)
    qk0 = {}; pv0 = {}
    KR = 11; VR = 15
    def sbl(u, qb, kb): return 144 + 64 * (u % 2) + 32 * kb + 4 * qb
    def kfb(u, kb, be):
        f = (144 if u % 2 else 64) + (kb * 4 + be) * 4
        return f"{'a' if u % 2 else 'v'}[{f}:{f+3}]"
    def qk_list(u, first, kf):
        r = []
        for qb in range(4):
            for kb in range(2):
                d = sbl(u, qb, kb)
                for be in range(4):
                    c = f"v[{d}:{d+3}]" if be else ("0" if first else f"v[{96+qb*4}:{99+qb*4}]")
                    q = qfr(qb, be)
                    r.append(f"{MF} v[{d}:{d+3}], {kf(kb, be)}, v[{q}:{q+3}], {c}")
        return r
    def dborder(u): return [8, 0, 1, 2, 3, 4, 5, 6, 7] if u == 15 else list(range(9))
    def pv_list(u, vf, first=False):
        r = []
        for db in dborder(u):
            for qb in range(4):
                ac = (db * 4 + qb) * 4; pf = sbl(u, qb, 0)
                a = vf(db) if db < 8 else "v[112:115]"
                r.append(f"{MF} a[{ac}:{ac+3}], {a}, v[{pf}:{pf+3}], {'0' if first else f'a[{ac}:{ac+3}]'}")
        return r
    def QK(u):
        qk0[u] = len(at.mf)
        for m in qk_list(u, u == 0, lambda kb, be: kfb(u, kb, be)): at.mfma(m)
    def PV(u):
        pv0[u] = len(at.mf)
        for m in pv_list(u, lambda db: f"v[{32+db*4}:{35+db*4}]", u == 0): at.mfma(m)
    QK(0); QK(1)
    for u in range(14): PV(u); QK(u + 2)
    PV(14); PV(15)
    NU = 16
    def pvpos(u, db): return pv0[u] + dborder(u).index(db) * 4
    kb0 = len(at.mf)
    NT = 30; NN = 25; NBT = 14
    grp = [(n, nb) for n in range(NN) for nb in range(8)] + [(n, nb) for n in range(NN, NT - 2) for nb in range(2, 8)] + [(n, 2 * lam + e) for lam in range(1, 4) for n in (NT - 2, NT - 1) for e in range(2)] + [(n, nb) for n in range(NN, NT) for nb in range(2)]
    g2 = {k: i for i, k in enumerate(grp)}
    def acc2(n, nb, mb):
        r = (nb * 4 + mb) * 4
        return f"v[{128+r}:{131+r}]" if n < NBT else f"a[{r}:{r+3}]"
    for G, (n, nb) in enumerate(grp):
        fb = 64 + (G % 4) * 8
        for mb in range(4):
            for si, s in enumerate((0, 1) if (mb % 2 == 0 or not P.get("snake")) else (1, 0)):
                ac = acc2(n, nb, mb)
                at.mfma(f"{MF} {ac}, v[{fb+s*4}:{fb+s*4+3}], {b2reg(n, s, mb)}, {'0' if (n in (0, NBT) and si == 0) else ac}")
    def gp(G): return kb0 + 8 * G
    def t0(n): return gp(g2[(n, 0 if n < NN else 2)])
    VLA = 12; ALB = 4
    CHK = pv0[15] + 12
    NIT = 5
    for it in range(1, NIT + 1):
        g = pv0[2 * it] + ALB
        if it == 1: at.used[g] += 2
        else: at.fixed_front(g, L("s_sub_u32 s91, s91, 1\ns_cbranch_scc0 L_A"))
        at.fixed_front(g, Ins("; @IT A" if it < NIT else "; @ENDIT A"))
    at.fixed_front(-10, [W(vm=("KV", 0)), Ins("s_barrier")])
    bpos = {}
    for tau in range(8):
        bpos[tau] = pv0[2 * tau] - VLA - 1
        at.fixed_front(bpos[tau], [W(vm=("KV", min(2 * tau + 2, 15))), Ins("s_barrier")])
    b2 = {}
    for n in range(NT):
        b2[n] = t0(n) - 8 * LA
        at.fixed_front(b2[n], [W(vm=("TW", n)), Ins("s_barrier")])
        at.fixed_back(t0(n), W(vm=("TB", n)))
    for G in range(len(grp)): at.fixed_back(gp(G), W(lg=("P2", G)))
    assert b2[0] > CHK
    for u in range(NU):
        at.fixed_back(qk0[u], W(lg=("K", u, 0)))
        at.fixed_back(qk0[u] + 4, W(lg=("K", u, 1)))
        for db in range(0, 8, 2): at.fixed_back(pvpos(u, db), W(lg=("V", u, db + 1)))
    chk = []
    for qb in range(4): chk += L(f"v_accvgpr_read_b32 v{116+qb}, a{128+qb*4}")
    chk += L(f"""
    v_max3_f32 v124, v116, v117, v118
    s_mov_b32 s62, {P['thr']:#x}
    v_max_f32 v124, v124, v119
    v_cmp_nge_f32 vcc, s62, v124
    s_cbranch_vccnz L_fallback
    L_fb_ret:
    """)
    for qb in range(4): chk += L(f"v_rcp_f32 v{120+qb}, v{116+qb}")
    at.fixed_front(CHK, chk)
    for x in late: at.flow("late", 1, x, deadline=11)
    ev = []; evk = []
    def kreads(u):
        tau = u // 2; sb = PAIR[tau % 5]; r = []
        if u % 2 == 0 and u > 0:
            r.append(L("s_cmp_eq_u32 s88, 2\ns_cselect_b32 s90, s101, s100") if 4 <= u <= 2 * NIT else L("s_mov_b32 s90, s100"))
            r += [Ins(f"v_add_u32 v{x}, s90, v{x}") for x in range(KR, KR + 4)]
        for kb in range(2):
            for be in range(4):
                r.append(Ins(f"ds_read_b128 {kfb(u, kb, be)}, v{KR+be} offset:{((u%2)*2+kb)*4096}", tag=("K", u, kb), rd=(sb, sb + 16384, ("KV", 2 * tau))))
        return r
    def vreads(u, db):
        tau = u // 2; sb = PAIR[tau % 5] + 16384; r = []
        if u % 2 == 0 and db == 0:
            r.append(L("s_cmp_eq_u32 s88, 2\ns_cselect_b32 s59, s101, s100") if 4 <= u <= 2 * NIT else L("s_mov_b32 s59, s100"))
            r += [Ins(f"v_add_u32 v{x}, s59, v{x}") for x in (VR, VR + 1)]
        b32, e = db >> 1, db & 1; f = 32 + db * 4
        for rr in range(2):
            r.append(Ins(f"ds_read_b64_tr_b16 v[{f+rr*2}:{f+rr*2+1}], v{VR+e} offset:{(b32>>1)*8192+(b32&1)*512+(u%2)*4096+rr*2048}", tag=("V", u, db), rd=(sb, sb + 16384, ("KV", 2 * tau + 1))))
        return r
    for i, x in enumerate(kreads(0)): evk.append((-9 + i // 2, 0, x))
    for i, x in enumerate(kreads(1)): evk.append((4 + 2 * (i // 2 * 2), qk0[1] - 4, x))
    for u in range(NU):
        for db in range(8):
            lo = pvpos(u, db) - VLA
            if u >= 1: lo = max(lo, pvpos(u - 1, db) + 4)
            for x in vreads(u, db): ev.append((lo, pvpos(u, db & ~1) - 4, x))
        if u + 2 < NU:
            kr = kreads(u + 2); off = 1 if len(kr) > 8 else 0
            for i, x in enumerate(kr): evk.append((pv0[u] + ALB + 3 + (4 if u % 2 else 3) * ((i + off) // 2), qk0[u + 2] - 4, x))
    def rd2(G):
        n, nb = grp[G]; sb = K2SLOT[n % 9]; fb = 64 + (G % 4) * 8
        b32, e = nb >> 1, nb & 1
        va = [(2, 3), (4, 5), (6, 30)][sb >> 16][e]
        return [Ins(f"ds_read_b64_tr_b16 v[{fb+s*4+rr*2}:{fb+s*4+rr*2+1}], v{va} offset:{(sb & 0xffff)+(b32>>1)*8192+(b32&1)*512+s*4096+rr*2048}", tag=("P2", G), rd=(sb, sb + 16384, ("T", n))) for s in range(2) for rr in range(2)]
    for G in range(len(grp)):
        for i, x in enumerate(rd2(G)): ev.append((gp(G - LA) + i, gp(G - 1) + 2, x))
    ev.sort(key=lambda e: e[0])
    for it in range(1, NIT):
        at.fixed_front(pv0[2 * it] + ALB + 1, L("s_add_u32 s88, s88, 1\ns_cmp_eq_u32 s88, 5\ns_cselect_b32 s88, 0, s88"))
        at.fixed_front(pv0[2 * it] + ALB + 2, L("s_lshl_b32 s89, s88, 15\ns_sub_u32 s89, s4, s89"))
    def maxseq(a, b, t0):
        return [f"v_max3_f32 v{t0}, v{a}, v{a+1}, v{a+2}", f"v_max3_f32 v{t0+1}, v{a+3}, v{b}, v{b+1}", f"v_max3_f32 v{t0}, v{t0}, v{b+2}, v{b+3}", f"v_max_f32 v{t0}, v{t0}, v{t0+1}"]
    def xlane(t0, t1):
        return [f"v_mov_b32 v{t1}, v{t0}", "s_nop 1", f"v_permlane16_swap_b32 v{t0}, v{t1}", f"v_max_f32 v{t0}, v{t0}, v{t1}",
                f"v_mov_b32 v{t1}, v{t0}", "s_nop 1", f"v_permlane32_swap_b32 v{t0}, v{t1}", f"v_max_f32 v{t0}, v{t0}, v{t1}"]
    for q_, lst in (("lds", ev), ("ldsk", evk)):
        for g, dl, x in lst:
            if isinstance(x, list): at.flowg(q_, g, x, deadline=dl, strict=True)
            else: at.flow(q_, g, x, deadline=dl)
    nspin = [0]
    def flagload(tag): return Ins(f"buffer_load_ubyte v125, v28, s[64:67], 0 offen{SC}", tag=tag)
    def fineload(tag): return Ins(f"buffer_load_dword v125, v22, s[64:67], 0 offen{SC}", tag=tag)
    def check_(tag, test, reload):
        k = nspin[0]; nspin[0] += 1
        ool.extend(L(f"L_spin{k}:\ns_mov_b32 s70, 0x40000\nL_spin{k}_l:\n{reload}\ns_waitcnt vmcnt(0)\ns_sub_u32 s70, s70, 1\ns_cbranch_scc1 L_spin{k}_ret\n{test}\ns_cbranch_scc0 L_spin{k}_ret\ns_sleep 1\ns_branch L_spin{k}_l"))
        return [W(vm=tag)] + L(f"{test}\ns_cbranch_scc1 L_spin{k}\nL_spin{k}_ret:")
    def flagcheck(tag, need): return check_(tag, f"v_cmp_gt_u32 vcc, {need}, v125\ns_and_b32 s62, vcc_lo, -1", flagload(0).text)
    def finecheck(tag, mask): return check_(tag, f"v_readfirstlane_b32 s62, v125\ns_and_b32 s62, s62, {mask:#x}\ns_cmp_lg_u32 s62, {mask:#x}", fineload(0).text)
    def pubstore(): return Ins(f"buffer_store_byte v126, v29, s[64:67], 0 offen{SC}", tag="flag")
    def finepub(lam): return Ins(f"buffer_store_byte v126, v23, s[64:67], s{15+lam} offen{SC}", tag="flag")
    def tw(n):
        sb = K2SLOT[n % 9]; sr = 80 if n < NBT else 76
        r = L("s_mov_b32 s71, s74") if n == NBT else []
        r += [Ins(f"s_add_u32 m0, s5, {sb:#x}")]
        r += [Ins(f"buffer_load_dwordx4 v{7+z}, s[{sr}:{sr+3}], s71 offen offset:{z*1024} lds", tag=("TW", n), wr=(sb, sb + 16384, ("T", n))) for z in range(4)]
        return r + L("s_add_u32 s71, s71, 0x20000")
    def tb(n):
        sr = 44 if n < NBT else 40
        r = L("s_mov_b32 s72, s75") if n == NBT else []
        r += [Ins(f"buffer_load_dwordx4 {b2reg(n, s, mb)}, v{25+s}, s[{sr}:{sr+3}], s72 offen offset:{mb*1024}{SC}", tag=("TB", n)) for s in range(2) for mb in range(4)]
        return r + L("s_add_u32 s72, s72, 0x2000")
    def exch(br, lam, store, base, tag):
        r = L(f"s_mov_b32 s58, {br*65536+lam*16384:#x}")
        for i in range(4):
            rr = f"v[{base+4*i}:{base+4*i+3}]"
            r.append(Ins(f"buffer_store_dwordx4 {rr}, v17, s[64:67], s58 offen offset:{i*1024}{SC}" if store else f"buffer_load_dwordx4 {rr}, v{17+lam}, s[64:67], s58 offen offset:{i*1024}{SC}", tag=tag))
        return r
    vq = []
    vq.append((-9, kvloads(2, False), 3, 48))
    hb = P.get("hb", 0)
    at.front[bpos[hb]].insert(0, W(vm="Hst")); at.used[bpos[hb]] += 1
    vq.append((bpos[hb] + 1, [ASSERT("Hst"), Ins("v_mov_b32 v126, 2"), pubstore()], 0, bpos[hb] + 6))
    vq.append((pv0[0] + ALB + 3, kvloads(3, False), 13 if not hb else 11, pv0[0] + ALB + (125 if not hb else 110)))
    for it in range(1, NIT): vq.append((pv0[2 * it] + ALB + 3, kvloads(it + 3, True), 13, pv0[2 * it] + ALB + 125))
    e0 = pv0[12] + ALB
    if P.get("ct2"):
        gg_ = pv0[0] + ALB + (130 if not hb else 112) if P["ct2"] == 1 else e0
        vq.append((gg_, [Ins("global_load_dword v127, v127, s[68:69]", tag="touch")], 0, gg_ + 1))
    e5 = pv0[10] + ALB
    vq.append((e5 + 1, [flagload("fH")] + tw(0) + tw(1) + tw(2) + tw(3), 6, e5 + 130))
    vq.append((e0 + 1, [flagcheck("fH", 2)] + tb(0) + tb(1), 6, e0 + 130))
    NPW = P["npw"]
    if NPW > 6:
        vq.append((e0 + 131, tw(4) + tw(5), 2, pv0[15] - 1))
        vq.append((pv0[15], sum([tw(n) for n in range(6, NPW)], []), 0, CHK - 1))
    else: vq.append((pv0[15], sum([tw(n) for n in range(4, NPW)], []), 0, CHK - 1))
    vq.append((CHK + 1, tb(2) + (tb(3) if P['bd'] > 3 else []), 3 if P['bd'] <= 3 else 1, kb0 + 10))
    OC = P["ochk"]; WD = P["wd"]; BD = P["bd"]
    for m in range(0, NT - 2):
        its = []
        if NPW <= m + WD < NT: its += tw(m + WD)
        n = m + BD
        if m == OC: its += [flagcheck("fO", 3)] + sum([tb(k_) for k_ in range(NBT, n + 1)], [])
        elif n < NT and not (NBT <= n and m < OC): its += tb(n)
        if its: vq.append((t0(m) + (11 if m == 0 else 1), its, P["tsp"] if len(its) < 18 else 1, t0(m + 1) - 1))
    vq.append((t0(OC - 2) + 30, [flagload("fO")], 0))
    nmain = len(vq)
    for lam in range(1, 4):
        b = 128 + 32 * lam
        vq.append((t0(NBT) + 10 + (lam - 1) * 4 * P["bsp"], [Ins(f"v_cvt_pk_bf16_f32 v{b+i}, v{b+2*i}, v{b+2*i+1}") for i in range(16)] + exch(0, lam, True, b, ("Bst", lam)), P["bsp"]))
    vq.append((t0(NBT + P['bpub']) + 30, [[Ins("v_mov_b32 v126, 1"), W(vm=("Bst", 3))], finepub(1), finepub(2), finepub(3)], 1))
    vq.append((t0(min(NBT + P['bpub'] + 2, NN - 1)) + 10, [fineload("fB")], 4))
    xl = [Ins(f"s_add_u32 m0, s5, {XL:#x}"), Ins("s_nop 0")] + [Ins(f"buffer_load_dwordx4 v21, s[92:95], s{8+mb} offen offset:{mb*1024} lds", tag="xld", wr=(XL, XL + 16384, "X")) for mb in range(4)]
    if P.get("xs"):
        for mb in range(4):
            vq.insert(0, (t0(P["xt"] + 1 + mb) - 2, [[xl[0].copy(), xl[1].copy(), xl[2 + mb]]], 0, t0(P["xt"] + 1 + mb) - 1)); nmain += 1
    else:
        vq.insert(0, (t0(P["xt"] + 1) - 2, [xl], 0, t0(P["xt"] + 1) - 1)); nmain += 1
    vq.append((t0(NN + 1), [finecheck("fB", 0x01010100)] + sum([exch(0, lam, False, 144 + 32 * lam, ("Bld", lam)) for lam in range(1, 4)], []), 5))
    for lam in range(1, 4):
        g = gp(g2[(NT - 1, 2 * lam + 1)]) + 8 + 5
        its = []
        for i in range(0, 32, 8):
            its += [Ins(f"v_accvgpr_read_b32 v{112+q}, a{32*lam+i+q}") for q in range(8)] + [Ins(f"v_cvt_pk_bf16_f32 v{128+32*lam+i//2+q}, v{112+2*q}, v{113+2*q}") for q in range(4)]
        vq.append((g, its + exch(1, lam, True, 128 + 32 * lam, ("Sst", lam)), 2))
    gk = gp(g2[(NN, 0)])
    vy = []
    for lam in range(1, 4):
        vy.append((gk + P["pub5"] - (3 - lam) * 32, [[Ins("v_mov_b32 v126, 3"), W(vm=("Sst", lam))], finepub(lam)], 0))
    vy.append((gk + P["pub5"] - 1, [fineload("f51")], 0))
    for Q, lst in (("vm", sorted(vq[:nmain], key=lambda e: e[0])), ("vx", sorted(vq[nmain:], key=lambda e: e[0])), ("vy", sorted(vy, key=lambda e: e[0]))):
        if Q == "vx":
            for g in range(t0(NN), len(at.mf)): at.capo[g] = 3
        for g, its, sp, *dl in lst:
            dl = dl[0] if dl else None
            for x in its:
                if dl is not None: g = min(g, dl)
                if isinstance(x, list): g = at.flowg(Q, g, x, deadline=dl)
                elif x.kind == "comment":
                    g = max(g, at.qpos.get(Q, g)); at.mid[g].append(x); at.qpos[Q] = g
                elif Q == "vm": g = vflow(at, g, [x], sp, dl)
                else: g = at.flow(Q, g, x, deadline=dl) + (sp if x.kind == "vmem" else 0)
    rdy0 = {}
    for qb in range(4):
        a, b = sbl(0, qb, 0), sbl(0, qb, 1); t0_ = 116 + (qb % 2) * 2; g = qb * 8 + 7 + 6
        seq = maxseq(a, b, t0_) + xlane(t0_, t0_ + 1) + [f"v_sub_f32 v{96+qb*4+i}, 0, v{t0_}" for i in range(4)] + [f"v_sub_f32 v{r}, v{r}, v{t0_}" for r in list(range(a, a + 4)) + list(range(b, b + 4))]
        for i, s_ in enumerate(seq): at.flow("mx", g, Ins(s_), deadline=(qk0[1] + qb * 8 - 2 if i < 16 else pv0[0] - 6))
        rdy0[qb] = at.qpos["mx"] + 1
    exps = []
    for u in range(NU):
        w0 = pv0[u - 1] + ALB if 1 <= u <= 2 * NIT + 1 else 0
        for i in range(32):
            qb, rem = divmod(i, 8)
            ready = qk0[u] + qb * 8 + (rem // 4) * 4 + 3 + 6
            if u == 0: ready = max(ready, rdy0[qb])
            exps.append((max(ready, w0), u, i))
    ei = 0; pend = []
    def put(g, x): at.mid[g].append(x); at.used[g] += x.cost
    for g in range(0, kb0):
        def do_exp():
            nonlocal ei
            _, u, i = exps[ei]; ei += 1
            qb, rem = divmod(i, 8); r = sbl(u, qb, rem // 4) + rem % 4
            put(g, Ins(f"v_exp_f32 v{r}, v{r}"))
            if i % 2: pend.append((g + 1, u, Ins(f"v_cvt_pk_bf16_f32 v{sbl(u, qb, 0)+rem//2}, v{r-1}, v{r}")))
        while ei < len(exps) and pv0[exps[ei][1]] - 2 <= g: do_exp()
        while pend and pv0[pend[0][1]] - 1 <= g: put(g, pend.pop(0)[2])
        nr = sum(1 for p_ in pend if p_[0] <= g)
        if at.used[g] == 0 and ei < len(exps) and exps[ei][0] <= g and nr < 4: do_exp()
        while at.used[g] < 2 and pend and pend[0][0] <= g: put(g, pend.pop(0)[2])
    assert ei == len(exps) and not pend
    for x in late2: at.flow("late", 1, x, deadline=pv0[0] + 28)
    for x in late3: at.flow("late", pv0[0] + 1, x, deadline=pv0[2] + ALB - 1)
    for g in range(CHK + 2, t0(4)): at.capo[g] = P["ocap"]
    for x in L("s_add_u32 s54, s53, 4096\ns_add_u32 s55, s53, 8192\ns_add_u32 s3, s53, 12288"): at.flow("od", CHK + 1, x)
    xa0 = L(f"""
    v_lshrrev_b32 v21, 2, v1
    s_lshl_b32 s62, s32, 8
    s_lshl_b32 s63, s33, 6
    s_add_u32 s62, s62, s63
    v_add_u32 v21, s62, v21
    v_lshlrev_b32 v21, 11, v21
    v_and_b32 v24, 3, v1
    v_lshl_add_u32 v21, v24, 4, v21
    s_lshl_b32 s62, s48, 6
    s_add_u32 s62, s62, s49
    v_add_u32 v21, s62, v21
    v_and_b32 v24, 15, v1
    v_lshlrev_b32 v24, 6, v24
    v_lshrrev_b32 v31, 4, v1
    v_lshl_add_u32 v24, v31, 4, v24
    s_add_u32 s62, s5, {XL:#x}
    v_add_u32 v24, s62, v24
    v_add_u32 v31, s62, v25
    s_mov_b32 s8, 0
    s_mov_b32 s9, {0x8000-1024}
    s_mov_b32 s10, {2*(0x8000-1024)}
    s_mov_b32 s11, {3*(0x8000-1024)}
    """)
    for x in xa0: at.flow("od", CHK + 1, x, deadline=kb0 + 30)
    k = 0
    for b32 in range(4):
        for qb in range(4):
            tb_ = 96 + (k % 2) * 8; ob = 112 + (k % 2) * 4; k += 1
            g = max(pvpos(15, 2 * b32 + 1) + 4 + 8, kb0 - 8 + (k - 1) * P["osp"])
            for e in range(2):
                for i in range(4): at.flow("od", g, Ins(f"v_accvgpr_read_b32 v{tb_+e*4+i}, a{((b32*2+e)*4+qb)*4+i}"))
            for q in range(8): at.flow("od", g, Ins(f"v_mul_f32 v{tb_+q}, v{tb_+q}, v{120+qb}"))
            for q in range(4): gq = at.flow("od", g, Ins(f"v_cvt_pk_bf16_f32 v{ob+q}, v{tb_+2*q}, v{tb_+2*q+1}"))
            at.flow("od", gq, Ins(f"buffer_store_dwordx4 v[{ob}:{ob+3}], v25, s[40:43], {['s53','s54','s55','s3'][b32]} offen offset:{qb*1024}{SC}", tag="Ost"))
    npub = [n for n in range(NN) if b2[n] > at.qpos["od"] + 40][0]
    print("O drain ends at K2 tile", (at.qpos["od"] - kb0) / 64, "publish at b2", npub)
    at.front[b2[npub]].insert(0, W(vm="Ost")); at.used[b2[npub]] += 1
    for x in [ASSERT("Ost"), Ins("v_mov_b32 v126, 3"), pubstore()]: at.flow("od", b2[npub] + 1, x)
    xa = L(f"""
    s_lshl_b32 s62, s32, 5
    s_add_u32 s62, s62, s34           ; gid
    s_lshl_b32 s63, s62, 17
    s_lshl_b32 s4, s33, 12
    s_add_u32 s63, s63, s4
    v_add_u32 v17, s63, v25
    v_xor_b32 v18, {8<<17:#x}, v17
    v_xor_b32 v19, {16<<17:#x}, v17
    v_xor_b32 v20, {24<<17:#x}, v17
    s_lshl_b32 s62, s62, 17
    s_lshl_b32 s4, s33, 2
    s_add_u32 s62, s62, s4
    s_add_u32 s62, s62, {MB_REL+32:#x}
    v_mov_b32 v22, s62
    s_xor_b32 s16, s62, {(8<<17)+1:#x}
    s_xor_b32 s17, s62, {(16<<17)+2:#x}
    s_xor_b32 s18, s62, {(24<<17)+3:#x}
    v_cmp_eq_u32 vcc, 0, v1
    v_mov_b32 v23, 0x7ff00000
    s_nop 0
    v_cndmask_b32 v23, v23, 0, vcc
    s_mov_b32 s52, 0
    s_mov_b32 s53, 0x8000
    s_mov_b32 s54, 0x10000
    s_mov_b32 s55, 0x18000
    s_mov_b32 s68, 0xbfb8aa3b
    s_mov_b32 s69, 0xffff0000
    """)
    assert at.qpos["od"] < t0(OC - 2)
    for x in xa: at.flow("od", at.qpos["od"], x, deadline=t0(OC - 1))
    def unp(d, src, i): return Ins(f"v_lshlrev_b32 v{d}, 16, v{src+i//2}" if i % 2 == 0 else f"v_and_b32 v{d}, s69, v{src+i//2}")
    fin = [W(vm=("Bld", 3)), Ins("s_mov_b32 s16, s68"), Ins("s_mov_b32 s17, s68")]
    for lam in range(1, 4):
        for i in range(32): fin.append(unp(32 + i, 144 + 32 * lam, i))
        for i in range(0, 32, 2): fin += L(f"v_pk_add_f32 v[{128+i}:{129+i}], v[{128+i}:{129+i}], v[{32+i}:{33+i}]")
    for i0 in range(0, 32, 4):
        tmp = 112 + (i0 // 4 % 2) * 4; r = 128 + i0
        for i in (0, 2): fin += L(f"v_pk_mul_f32 v[{tmp+i}:{tmp+i+1}], v[{r+i}:{r+i+1}], s[16:17]")
        for i in range(4): fin += L(f"v_exp_f32 v{tmp+i}, v{tmp+i}")
        for i in range(4): fin += L(f"v_add_f32 v{tmp+i}, 1.0, v{tmp+i}")
        for i in range(4): fin += L(f"v_rcp_f32 v{tmp+i}, v{tmp+i}")
        fin += L("s_nop 0")
        for i in (0, 2): fin += L(f"v_pk_mul_f32 v[{r+i}:{r+i+1}], v[{r+i}:{r+i+1}], v[{tmp+i}:{tmp+i+1}]")
    fin[3:3] = [W(vm="xld")] + [Ins(f"ds_read_b128 v[{96+mb*4}:{99+mb*4}], v24 offset:{mb*1024}", tag="xrd") for mb in range(4)]
    fin += [W(lg="xrd")] + L("s_mov_b64 exec, s[56:57]") + sum([L(f"v_swap_b32 v{96+mb*4}, v{98+mb*4}\nv_swap_b32 v{97+mb*4}, v{99+mb*4}") for mb in range(4)], []) + L("s_mov_b64 exec, -1")
    for mb in range(4):
        for q in range(8): fin.append(unp(160 + ((q // 4) * 4 + mb) * 4 + q % 4, 96 + mb * 4, q))
    print("attn+k2", [(i, at.used[i]) for i in range(-12, kb0 + 20) if at.used[i] > 2], "pv0", pv0, "qk0", qk0, "CHK", CHK, "kb0", kb0)
    A_ = at.emit()
    if STAMP and P.get("ast"):
        i = [k for k, x in enumerate(A_) if x.text == "; @IT A"][0]
        A_ = A_[:i] + stamp() + A_[i:]
        i = [k for k, x in enumerate(A_) if x.text == "; @ENDIT A"][0] + 1
        A_ = A_[:i] + stamp() + A_[i:]
    if STAMP:
        for m_ in (kb0, t0(5)) + (tuple(t0(n_) for n_ in (10, 12, 14, 17, 20, 22)) if P.get("mst") else ()) + (t0(NN),) + ((gp(g2[(NT - 2, 2)]), gk) if P.get("tst") else ()):
            i = [k for k, x in enumerate(A_) if x is at.mf[m_]][0]
            A_ = A_[:i] + stamp() + A_[i:]
    nf = P["fsplit"]
    sd = {1: 192, 2: 224, 3: 208}
    nb_ = 3 + 3 * 48
    epi = stamp() + L("s_nop 7") + fin[:100] + finecheck("f51", 0x00020200) + exch(1, 1, False, sd[1], ("Sld", 1)) + exch(1, 2, False, sd[2], ("Sld", 2))
    epi += fin[100:nf] + [fineload("f5")] + fin[nf:] + finecheck("f5", 0x02000000) + exch(1, 3, False, sd[3], ("Sld", 3))
    epi += stamp()
    for i in range(32): epi += L(f"v_accvgpr_read_b32 v{64+i}, a{i}")
    for lam in range(1, 4):
        epi += [W(vm=("Sld", lam))]
        for i in range(32): epi += [unp(32 + i, sd[lam], i)]
        for i in range(0, 32, 2): epi += L(f"v_pk_add_f32 v[{64+i}:{65+i}], v[{64+i}:{65+i}], v[{32+i}:{33+i}]")
    epi += stamp()
    for mb in range(4):
        for e in range(2):
            for h in range(2):
                i = (e * 4 + mb) * 4 + 2 * h
                epi += L(f"v_pk_fma_f32 v[{160+i}:{161+i}], v[{64+i}:{65+i}], v[{128+i}:{129+i}], v[{160+i}:{161+i}]")
        r = 96 + mb * 4
        for e in range(2):
            for h in range(2):
                i = (e * 4 + mb) * 4 + 2 * h
                epi += L(f"v_cvt_pk_bf16_f32 v{r+e*2+h}, v{160+i}, v{161+i}")
        epi += L(f"s_mov_b64 exec, s[56:57]\nv_swap_b32 v{r}, v{r+2}\nv_swap_b32 v{r+1}, v{r+3}\ns_mov_b64 exec, -1")
        epi += [Ins(f"ds_write_b128 v24, v[{r}:{r+3}] offset:{mb*1024}", tag=("ow", mb))]
        epi += [Ins(f"ds_read_b128 v[{112+mb*4}:{115+mb*4}], v31 offset:{mb*1024}", tag=("or", mb))]
    for mb in range(4):
        epi += [W(lg=("or", mb))] + L(f"buffer_store_dwordx4 v[{112+mb*4}:{115+mb*4}], v21, s[96:99], s{52+mb} offen")
    epi += L("s_waitcnt vmcnt(0)") * STAMP + stamp() + stamp_store()
    epi += L("L_end:\ns_endpgm")
    vcur = PAIR[7 % 5] + 16384; kcur = PAIR[7 % 5]
    fbk = L(f"""
    L_fallback:
    s_waitcnt vmcnt(0) lgkmcnt(0)
    s_nop 7
    s_add_u32 s88, s5, {FBSLOT0:#x}
    s_and_b32 s62, s33, 1
    s_lshl_b32 s62, s62, 13
    s_lshr_b32 s63, s33, 1
    s_lshl_b32 s63, s63, 7
    s_add_u32 s62, s62, s63
    """)
    for z in range(4): fbk += L(f"v_subrev_u32 v{17+z}, s5, v{17+z}\nv_subrev_u32 v{21+z}, s62, v{21+z}")
    fbk += L(f"s_sub_u32 s62, s88, {kcur:#x}")
    for b in range(4): fbk += L(f"v_add_u32 v{KR+b}, s62, v{KR+b}")
    fbk += L(f"s_sub_u32 s62, s88, {vcur:#x}\nv_add_u32 v116, s62, v{VR}\nv_add_u32 v117, s62, v{VR+1}")
    for qb in range(4): fbk += L(f"v_mov_b32 v{120+qb}, 0xff800000")
    def fb_k(first):
        o = []
        for kb in range(2):
            o += L(f"s_add_u32 m0, s88, {kb*16384}\ns_add_u32 s89, s55, {kb*4096}")
            for z in range(4): o += L(f"buffer_load_dwordx4 v{17+z}, s[28:31], s89 offen offset:{z*1024} lds")
        o += L("s_waitcnt vmcnt(0)")
        for kb in range(2):
            for be in range(4): o += L(f"ds_read_b128 {kfb(0, kb, be)}, v{KR+be} offset:{kb*16384}")
        o += L("s_waitcnt lgkmcnt(0)")
        o += L("\n".join(qk_list(1, first, lambda kb, be: kfb(0, kb, be)))) + L("s_nop 7")
        return o
    fbk += L("s_mov_b32 s55, 0\nL_fb1:") + fb_k(True)
    for qb in range(4):
        fbk += L("\n".join(maxseq(sbl(1, qb, 0), sbl(1, qb, 1), 118))) + L(f"v_max_f32 v{120+qb}, v{120+qb}, v118")
    fbk += L("s_add_u32 s55, s55, 0x2000\ns_cmp_lt_u32 s55, 0x20000\ns_cbranch_scc1 L_fb1")
    for qb in range(4):
        fbk += L("\n".join(xlane(120 + qb, 118)))
        for i in range(4): fbk += L(f"v_sub_f32 v{96+qb*4+i}, 0, v{120+qb}")
    for i in range(144): fbk += L(f"v_accvgpr_write_b32 a{i}, 0")
    fbk += L("s_mov_b32 s55, 0\nL_fb2:")
    fbk += fb_k(False)
    for bp in range(2):
        fbk += L(f"s_add_u32 m0, s88, {bp*16384}\ns_add_u32 s89, s55, {bp*128}")
        for z in range(4): fbk += L(f"buffer_load_dwordx4 v{21+z}, s[36:39], s89 offen offset:{z*1024} lds")
    fbk += L("s_waitcnt vmcnt(0)")
    for db in range(8):
        b32, e = db >> 1, db & 1
        for rr in range(2): fbk += L(f"ds_read_b64_tr_b16 a[{144+db*4+rr*2}:{145+db*4+rr*2}], v{116+e} offset:{(b32>>1)*16384+(b32&1)*512+rr*2048}")
    for qb in range(4):
        for kb in range(2):
            for i in range(4): fbk += L(f"v_exp_f32 v{sbl(1, qb, kb)+i}, v{sbl(1, qb, kb)+i}")
    for qb in range(4):
        for h in range(4): fbk += L(f"v_cvt_pk_bf16_f32 v{sbl(1, qb, 0)+h}, v{sbl(1, qb, h//2)+(h%2)*2}, v{sbl(1, qb, h//2)+(h%2)*2+1}")
    pl = pv_list(15, lambda db: f"a[{144+db*4}:{147+db*4}]")
    nfirst = CHK - pv0[15]
    fbk += L("s_waitcnt lgkmcnt(0)") + L("\n".join(pl[:nfirst]))
    fbk += L("s_add_u32 s55, s55, 0x2000\ns_cmp_lt_u32 s55, 0x20000\ns_cbranch_scc0 L_fb_done") + L("\n".join(pl[nfirst:])) + L("s_branch L_fb2\nL_fb_done:\ns_nop 7")
    for qb in range(4): fbk += L(f"v_accvgpr_read_b32 v{116+qb}, a{128+qb*4}")
    if NPW > 6:
        fbk += L(f"s_sub_u32 s71, s71, {(NPW-6)*0x20000:#x}")
        for n in range(6, NPW): fbk += fix_m0([Ins(x.text) for x in tw(n)])
        fbk += L("s_waitcnt vmcnt(0)")
    fbk += L("s_branch L_fb_ret")
    errs = check(fbk, "fb")
    assert not errs, "\n".join(errs[:30])
    full = resolve_waits(fix_m0(pro + G_ + mid + A_ + epi))
    full, prog = collapse(full)
    errs = check(full, "fused")
    assert not errs, "\n".join(errs[:30])
    def keep(x):
        t = x.tag
        if isinstance(t, tuple):
            if P.get("ablTW") and t[0] == "TW" and t[1] >= 5: return False
            if P.get("ablTB") and t[0] == "TB" and t[1] >= 5: return False
            if P.get("ablE") and t[0] in ("Bst", "Bld"): return False
        if P.get("noOst") and t == "Ost": return False
        return True
    prog = [x for x in prog if keep(x)]
    return dict(name=NAME + "_kernel", body=text(prog + ool + fbk + L("L_code_end:")), grid=256, block=256, lds=163840, vgpr=512, accum=256, sgpr=102)

if __name__ == "__main__":
    STAMP = "stamp" in sys.argv
    open("t_u.s", "w").write(build_file([gen_fused()]))
    for v in sys.argv[1:]:
        if v == "stamp": continue
        P = {}
        for kv in v.split(","):
            k, _, val = kv.partition("="); P[k] = int(val, 0) if val else 1
        open("t_u_" + v.replace(",", "_").replace("=", "") + ".s", "w").write(build_file([gen_fused(P)]))
```
